```python
import torch

def _softmax(x, axis=-1):
    return torch.softmax(x, dim=axis)
def _gelu(x):
    return torch.nn.functional.gelu(x, approximate="tanh")
def _silu(x):
    return torch.nn.functional.silu(x)
def _sigmoid(x):
    return torch.sigmoid(x)
def _layernorm(x, axis=-1, eps=1e-5):
    m = x.mean(dim=axis, keepdim=True)
    v = x.var(dim=axis, keepdim=True, unbiased=False)
    return (x - m) / torch.sqrt(v + eps)
def _scatter_add(tgt, idx, src, axis=0):
    return tgt.clone().index_add_(axis, idx, src)
def _segment_sum(src, seg, n):
    out = torch.zeros((n,) + src.shape[1:], dtype=src.dtype)
    return out.index_add_(0, seg, src)
def _pad(x, pw):
    flat = tuple(v for pair in reversed(pw) for v in pair)
    return torch.nn.functional.pad(x, flat)

kernel_name = 'concat_heads__compressed_kv_cla__sliding_block__prompt'

def setup_inputs():

    _w = (lambda a: (lambda t: t.to(torch.bfloat16) if t.is_floating_point() else t)(torch.as_tensor(a)))
    def _A_setup():
        B, H, Sq, Sk, D, M = 1, 16, 2048, 2048, 256, 448
        Dc = 4 * D
        return {
            "x": _w((lambda *s: torch.randn(*s, dtype=torch.bfloat16) * 0.2)(B, Sq, M)),
            "c_kv": _w((lambda *s: torch.randn(*s, dtype=torch.bfloat16) * 1.6)(B, Sk, Dc)),
            "w_q": _w((lambda *s: torch.randn(*s, dtype=torch.bfloat16) * 3.2)(M, H, D) * (M ** -0.5)),
            "w_uk": _w((lambda *s: torch.randn(*s, dtype=torch.bfloat16) * 3.2)(Dc, H, D) * (Dc ** -0.5)),
            "w_uv": _w((lambda *s: torch.randn(*s, dtype=torch.bfloat16) * 1.6)(Dc, H, D) * (Dc ** -0.5)),
            "w_o": _w((lambda *s: torch.randn(*s, dtype=torch.bfloat16) * 1.6)(H, D, M) * ((H * D) ** -0.5)),
        }
    _A_in = _A_setup()

    def _B_setup():
        B, S, D = 1, 2048, 448
        return {
            "x": _w((lambda *s: torch.randn(*s, dtype=torch.bfloat16) * 0.4)(B, S, D)),
            "wqkv": _w((lambda *s: torch.randn(*s, dtype=torch.bfloat16) * 0.4)(D, 3 * D)),
            "wo": _w((lambda *s: torch.randn(*s, dtype=torch.bfloat16) * 0.05)(D, D)),
        }
    _B_in = _B_setup()

    return {
        "A_x": _A_in["x"],
        "A_c_kv": _A_in["c_kv"],
        "A_w_q": _A_in["w_q"],
        "A_w_uk": _A_in["w_uk"],
        "A_w_uv": _A_in["w_uv"],
        "A_w_o": _A_in["w_o"],
        "B_x": _B_in["x"],
        "B_wqkv": _B_in["wqkv"],
        "B_wo": _B_in["wo"],
    }

def reference(A_x, A_c_kv, A_w_q, A_w_uk, A_w_uv, A_w_o, B_x, B_wqkv, B_wo):
    def _A_ref(x, c_kv, w_q, w_uk, w_uv, w_o):
        B, Sq, M = x.shape[0], x.shape[1], x.shape[2]
        Sk = c_kv.shape[1]
        H, D = w_q.shape[1], w_q.shape[2]
        q = torch.einsum("bqm,mhd->bhqd", x, w_q)
        k = torch.einsum("bkc,chd->bhkd", c_kv, w_uk)
        v = torch.einsum("bkc,chd->bhkd", c_kv, w_uv)
        scores = torch.einsum("bhqd,bhkd->bhqk", q, k) * (D ** -0.5)
        off = Sk - Sq
        qi = torch.arange(Sq)[:, None]
        kj = torch.arange(Sk)[None, :]
        cmask = kj <= (qi + off)
        scores = torch.where(cmask[None, None], scores, -1e9)
        p = _softmax(scores, axis=-1)
        ctx = torch.einsum("bhqk,bhkd->bhqd", p, v)
        return torch.einsum("bhqd,hdm->bqm", ctx, w_o)

    def _B_ref(x, wqkv, wo):
        B, S, D = x.shape
        H = 16; Dh = D // H; W = 256
        qkv = (lambda x, *d: x.permute(*d))((x @ wqkv).reshape(B, S, 3, H, Dh), 2, 0, 3, 1, 4)
        q, k, v = qkv[0], qkv[1], qkv[2]
        scores = torch.einsum("bhqd,bhkd->bhqk", q, k) * (Dh ** -0.5)
        idx = torch.arange(S)
        mask = (idx[:, None] - idx[None, :] >= 0) & (idx[:, None] - idx[None, :] < W)
        scores = torch.where(mask[None, None], scores, -1e9)
        p = _softmax(scores, axis=-1)
        o = torch.einsum("bhqk,bhkd->bhqd", p, v)
        return (lambda x, *d: x.permute(*d))(o, 0, 2, 1, 3).reshape(B, S, D) @ wo

    a = _A_ref(A_x, A_c_kv, A_w_q, A_w_uk, A_w_uv, A_w_o)
    b = _B_ref(B_x, B_wqkv, B_wo)
    return torch.concatenate([a, b], axis=-1)
```

```python
import re

def v(n, c=1):
    return "v%d" % n if c == 1 else "v[%d:%d]" % (n, n + c - 1)
def a(n, c=1):
    return "a%d" % n if c == 1 else "a[%d:%d]" % (n, n + c - 1)
def s(n, c=1):
    return "s%d" % n if c == 1 else "s[%d:%d]" % (n, n + c - 1)

class Asm:
    def __init__(self):
        self.L = []
    def __call__(self, *lines):
        for x in lines:
            if isinstance(x, (list, tuple)):
                self(*x)
            else:
                self.L.append(x)
    def label(self, n):
        self.L.append(n + ":")
    def c(self, text):
        self.L.append("; " + text)
    def text(self):
        out = []
        for x in self.L:
            if x.endswith(":") or x.startswith(";") or x.startswith("."):
                out.append(x)
            else:
                out.append(x)
        return "\n".join(out) + "\n"

def weave(mfmas, gaps):
    out = []
    for i, m in enumerate(mfmas):
        out.append(m)
        out.extend(gaps[i])
    return out

def spread(items, ngaps, start=0, end=None, gaps=None):
    if gaps is None:
        gaps = [[] for _ in range(ngaps)]
    if end is None:
        end = ngaps
    n = len(items)
    span = end - start
    for i, it in enumerate(items):
        g = start + (i * span) // n
        if isinstance(it, (list, tuple)):
            gaps[g].extend(it)
        else:
            gaps[g].append(it)
    return gaps

_REG = re.compile(r"^(v|a|s)(\d+)$")
_RNG = re.compile(r"^(v|a|s)\[(\d+):(\d+)\]$")

def regs_of(tok):
    tok = tok.strip()
    neg = tok.lstrip("-")
    if neg.startswith("abs(") or neg.startswith("|"):
        neg = neg.replace("abs(", "").replace(")", "").replace("|", "")
    m = _REG.match(neg)
    if m:
        return [(m.group(1), int(m.group(2)))]
    m = _RNG.match(neg)
    if m:
        return [(m.group(1), i) for i in range(int(m.group(2)), int(m.group(3)) + 1)]
    if neg == "vcc":
        return [("x", "vcc")]
    if neg == "exec":
        return [("x", "exec")]
    if neg == "m0":
        return [("x", "m0")]
    return []

def split_ops(rest):
    ops = []
    depth = 0
    cur = ""
    for ch in rest:
        if ch in "[(":
            depth += 1
        if ch in "])":
            depth -= 1
        if ch == "," and depth == 0:
            ops.append(cur.strip())
            cur = ""
        else:
            cur += ch
    if cur.strip():
        ops.append(cur.strip())
    return ops

TRANS = ("v_exp_f32", "v_log_f32", "v_rcp_f32", "v_rsq_f32", "v_sqrt_f32", "v_sin_f32", "v_cos_f32")

class Ins:
    def __init__(self, text):
        self.text = text
        t = text.split(";")[0].strip()
        parts = t.split(None, 1)
        self.op = parts[0]
        rest = parts[1] if len(parts) > 1 else ""
        ops = split_ops(rest)
        self.mods = ""
        if ops:
            last = ops[-1].split(None, 1)
            if len(last) > 1:
                ops[-1] = last[0]
                self.mods = last[1]
        self.ops = ops
        op = self.op
        self.cls = ("mfma" if op.startswith("v_mfma") else
                    "valu" if op.startswith("v_") else
                    "ds" if op.startswith("ds_") else
                    "vmem" if op.startswith("buffer_") or op.startswith("global_") else
                    "smem" if op.startswith("s_load") or op.startswith("s_mem") else
                    "salu")
        R, W = [], []
        o = ops
        if self.cls == "mfma":
            W = regs_of(o[0]); R = regs_of(o[1]) + regs_of(o[2]) + regs_of(o[3])
            self.D = regs_of(o[0]); self.A = regs_of(o[1]); self.B = regs_of(o[2]); self.C = regs_of(o[3])
            self.passes = 8 if "32x32" in op else 4
        elif self.cls == "valu":
            if op.startswith("v_cmp"):
                W = regs_of(o[0]); R = sum([regs_of(x) for x in o[1:]], [])
                if op.startswith("v_cmpx"):
                    W += [("x", "exec")]
            elif op.startswith("v_permlane32_swap") or op.startswith("v_permlane16_swap"):
                W = regs_of(o[0]) + regs_of(o[1]); R = list(W)
            elif op.startswith("v_add_co") or op.startswith("v_sub_co") or op.startswith("v_addc_co") or op.startswith("v_subb_co"):
                W = regs_of(o[0]) + regs_of(o[1]); R = sum([regs_of(x) for x in o[2:]], [])
            else:
                W = regs_of(o[0]); R = sum([regs_of(x) for x in o[1:]], [])
                if op.startswith("v_fmac") or op.startswith("v_pk_fmac") or op.startswith("v_writelane") or "_dpp" in op:
                    R += regs_of(o[0])
                if op.startswith("v_cndmask") and len(o) == 3:
                    R += [("x", "vcc")]
        elif self.cls == "ds":
            if op.startswith("ds_read") or op.startswith("ds_bpermute") or op.startswith("ds_swizzle"):
                W = regs_of(o[0]); R = sum([regs_of(x) for x in o[1:]], [])
            else:
                R = sum([regs_of(x) for x in o], [])
        elif self.cls == "vmem":
            self.lds = " lds" in (" " + self.mods) or self.mods.endswith("lds")
            if op.startswith("buffer_inv") or op.startswith("buffer_wbl2"):
                pass
            elif "load" in op and not self.lds:
                W = regs_of(o[0]); R = sum([regs_of(x) for x in o[1:]], [])
            elif "load" in op and self.lds:
                R = sum([regs_of(x) for x in o], []) + [("x", "m0")]
            elif "atomic" in op:
                R = sum([regs_of(x) for x in o], [])
                if "sc0" in self.mods:
                    W = regs_of(o[0]) if op.startswith("buffer") else regs_of(o[0])
            else:
                R = sum([regs_of(x) for x in o], [])
                if op.startswith("buffer_store"):
                    self.sdata = regs_of(o[0])
                else:
                    self.sdata = regs_of(o[1])
        elif self.cls == "smem":
            W = regs_of(o[0]); R = sum([regs_of(x) for x in o[1:]], [])
        else:
            nodst = ("s_cmp", "s_waitcnt", "s_barrier", "s_branch", "s_cbranch", "s_nop", "s_setprio", "s_bitcmp",
                     "s_endpgm", "s_sleep", "s_setreg", "s_sethalt")
            if op.startswith(nodst):
                R = sum([regs_of(x) for x in o], [])
            else:
                W = regs_of(o[0]) if o else []
                R = sum([regs_of(x) for x in o[1:]], [])
                if "saveexec" in op:
                    W += [("x", "exec")]; R += [("x", "exec")]
                if op.startswith("s_addk") or op.startswith("s_mulk") or op.startswith("s_cmov"):
                    R += regs_of(o[0])
        self.R = set(R); self.W = set(W)
        self.states = 1
        if op == "s_nop":
            self.states = int(o[0], 0) + 1

def check(lines, name="", verbose=True):
    ins = [Ins(x) for x in lines if not (x.endswith(":") or x.startswith(";") or x.startswith("."))]
    probs = []
    n = len(ins)
    def dist(i, j):
        return sum(ins[k].states for k in range(i + 1, j))
    WIN = 24
    for j, c in enumerate(ins):
        acc = 0
        for i in range(j - 1, max(-1, j - WIN - 1), -1):
            p = ins[i]
            d = acc
            need = 0; why = ""
            def req(nn, w):
                nonlocal need, why
                if nn > need:
                    need = nn; why = w
            if p.cls == "valu":
                wv = {r for r in p.W if r[0] in "va"}
                ws = {r for r in p.W if r[0] == "s" or r == ("x", "vcc")}
                if c.cls == "mfma" and (wv & c.R):
                    req(2, "VALU->MFMA operand")
                if c.cls == "valu" and c.op.startswith("v_permlane") and (wv & c.R):
                    req(2, "VALU->permlane")
                if c.cls == "valu" and (c.op.startswith("v_readfirstlane") or c.op.startswith("v_readlane")) and (wv & c.R):
                    req(1, "VALU->readlane")
                if c.cls == "valu" and "_dpp" in c.op and (wv & c.R):
                    req(2, "VALU->DPP")
                if p.op.split("_e")[0] in TRANS or p.op in TRANS:
                    if c.cls in ("valu",) and (wv & c.R) and not (c.op in TRANS):
                        req(1, "trans->VALU")
                    if c.cls == "mfma" and (wv & c.R):
                        req(2, "trans->MFMA")
                if ws:
                    if c.cls == "valu" and (ws & c.R):
                        req(2, "VALU sgpr->VALU read")
                    if c.cls == "vmem" and (ws & c.R):
                        req(5, "VALU sgpr->VMEM")
                    if c.cls == "valu" and (c.op.startswith("v_readlane") or c.op.startswith("v_writelane")) and (ws & c.R):
                        req(4, "VALU sgpr->lane select")
                if ("x", "exec") in p.W:
                    if c.cls == "mfma":
                        req(4, "VALU exec->MFMA")
            if p.cls == "mfma":
                D = set(p.D)
                tab_rd = {4: 8, 8: 12}[p.passes]
                tab_c = {4: 6, 8: 10}[p.passes]
                if c.cls == "mfma":
                    if D & (set(c.A) | set(c.B)):
                        req(tab_rd, "MFMA D->MFMA A/B")
                    if D & set(c.C):
                        if not (set(c.C) == D and c.passes == p.passes):
                            req(tab_c, "MFMA D->MFMA C overlap")
                    if (D & set(c.D)) and not (set(c.C) == D):
                        req(tab_c, "MFMA D->MFMA D WAW")
                elif c.cls in ("valu", "vmem", "ds"):
                    if D & (c.R | c.W):
                        req(tab_rd, "MFMA D->VALU/VMEM/DS")
                if c.cls == "valu" and (set(p.C) & c.W):
                    req({4: 3, 8: 7}[p.passes], "MFMA C WAR VALU write")
            if p.cls == "salu" and ("x", "m0") in p.W:
                if c.cls == "vmem" and getattr(c, "lds", False):
                    req(1, "M0->LDS DMA")
            if p.cls == "vmem" and hasattr(p, "sdata") and len(p.sdata) >= 3:
                if set(p.sdata) & c.W:
                    req(2 if c.cls == "valu" else 1, "store data WAR")
            if need > d:
                probs.append("%s HAZARD %s: need %d have %d\n    P: %s\n    C: %s" % (name, why, need, d, p.text, c.text))
            acc += p.states
            if acc > 20:
                break
    vmq = []
    lgq = []
    for j, c in enumerate(ins):
        if c.op == "s_waitcnt":
            t = c.text
            m = re.search(r"vmcnt\((\d+)\)", t)
            if m:
                k = int(m.group(1))
                while len(vmq) > k:
                    vmq.pop(0)
            m = re.search(r"lgkmcnt\((\d+)\)", t)
            if m:
                k = int(m.group(1))
                if any(x[2] for x in lgq) and k != 0:
                    probs.append("%s counted lgkmcnt with SMEM outstanding: %s" % (name, t))
                while len(lgq) > k:
                    lgq.pop(0)
            continue
        touched = c.R | c.W
        for q, nm in ((vmq, "vmcnt"), (lgq, "lgkmcnt")):
            for e in q:
                if e[0] & touched:
                    probs.append("%s WAIT missing (%s): pending %s\n    C: %s" % (name, nm, e[1], c.text))
        if c.cls == "vmem" and not c.op.startswith("buffer_inv") and not c.op.startswith("buffer_wbl2"):
            vmq.append((set(c.W), c.text))
            if len(vmq) > 63:
                probs.append("%s vmcnt overflow at %s" % (name, c.text))
        elif c.cls == "ds":
            lgq.append((set(c.W), c.text, False))
            if len(lgq) > 15:
                pass
        elif c.cls == "smem":
            lgq.append((set(c.W), c.text, True))
    if verbose:
        for p in probs[:40]:
            print(p)
        if len(probs) > 40:
            print("... %d more" % (len(probs) - 40))
    return probs
```

```python
from asmgen import *

import struct
def f32bits(x):
    return struct.unpack('<I', struct.pack('<f', x))[0]

MB = 1 << 20
WS_K   = 0
WS_V   = 16 * MB
WS_Q   = 32 * MB
WS_CTX = 48 * MB
WS_BQ  = 64 * MB
WS_BK  = 66 * MB
WS_BV  = 68 * MB
WS_CTXB = 70 * MB
WS_WOT = 72 * MB
WS_WOBT = 76 * MB
WS_PART = 80 * MB
WS_FLAG = 100 * MB
WS_DBG = 104 * MB
WS_SIZE = 256 * MB

S_PTR = 32
P_AX, P_CKV, P_WQ, P_WUK, P_WUV, P_WO, P_BX, P_BWQKV, P_BWO, P_OUT, P_DBG, P_WS = [S_PTR + 2 * i for i in range(12)]

def mf16(acc, A, B, C):
    return "v_mfma_f32_16x16x32_bf16 %s, %s, %s, %s" % (acc, A, B, C)

S_ST = 92
S_STI = 91
STAMPV = [255]
def stamp_init(A):
    A("s_mov_b32 %s, 0" % s(S_STI))
    A("v_mov_b32 %s, 0" % v(STAMPV[0]))
def stamp(A):
    A("s_memtime %s" % s(S_ST, 2))
    A("s_memrealtime %s" % s(S_ST + 2, 2))
    A("s_waitcnt lgkmcnt(0)")
    A("s_mov_b32 m0, %s" % s(S_STI))
    A("s_nop 1")
    A("v_writelane_b32 %s, %s, m0" % (v(STAMPV[0]), s(S_ST)))
    A("s_add_u32 m0, %s, 1" % s(S_STI))
    A("s_nop 1")
    A("v_writelane_b32 %s, %s, m0" % (v(STAMPV[0]), s(S_ST + 2)))
    A("s_add_u32 %s, %s, 2" % (s(S_STI), s(S_STI)))
def stamp_flush(A, srd, wave_sgpr, kidx, lbl):
    A("s_lshl_b32 %s, s2, 2" % s(S_ST))
    A("s_add_u32 %s, %s, %s" % (s(S_ST), s(S_ST), s(wave_sgpr)))
    A("s_lshl_b32 %s, %s, 8" % (s(S_ST), s(S_ST)))
    A("s_add_u32 %s, %s, %d" % (s(S_ST), s(S_ST), WS_DBG + kidx * MB))
    A("v_and_b32 v1, 63, v0")
    A("v_lshlrev_b32 v1, 2, v1")
    A("buffer_store_dword %s, v1, %s, %s offen" % (v(STAMPV[0]), s(srd, 4), s(S_ST)))
    A.label(lbl)

def set_srd(A, srd, ptr, nbytes, extra=None):
    if extra is None:
        A("s_mov_b32 %s, %s" % (s(srd), s(ptr)))
        A("s_mov_b32 %s, %s" % (s(srd + 1), s(ptr + 1)))
        A("s_mov_b32 %s, %d" % (s(srd + 2), nbytes))
    else:
        A("s_add_u32 %s, %s, %s" % (s(srd), s(ptr), s(extra)))
        A("s_addc_u32 %s, %s, 0" % (s(srd + 1), s(ptr + 1)))
        A("s_sub_u32 %s, %d, %s" % (s(srd + 2), nbytes, s(extra)))
    A("s_mov_b32 %s, 0x20000" % s(srd + 3))

def descriptor(name, vgpr=512, sgpr=102, accum=256):
    return """.section .rodata,"a"
.p2align 6
.amdhsa_kernel %s
  .amdhsa_next_free_vgpr %d
  .amdhsa_next_free_sgpr %d
  .amdhsa_accum_offset %d
  .amdhsa_group_segment_fixed_size 0
  .amdhsa_kernarg_size 96
  .amdhsa_user_sgpr_count 2
  .amdhsa_user_sgpr_kernarg_segment_ptr 1
  .amdhsa_system_sgpr_workgroup_id_x 1
.end_amdhsa_kernel
""" % (name, vgpr, sgpr, accum)

def load_ptrs(A):
    A("s_load_dwordx16 s[32:47], s[0:1], 0")
    A("s_load_dwordx8 s[48:55], s[0:1], 64")
```

```python
from common import *

LDS_BYTES = 131072
S_ACT = 4; S_W = 8; S_WS = 12
S_WAVE = 16; S_SOA = 17; S_SOW = 18; S_WSTEP = 19; S_CNT = 20; S_M0C = 21; S_M0W = 22
S_OUT = 23; S_TN = 26; S_ROA = 27; S_ROW = 28; S_T = 29; S_OOB = 30; S_TILE = 31
S_ASTR = 56; S_WSTR = 57; S_BT = 58; S_ROW0 = 59; S_TYPE = 60; S_T0 = 61; S_T1 = 62; S_T2 = 63; S_EPI = 64
S_SCALE = 65; S_ESCALE = 66; S_HASN = 67; S_EOUT = 68; S_EEPI = 69

V_L16 = 1
V_AC = 2
V_AW = 4
V_VC = 12
V_VW = 20
V_T = 28
FC = [36, 100]; FW = [68, 132]
V_E = 164

def acc_idx(ktype, i, j):
    if ktype:
        return (i * 8 + j) * 4
    return (((i >> 1) * 8 + j) * 2 + (i & 1)) * 4

def frag_reads(sub, buf):
    def rc(i):
        return "ds_read_b128 %s, %s offset:%d" % (v(FC[buf] + 4 * i, 4), v(V_AC + sub), i * 2048)
    def rw(j, t):
        return "ds_read_b64_tr_b16 %s, %s offset:%d" % (v(FW[buf] + 4 * j + 2 * t, 2), v(V_AW + j), 16384 * sub + 2048 * t)
    r = [rc(0)]
    for j in range(8):
        r.append(rw(j, 0)); r.append(rw(j, 1))
    for i in range(1, 8):
        r.append(rc(i))
    return r

def dma_c(m):
    return "buffer_load_dwordx4 %s, %s, %s offen offset:%d lds" % (v(V_VC + m), s(S_ACT, 4), s(S_SOA), (m & 3) * 1024)
def dma_w(m):
    return "buffer_load_dwordx4 %s, %s, %s offen offset:%d lds" % (v(V_VW + m), s(S_W, 4), s(S_SOW), (m & 3) * 1024)

def body(first, ktype, opts):
    out = []
    order = opts.get("k1order", 0)
    for sub in range(2):
        cur = sub; nxt = cur ^ 1
        mfs = []
        for x in range(8):
            for y in range(8):
                i, j = x, (y if (order != 2 or x % 2 == 0) else 7 - y)
                acc = a(acc_idx(ktype, i, j), 4)
                C = "0" if (first and sub == 0) else acc
                cf = v(FC[cur] + 4 * i, 4); wf = v(FW[cur] + 4 * j, 4)
                mfs.append(mf16(acc, wf, cf, C) if ktype else mf16(acc, cf, wf, C))
        gaps = [[] for _ in range(64)]
        if sub == 0:
            rd = frag_reads(1, nxt)
            for n, x in enumerate(rd):
                gaps[2 * n].append(x)
            if not first:
                d = [dma_w(2), dma_w(3), ["s_add_u32 m0, %s, 4096" % s(S_M0W)], dma_w(4), dma_w(5), dma_w(6), dma_w(7)]
                pos = [1, 5, 7, 9, 13, 17, 21]
                for x, p in zip(d, pos):
                    gaps[p] += x if isinstance(x, list) else [x]
        else:
            gaps[0] += ["v_xor_b32 %s, 0x8000, %s" % (v(V_AC), v(V_AC))]
            for j in range(8):
                gaps[1 + 2 * j] += ["v_xor_b32 %s, 0x8000, %s" % (v(V_AW + j), v(V_AW + j))]
            rd = frag_reads(0, nxt)
            for n, x in enumerate(rd):
                gaps[2 + 2 * n].append(x)
            gaps[17] += ["v_xor_b32 %s, 0x8000, %s" % (v(V_AC + 1), v(V_AC + 1))]
            sal = ["s_xor_b32 %s, %s, 0x8000" % (s(S_M0C), s(S_M0C)),
                   "s_xor_b32 %s, %s, 0x8000" % (s(S_M0W), s(S_M0W)),
                   "s_add_u32 %s, %s, 128" % (s(S_ROA), s(S_ROA)),
                   "s_add_u32 %s, %s, %s" % (s(S_ROW), s(S_ROW), s(S_WSTEP)),
                   "s_add_u32 %s, %s, 1" % (s(S_TN), s(S_TN)),
                   "s_cmp_lt_u32 %s, %s" % (s(S_TN), s(S_T)),
                   "s_cselect_b32 %s, %s, %s" % (s(S_SOA), s(S_ROA), s(S_OOB)),
                   "s_cselect_b32 %s, %s, %s" % (s(S_SOW), s(S_ROW), s(S_OOB)),
                   "s_mov_b32 m0, %s" % s(S_M0C)]
            for n, x in enumerate(sal):
                gaps[[0, 2, 4, 6, 8, 10, 12, 14, 16][n]].append(x)
            d = [dma_c(0), dma_c(1), dma_c(2), dma_c(3), "s_add_u32 m0, %s, 4096" % s(S_M0C), dma_c(4), dma_c(5), dma_c(6), dma_c(7),
                 "s_mov_b32 m0, %s" % s(S_M0W), dma_w(0), dma_w(1)]
            pos = [19, 23, 27, 31, 33, 35, 39, 43, 47, 51, 53, 59]
            for x, p in zip(d, pos):
                gaps[p].append(x)
        if opts.get("nodma"):
            gaps = [[x for x in g if " lds" not in x] for g in gaps]
        if opts.get("noreads"):
            gaps = [[x for x in g if not x.startswith("ds_read")] for g in gaps]
        out.append("s_waitcnt lgkmcnt(0)")
        out += weave(mfs, gaps)
        if sub == 0:
            if first:
                out += ["s_cmp_eq_u32 %s, 0" % s(S_TILE),
                        "s_cbranch_scc1 L_k1_fw0_%d" % ktype,
                        "s_waitcnt vmcnt(32) lgkmcnt(0)",
                        "s_branch L_k1_fw1_%d" % ktype,
                        "L_k1_fw0_%d:" % ktype,
                        "s_waitcnt vmcnt(0) lgkmcnt(0)",
                        "L_k1_fw1_%d:" % ktype]
            else:
                out += ["s_waitcnt vmcnt(0) lgkmcnt(0)"]
            if not opts.get("nobar"):
                out += ["s_barrier"]
    return out

def tile_setup(A):
    T = V_T
    A("v_and_b32 %s, 63, v0" % v(T))
    A("v_lshlrev_b32 %s, 4, %s" % (v(V_L16), v(T)))
    A("v_and_b32 %s, 15, %s" % (v(T + 1), v(T)))
    A("v_lshrrev_b32 %s, 4, %s" % (v(T + 2), v(T)))
    A("v_lshrrev_b32 %s, 1, %s" % (v(T + 3), v(T + 1)))
    A("v_xor_b32 %s, %s, %s" % (v(T + 3), v(T + 3), v(T + 2)))
    A("s_lshr_b32 %s, %s, 1" % (s(S_T0), s(S_WAVE)))
    A("s_lshl_b32 %s, %s, 14" % (s(S_T0), s(S_T0)))
    A("v_lshlrev_b32 %s, 7, %s" % (v(T + 4), v(T + 1)))
    A("v_add_u32 %s, %s, %s" % (v(T + 4), s(S_T0), v(T + 4)))
    for sub in range(2):
        A("v_xor_b32 %s, %d, %s" % (v(T + 5), 4 * sub, v(T + 3)))
        A("v_lshl_add_u32 %s, %s, 4, %s" % (v(V_AC + sub), v(T + 5), v(T + 4)))
    A("v_bfe_u32 %s, %s, 2, 2" % (v(T + 3), v(T)))
    A("v_and_b32 %s, 3, %s" % (v(T + 4), v(T)))
    A("v_lshlrev_b32 %s, 3, %s" % (v(T + 4), v(T + 4)))
    A("v_lshl_add_u32 %s, %s, 3, %s" % (v(T + 1), v(T + 2), v(T + 3)))
    A("v_lshlrev_b32 %s, 9, %s" % (v(T + 1), v(T + 1)))
    A("v_add_u32 %s, 0x10000, %s" % (v(T + 1), v(T + 1)))
    A("v_and_b32 %s, 1, %s" % (v(T + 2), v(T + 2)))
    A("v_lshl_add_u32 %s, %s, 2, %s" % (v(T + 3), v(T + 2), v(T + 3)))
    A("v_lshlrev_b32 %s, 5, %s" % (v(T + 3), v(T + 3)))
    A("s_and_b32 %s, %s, 1" % (s(S_T0), s(S_WAVE)))
    A("s_cmp_eq_u32 %s, 0" % s(S_BT))
    A("s_cselect_b32 %s, 64, 56" % s(S_T1))
    A("s_mul_i32 %s, %s, %s" % (s(S_T0), s(S_T0), s(S_T1)))
    A("s_lshl_b32 %s, %s, 2" % (s(S_T0), s(S_T0)))
    for j in range(8):
        A("v_add_u32 %s, %s, %s" % (v(T + 5), s(S_T0), v(T + 4)))
        if j & 1:
            A("v_add_u32 %s, 32, %s" % (v(T + 5), v(T + 5)))
        A("v_xor_b32 %s, %s, %s" % (v(T + 5), v(T + 5), v(T + 3)))
        A("v_add_u32 %s, %s, %s" % (v(V_AW + j), v(T + 5), v(T + 1)))
        if j & 1:
            A("s_add_u32 %s, %s, %s" % (s(S_T0), s(S_T0), s(S_T1)))
    A("v_lshrrev_b32 %s, 3, %s" % (v(T + 1), v(T)))
    A("s_lshl_b32 %s, %s, 6" % (s(S_T0), s(S_WAVE)))
    A("s_add_u32 %s, %s, %s" % (s(S_T0), s(S_T0), s(S_ROW0)))
    A("v_add_u32 %s, %s, %s" % (v(T + 1), s(S_T0), v(T + 1)))
    A("v_mul_lo_u32 %s, %s, %s" % (v(T + 1), v(T + 1), s(S_ASTR)))
    A("v_and_b32 %s, 7, %s" % (v(T + 2), v(T)))
    A("v_lshrrev_b32 %s, 4, %s" % (v(T + 3), v(T)))
    A("v_xor_b32 %s, %s, %s" % (v(T + 2), v(T + 2), v(T + 3)))
    A("v_xor_b32 %s, 4, %s" % (v(T + 3), v(T + 2)))
    A("v_lshlrev_b32 %s, 4, %s" % (v(T + 2), v(T + 2)))
    A("v_lshlrev_b32 %s, 4, %s" % (v(T + 3), v(T + 3)))
    A("s_lshl_b32 %s, %s, 3" % (s(S_T1), s(S_ASTR)))
    A("s_mov_b32 %s, 0" % s(S_T0))
    for m in range(8):
        A("v_add3_u32 %s, %s, %s, %s" % (v(V_VC + m), v(T + 1), v(T + 2 + (m & 1)), s(S_T0)))
        if m < 7:
            A("s_add_u32 %s, %s, %s" % (s(S_T0), s(S_T0), s(S_T1)))
            dl = (((m + 1) & 3) - (m & 3)) * 1024
            A(("s_sub_u32 %s, %s, %d" % (s(S_T0), s(S_T0), dl)) if dl > 0 else ("s_add_u32 %s, %s, %d" % (s(S_T0), s(S_T0), -dl)))
    A("v_lshrrev_b32 %s, 5, %s" % (v(T + 1), v(T)))
    A("v_and_b32 %s, 31, %s" % (v(T + 2), v(T)))
    A("v_lshlrev_b32 %s, 1, %s" % (v(T + 3), v(T + 1)))
    A("v_xor_b32 %s, %s, %s" % (v(T + 2), v(T + 2), v(T + 3)))
    A("s_lshl_b32 %s, %s, 4" % (s(S_T0), s(S_WAVE)))
    A("v_add_u32 %s, %s, %s" % (v(T + 1), s(S_T0), v(T + 1)))
    A("v_mul_lo_u32 %s, %s, %s" % (v(T + 1), v(T + 1), s(S_WSTR)))
    A("s_lshl_b32 %s, %s, 1" % (s(S_T1), s(S_WSTR)))
    A("s_mov_b32 %s, 0" % s(S_T0))
    for m in range(8):
        x = ((m & 1) << 2) ^ (((m >> 2) & 1) << 3)
        A("v_xor_b32 %s, %d, %s" % (v(T + 3), x, v(T + 2)))
        A("v_lshlrev_b32 %s, 4, %s" % (v(T + 3), v(T + 3)))
        A("v_add3_u32 %s, %s, %s, %s" % (v(V_VW + m), v(T + 1), v(T + 3), s(S_T0)))
        if m < 7:
            A("s_add_u32 %s, %s, %s" % (s(S_T0), s(S_T0), s(S_T1)))
            dl = (((m + 1) & 3) - (m & 3)) * 1024
            A(("s_sub_u32 %s, %s, %d" % (s(S_T0), s(S_T0), dl)) if dl > 0 else ("s_add_u32 %s, %s, %d" % (s(S_T0), s(S_T0), -dl)))
    A("s_lshl_b32 %s, %s, 6" % (s(S_WSTEP), s(S_WSTR)))
    A("s_lshl_b32 %s, %s, 13" % (s(S_T0), s(S_WAVE)))

def tile_prologue_dma(A):
    A("s_mov_b32 %s, 0" % s(S_SOA))
    A("s_mov_b32 %s, 0" % s(S_SOW))
    for stage in range(2):
        if stage == 1:
            A("s_mov_b32 %s, 128" % s(S_SOA))
            A("s_mov_b32 %s, %s" % (s(S_SOW), s(S_WSTEP)))
        for g in range(2):
            A("s_add_u32 m0, %s, %d" % (s(S_T0), stage * 32768 + g * 4096))
            A("s_nop 0")
            for m in range(4):
                A(dma_c(4 * g + m))
        for g in range(2):
            A("s_add_u32 m0, %s, %d" % (s(S_T0), 65536 + stage * 32768 + g * 4096))
            A("s_nop 0")
            for m in range(4):
                A(dma_w(4 * g + m))
    A("s_add_u32 %s, %s, 32768" % (s(S_M0C), s(S_T0)))
    A("s_add_u32 %s, %s, %d" % (s(S_M0W), s(S_T0), 65536 + 32768))
    A("s_mov_b32 %s, 128" % s(S_ROA))
    A("s_mov_b32 %s, %s" % (s(S_ROW), s(S_WSTEP)))
    A("s_mov_b32 %s, 1" % s(S_TN))

def epi_offsets(kind):
    if kind == 0 or kind == 4:
        return 8 * 8192, 4 * 1024, [(n >> 2) * 8192 + (n & 3) * 1024 for n in range(32)]
    if kind == 1:
        return 4 * 16384, 8 * 1024, [(n >> 3) * 16384 + (n & 7) * 1024 for n in range(32)]
    if kind == 2:
        return 8 * 1024, 4 * 131072, [(n >> 2) * 1024 + (n & 3) * 131072 for n in range(32)]
    return 4 * 2048, 4 * 131072, [(n >> 3) * 2048 + ((n & 7) >> 1) * 131072 + (n & 1) * 1024 for n in range(32)]

def epilogue(A, kind):
    E = V_E
    wms, wns, offs = epi_offsets(kind)
    A("s_lshr_b32 %s, %s, 1" % (s(S_T0), s(S_WAVE)))
    A("s_mul_i32 %s, %s, %d" % (s(S_T0), s(S_T0), wms))
    A("s_and_b32 %s, %s, 1" % (s(S_T1), s(S_WAVE)))
    A("s_mul_i32 %s, %s, %d" % (s(S_T1), s(S_T1), wns))
    A("s_add_u32 %s, %s, %s" % (s(S_T0), s(S_T0), s(S_T1)))
    A("s_add_u32 %s, %s, %s" % (s(S_T0), s(S_T0), s(S_EOUT)))
    if kind == 2:
        A("v_cmp_gt_u32 vcc, 768, %s" % v(V_L16))
        A("s_nop 1")
        A("v_cndmask_b32 %s, 0, -1, vcc" % v(V_T + 1))
    if kind == 3:
        A("v_and_b32 %s, 0xf0, %s" % (v(V_T), v(V_L16)))
        A("v_cmp_gt_u32 vcc, 192, %s" % v(V_T))
        A("s_nop 1")
        A("v_cndmask_b32 %s, 0, -1, vcc" % v(V_T + 1))
        A("v_cmp_eq_u32 vcc, 192, %s" % v(V_T))
        A("v_mov_b32 %s, 0x3f803f80" % v(V_T + 3))
        A("s_nop 0")
        A("v_cndmask_b32 %s, 0, %s, vcc" % (v(V_T + 2), v(V_T + 3)))
    cur = None
    for n in range(32):
        R = E + (n & 3) * 8
        P = E + 32 + (n & 3) * 4
        for r in range(8):
            A("v_accvgpr_read_b32 %s, %s" % (v(R + r), a(8 * n + r)))
        if kind in (2, 4):
            for r in range(8):
                A("v_mul_f32 %s, %s, %s" % (v(R + r), s(S_ESCALE), v(R + r)))
        for r in range(4):
            A("v_cvt_pk_bf16_f32 %s, %s, %s" % (v(P + r), v(R + 2 * r), v(R + 2 * r + 1)))
        if kind == 2:
            A("v_and_b32 %s, %s, %s" % (v(P + 2), v(V_T + 1), v(P + 2)))
            A("v_and_b32 %s, %s, %s" % (v(P + 3), v(V_T + 1), v(P + 3)))
        if kind == 3 and (n & 1):
            for r in range(4):
                A("v_and_or_b32 %s, %s, %s, %s" % (v(P + r), v(P + r), v(V_T + 1), v(V_T + 2)))
        o = offs[n]
        if cur is None or not (0 <= o - cur < 4096):
            A("s_add_u32 %s, %s, %d" % (s(S_T1), s(S_T0), o))
            cur = o
        A("buffer_store_dwordx4 %s, %s, %s, %s offen offset:%d" % (v(P, 4), v(V_L16), s(S_WS, 4), s(S_T1), o - cur))

def wo_transform(A):
    A("s_sub_u32 %s, s2, 176" % s(S_T0))
    A("s_lshl_b32 %s, %s, 2" % (s(S_T0), s(S_T0)))
    A("s_add_u32 %s, %s, %s" % (s(S_T0), s(S_T0), s(S_WAVE)))
    A("s_cmp_ge_u32 %s, 144" % s(S_T0))
    A("s_cbranch_scc1 L_k1_wotdone")
    A("s_cmp_ge_u32 %s, 128" % s(S_T0))
    A("s_cbranch_scc1 L_k1_wotB")
    set_srd(A, S_W, P_WO, 4096 * 448 * 2)
    A("s_mul_i32 %s, %s, %d" % (s(S_SOW), s(S_T0), 32 * 896))
    A("s_lshl_b32 %s, %s, 10" % (s(S_OUT), s(S_T0)))
    A("s_add_u32 %s, %s, %d" % (s(S_OUT), s(S_OUT), WS_WOT))
    A("s_mov_b32 %s, %d" % (s(S_T2), 131072))
    A("s_branch L_k1_wotgo")
    A.label("L_k1_wotB")
    A("s_sub_u32 %s, %s, 128" % (s(S_T0), s(S_T0)))
    set_srd(A, S_W, P_BWO, 448 * 448 * 2)
    A("s_mul_i32 %s, %s, %d" % (s(S_SOW), s(S_T0), 28 * 896))
    A("s_lshl_b32 %s, %s, 10" % (s(S_OUT), s(S_T0)))
    A("s_add_u32 %s, %s, %d" % (s(S_OUT), s(S_OUT), WS_WOBT))
    A("s_mov_b32 %s, %d" % (s(S_T2), 16384))
    A.label("L_k1_wotgo")
    A("s_mul_i32 %s, %s, 28672" % (s(S_T1), s(S_WAVE)))
    for k in range(28):
        if k % 4 == 0:
            A("s_add_u32 m0, %s, %d" % (s(S_T1), k * 1024))
            A("s_add_u32 %s, %s, %d" % (s(S_ROW), s(S_SOW), k * 1024))
        A("buffer_load_dwordx4 %s, %s, %s offen offset:%d lds" % (v(V_L16), s(S_W, 4), s(S_ROW), (k % 4) * 1024))
    T = V_T
    A("v_lshrrev_b32 %s, 4, %s" % (v(T), v(V_L16)))
    A("v_lshrrev_b32 %s, 4, %s" % (v(T + 1), v(T)))
    A("v_bfe_u32 %s, %s, 2, 2" % (v(T + 2), v(T)))
    A("v_lshl_add_u32 %s, %s, 2, %s" % (v(T + 1), v(T + 1), v(T + 2)))
    A("v_mul_u32_u24 %s, 896, %s" % (v(T + 1), v(T + 1)))
    A("v_and_b32 %s, 3, %s" % (v(T + 2), v(T)))
    A("v_lshl_add_u32 %s, %s, 3, %s" % (v(T + 1), v(T + 2), v(T + 1)))
    A("v_add_u32 %s, %s, %s" % (v(T + 1), s(S_T1), v(T + 1)))
    A("s_waitcnt vmcnt(0)")
    R = 36
    for mt in range(28):
        for t in range(2):
            A("ds_read_b64_tr_b16 %s, %s offset:%d" % (v(R + 4 * mt + 2 * t, 2), v(T + 1), t * 16 * 896 + mt * 32))
        if mt % 7 == 6:
            A("s_waitcnt lgkmcnt(0)")
    for mt in range(28):
        A("buffer_store_dwordx4 %s, %s, %s, %s offen" % (v(R + 4 * mt, 4), v(V_L16), s(S_WS, 4), s(S_OUT)))
        A("s_add_u32 %s, %s, %s" % (s(S_OUT), s(S_OUT), s(S_T2)))
    A.label("L_k1_wotdone")

def gen_k1(name, opts):
    stamps = opts.get("stamps", False)
    STAMPV[0] = 255
    A = Asm()
    A(".globl %s" % name)
    A(".p2align 8")
    A(".type %s,@function" % name)
    A.label(name)
    A("s_cmp_ge_u32 s2, 256")
    A("s_cbranch_scc1 L_k1_end")
    load_ptrs(A)
    A("v_lshrrev_b32 v1, 6, v0")
    A("s_nop 0")
    A("v_readfirstlane_b32 %s, v1" % s(S_WAVE))
    A("s_mov_b32 %s, 0x7f000000" % s(S_OOB))
    A("s_waitcnt lgkmcnt(0)")
    if stamps:
        stamp_init(A); stamp(A)
    set_srd(A, S_WS, P_WS, WS_SIZE)
    A("s_and_b32 %s, s2, 7" % s(S_T0))
    A("s_lshr_b32 %s, s2, 3" % s(S_T1))
    A("s_lshl_b32 %s, %s, 2" % (s(S_T0), s(S_T0)))
    A("s_and_b32 %s, %s, 3" % (s(S_T2), s(S_T1)))
    A("s_add_u32 %s, %s, %s" % (s(S_T0), s(S_T0), s(S_T2)))
    A("s_lshr_b32 %s, %s, 2" % (s(S_T1), s(S_T1)))
    A("s_lshl_b32 %s, %s, 8" % (s(S_ROW0), s(S_T1)))
    A("s_lshr_b32 %s, %s, 4" % (s(S_TYPE), s(S_T0)))
    A("s_and_b32 %s, %s, 15" % (s(S_T0), s(S_T0)))
    A("s_lshl_b32 %s, %s, 20" % (s(S_OUT), s(S_T0)))
    A("s_lshl_b32 %s, %s, 17" % (s(S_T1), s(S_T1)))
    A("s_add_u32 %s, %s, %s" % (s(S_OUT), s(S_OUT), s(S_T1)))
    A("s_lshl_b32 %s, %s, 24" % (s(S_T1), s(S_TYPE)))
    A("s_add_u32 %s, %s, %s" % (s(S_OUT), s(S_OUT), s(S_T1)))
    A("s_lshl_b32 %s, %s, 9" % (s(S_T0), s(S_T0)))
    set_srd(A, S_ACT, P_CKV, 2048 * 1024 * 2)
    A("s_cmp_eq_u32 %s, 0" % s(S_TYPE))
    A("s_cselect_b32 %s, %s, %s" % (s(S_T1), s(P_WUK), s(P_WUV)))
    A("s_cselect_b32 %s, %s, %s" % (s(S_T2), s(P_WUK + 1), s(P_WUV + 1)))
    A("s_add_u32 %s, %s, %s" % (s(S_W), s(S_T1), s(S_T0)))
    A("s_addc_u32 %s, %s, 0" % (s(S_W + 1), s(S_T2)))
    A("s_sub_u32 %s, %d, %s" % (s(S_W + 2), 1024 * 4096 * 2, s(S_T0)))
    A("s_mov_b32 %s, 0x20000" % s(S_W + 3))
    A("s_mov_b32 %s, 2048" % s(S_ASTR))
    A("s_mov_b32 %s, 8192" % s(S_WSTR))
    A("s_mov_b32 %s, 0" % s(S_BT))
    A("s_mov_b32 %s, 16" % s(S_T))
    A("s_mov_b32 %s, %s" % (s(S_EPI), s(S_TYPE)))
    A("s_mov_b32 %s, 0" % s(S_TILE))
    A("s_mov_b32 %s, 1.0" % s(S_SCALE))
    A("s_cmp_ge_u32 s2, 128")
    A("s_cbranch_scc1 L_k1_noflag")
    A("s_lshl_b32 %s, s2, 7" % s(S_T0))
    A("s_add_u32 %s, %s, %d" % (s(S_T0), s(S_T0), WS_FLAG))
    A("v_mov_b32 v2, 0")
    A("v_lshlrev_b32 v3, 2, v0")
    A("v_cmp_gt_u32 vcc, 32, v0")
    A("s_and_saveexec_b64 s[70:71], vcc")
    A("s_cbranch_execz L_k1_noflag2")
    A("buffer_store_dword v2, v3, %s, %s offen" % (s(S_WS, 4), s(S_T0)))
    A.label("L_k1_noflag2")
    A("s_mov_b64 exec, s[70:71]")
    A.label("L_k1_noflag")
    tile_setup(A)
    tile_prologue_dma(A)
    A("s_waitcnt vmcnt(16)")
    A.label("L_k1_tile_go")
    A("s_barrier")
    if stamps:
        stamp(A)
    A(frag_reads(0, 0))
    A("s_sub_u32 %s, %s, 1" % (s(S_CNT), s(S_T)))
    A("s_cmp_eq_u32 %s, 0" % s(S_TYPE))
    A("s_cbranch_scc0 L_k1_vtype")
    for ktype in (1, 0):
        if ktype == 0:
            A.label("L_k1_vtype")
        b0 = body(True, ktype, opts)
        b1 = body(False, ktype, opts)
        A(b0)
        A(".p2align 6")
        A.label("L_k1_loop_%d" % ktype)
        A(b1)
        A("s_sub_u32 %s, %s, 1" % (s(S_CNT), s(S_CNT)))
        A("s_cmp_lg_u32 %s, 0" % s(S_CNT))
        A("s_cbranch_scc1 L_k1_loop_%d" % ktype)
        check(frag_reads(0, 0) + b0 + b1 + b1, "k1 body %d" % ktype)
        if ktype == 1:
            A("s_branch L_k1_done")
    A.label("L_k1_done")
    if stamps:
        stamp(A)
    A("s_waitcnt vmcnt(0) lgkmcnt(0)")
    A("s_barrier")
    A("s_mov_b32 %s, %s" % (s(S_EOUT), s(S_OUT)))
    A("s_mov_b32 %s, %s" % (s(S_EEPI), s(S_EPI)))
    A("s_mov_b32 %s, %s" % (s(S_ESCALE), s(S_SCALE)))
    A("s_mov_b32 %s, 0" % s(S_HASN))
    A("s_cmp_lg_u32 %s, 0" % s(S_TILE))
    A("s_cbranch_scc1 L_k1_epi")
    A("s_cmp_ge_u32 s2, 176")
    A("s_cbranch_scc1 L_k1_epi")
    A("s_mov_b32 %s, 1" % s(S_HASN))
    A("s_cmp_ge_u32 s2, 128")
    A("s_cbranch_scc1 L_k1_setB")
    A("s_and_b32 %s, s2, 7" % s(S_T0))
    A("s_lshr_b32 %s, s2, 3" % s(S_T1))
    A("s_lshl_b32 %s, %s, 1" % (s(S_T0), s(S_T0)))
    A("s_and_b32 %s, %s, 1" % (s(S_T2), s(S_T1)))
    A("s_add_u32 %s, %s, %s" % (s(S_T0), s(S_T0), s(S_T2)))
    A("s_lshr_b32 %s, %s, 1" % (s(S_T1), s(S_T1)))
    A("s_lshl_b32 %s, %s, 8" % (s(S_ROW0), s(S_T1)))
    A("s_mov_b32 %s, 0" % s(S_TYPE))
    A("s_lshl_b32 %s, %s, 20" % (s(S_OUT), s(S_T0)))
    A("s_lshl_b32 %s, %s, 17" % (s(S_T1), s(S_T1)))
    A("s_add_u32 %s, %s, %s" % (s(S_OUT), s(S_OUT), s(S_T1)))
    A("s_add_u32 %s, %s, %d" % (s(S_OUT), s(S_OUT), WS_Q))
    A("s_lshl_b32 %s, %s, 9" % (s(S_T0), s(S_T0)))
    set_srd(A, S_ACT, P_AX, 2048 * 448 * 2)
    set_srd(A, S_W, P_WQ, 448 * 4096 * 2, S_T0)
    A("s_mov_b32 %s, 8192" % s(S_WSTR))
    A("s_mov_b32 %s, 0" % s(S_BT))
    A("s_mov_b32 %s, 4" % s(S_EPI))
    A("s_mov_b32 %s, 0x%08x" % (s(S_SCALE), f32bits(1.4426950408889634 / 16.0)))
    A("s_branch L_k1_setdone")
    A.label("L_k1_setB")
    A("s_sub_u32 %s, s2, 128" % s(S_T0))
    A("s_and_b32 %s, %s, 7" % (s(S_T1), s(S_T0)))
    A("s_lshr_b32 %s, %s, 3" % (s(S_T0), s(S_T0)))
    A("s_lshl_b32 %s, %s, 8" % (s(S_ROW0), s(S_T1)))
    A("s_lshr_b32 %s, %s, 2" % (s(S_TYPE), s(S_T0)))
    A("s_lshr_b32 %s, %s, 1" % (s(S_T2), s(S_T0)))
    A("s_lshl_b32 %s, %s, 21" % (s(S_OUT), s(S_T2)))
    A("s_and_b32 %s, %s, 1" % (s(S_T2), s(S_T0)))
    A("s_lshl_b32 %s, %s, 20" % (s(S_T2), s(S_T2)))
    A("s_add_u32 %s, %s, %s" % (s(S_OUT), s(S_OUT), s(S_T2)))
    A("s_lshl_b32 %s, %s, 14" % (s(S_T1), s(S_T1)))
    A("s_add_u32 %s, %s, %s" % (s(S_OUT), s(S_OUT), s(S_T1)))
    A("s_add_u32 %s, %s, %d" % (s(S_OUT), s(S_OUT), WS_BQ))
    A("s_cmp_lt_u32 %s, 2" % s(S_T0))
    A("s_cselect_b32 %s, 0x%08x, 1.0" % (s(S_SCALE), f32bits(1.4426950408889634 / 28.0 ** 0.5)))
    A("s_mul_i32 %s, %s, 448" % (s(S_T0), s(S_T0)))
    set_srd(A, S_ACT, P_BX, 2048 * 448 * 2)
    set_srd(A, S_W, P_BWQKV, 448 * 1344 * 2, S_T0)
    A("s_mov_b32 %s, 2688" % s(S_WSTR))
    A("s_mov_b32 %s, 1" % s(S_BT))
    A("s_add_u32 %s, %s, 2" % (s(S_EPI), s(S_TYPE)))
    A.label("L_k1_setdone")
    A("s_mov_b32 %s, 896" % s(S_ASTR))
    A("s_mov_b32 %s, 7" % s(S_T))
    A("s_mov_b32 %s, 1" % s(S_TILE))
    tile_setup(A)
    tile_prologue_dma(A)
    A.label("L_k1_epi")
    for kind in (1, 2, 3, 4):
        A("s_cmp_eq_u32 %s, %d" % (s(S_EEPI), kind))
        A("s_cbranch_scc1 L_k1_epi%d" % kind)
    for kind in range(5):
        if kind:
            A.label("L_k1_epi%d" % kind)
        E = Asm()
        epilogue(E, kind)
        check(E.L, "k1 epi %d" % kind)
        A(E.L)
        if kind < 4:
            A("s_branch L_k1_epidone")
    A.label("L_k1_epidone")
    if stamps:
        stamp(A)
    A("s_cmp_eq_u32 %s, 0" % s(S_HASN))
    A("s_cbranch_scc1 L_k1_fin")
    A("s_waitcnt vmcnt(48)")
    A("s_branch L_k1_tile_go")
    A.label("L_k1_fin")
    A("s_cmp_lt_u32 s2, 176")
    A("s_cbranch_scc1 L_k1_fin2")
    X = Asm(); wo_transform(X); check(X.L, "k1 wot"); A(X.L)
    A.label("L_k1_fin2")
    if stamps:
        A("s_waitcnt vmcnt(0)")
        stamp(A)
        stamp_flush(A, S_WS, S_WAVE, 0, "L_k1_stf")
    A.label("L_k1_end")
    A("s_endpgm")
    return A
```

```python
from common import *

LDS_BYTES = 131072
S_K = 4; S_V = 8; S_WS = 12
S_WAVE = 16; S_HEAD = 17; S_ROLE = 18; S_PAIR = 19
S_SRC = [20, 21]
S_E1 = 22; S_S2 = 23; S_E2 = 24
S_DM0 = [25, 26]
S_TABS = 27
S_DIAG = 28
S_TEND = 29
S_QB = 30; S_SEG = 31
S_T0 = 56; S_T1 = 57; S_T2 = 58; S_T3 = 59
S_QB2 = 60; S_N2 = 61; S_OOB = 62; S_D = 63; S_PART = 64; S_ENDACT = 65; S_QROW = 66; S_SPIN = 67
S_RET = 68

V_L16 = 1
V_KA = [2, 3]; V_VA = 4; V_B = 5; V_DMA = 6; V_U = [7, 8]
V_T = 9
V_S = [16, 32]
V_P = 48
V_CI = 56
V_L = 64
V_ONE = 72
V_X = 76
V_O = 128
A_Q = [0, 64]
A_R = 128

def Sreg(p, kt, qt, r=None):
    b = V_S[p] + (kt * 2 + qt) * 4
    return v(b, 4) if r is None else v(b + r)
def Oreg(dt, qt):
    return V_O + (dt * 2 + qt) * 4
def Qf(qt, f, qset=0):
    return a(A_Q[qset] + (qt * 8 + f) * 4, 4)
def ring(n):
    return a(A_R + (n % 16) * 4, 4)

def kread(n, areg):
    f, kt = n >> 1, n & 1
    return "ds_read_b128 %s, %s offset:%d" % (ring(n), v(areg), (kt * 8 + f) * 1024)
def vread(n, areg):
    return "ds_read_b128 %s, %s offset:%d" % (ring(n), v(areg), n * 1024)

def dma_k(p, m):
    return "buffer_load_dwordx4 %s, %s, %s offen offset:%d lds" % (v(V_DMA), s(S_K, 4), s(S_SRC[p]), m * 1024)
def dma_v(p, m):
    return "buffer_load_dwordx4 %s, %s, %s offen offset:%d lds" % (v(V_DMA), s(S_V, 4), s(S_SRC[p]), m * 1024)

def next_src(dst, src):
    return ["s_add_u32 %s, %s, 16384" % (s(dst), s(src)),
            "s_cmp_eq_u32 %s, %s" % (s(dst), s(S_E1)),
            "s_cselect_b32 %s, %s, %s" % (s(dst), s(S_S2), s(dst)),
            "s_cmp_eq_u32 %s, %s" % (s(dst), s(S_E2)),
            "s_cselect_b32 %s, %s, %s" % (s(dst), s(S_OOB), s(dst))]

def qk_mfmas(p, first):
    out = []
    for n in range(16):
        f, kt = n >> 1, n & 1
        for qt in range(2):
            C = ("0" if first else v(V_CI + qt * 4, 4)) if f == 0 else Sreg(p, kt, qt)
            out.append(mf16(Sreg(p, kt, qt), ring(n), Qf(qt, f), C))
    return out

def exp_list(p):
    ex = []; cv = []
    for qt in range(2):
        for kt in range(2):
            for r in range(4):
                ex.append("v_exp_f32 %s, %s" % (Sreg(p, kt, qt, r), Sreg(p, kt, qt, r)))
            for h in range(2):
                cv.append("v_cvt_pk_bf16_f32 %s, %s, %s" % (v(V_P + qt * 4 + kt * 2 + h), Sreg(p, kt, qt, 2 * h), Sreg(p, kt, qt, 2 * h + 1)))
    return ex, cv

def max_tree(p):
    x = [Sreg(p, kt, qt, r) for qt in range(2) for kt in range(2) for r in range(4)]
    T = V_T
    o = ["v_max3_f32 %s, %s, %s, %s" % (v(T), x[0], x[1], x[2]),
         "v_max3_f32 %s, %s, %s, %s" % (v(T + 1), x[3], x[4], x[5]),
         "v_max3_f32 %s, %s, %s, %s" % (v(T + 2), x[6], x[7], x[8]),
         "v_max3_f32 %s, %s, %s, %s" % (v(T), v(T), x[9], x[10]),
         "v_max3_f32 %s, %s, %s, %s" % (v(T + 1), v(T + 1), x[11], x[12]),
         "v_max3_f32 %s, %s, %s, %s" % (v(T + 2), v(T + 2), x[13], x[14]),
         "v_max3_f32 %s, %s, %s, %s" % (v(T), v(T), v(T + 1), x[15]),
         "v_max_f32 %s, %s, %s" % (v(T), v(T), v(T + 2)),
         "v_cmp_lt_f32 vcc, 0x41c00000, %s" % v(T)]
    return o

def body(p, final, opts):
    q = p ^ 1
    out = []
    tag = "f" if final else str(p)
    out += ["s_waitcnt vmcnt(12)", "s_barrier"]
    pre = ["s_add_u32 %s, %s, 16384" % (s(S_DM0[p]), s(S_DM0[q])),
           "s_and_b32 %s, %s, 0xffff" % (s(S_DM0[p]), s(S_DM0[p])),
           "v_add_u32 %s, %s, %s" % (v(V_VA), s(S_DM0[p]), v(V_B)),
           "v_xor_b32 %s, 0x18000, %s" % (v(V_KA[p]), v(V_VA))]
    ex, cv = exp_list(p)
    nA = 32
    gA = [[] for _ in range(nA)]
    if not final:
        mA = qk_mfmas(q, False)
    else:
        mA = None
    def rd(n):
        if n < 16:
            return None if final else kread(n, V_KA[q])
        if n < 32:
            return vread(n - 16, V_VA)
        return None if final else kread(n - 32, V_KA[p])
    if not final:
        out += pre[0:2]
        gA[0] += [pre[2]]
        for n in range(16):
            x = rd(n + 12)
            if n == 4:
                pass
            gA[2 * n].append(x)
        gA[1] += [pre[3]]
        for k in range(16):
            gA[2 * k + 1].append(ex[k])
        for k in range(7):
            gA[4 * k + 4].append(cv[k])
        seq = []
        for m in range(32):
            if m % 8 == 0:
                seq.append("s_waitcnt lgkmcnt(8)")
            seq.append(mA[m]); seq += gA[m]
        out += seq
        tailcv = [cv[7]]
    else:
        out += ["s_waitcnt lgkmcnt(0)"]
        out += pre[0:3]
        for n in range(4, 16):
            out.append(rd(n + 12))
        for k in range(16):
            out.append(ex[k])
            if k & 1:
                if k >= 3:
                    out.append(cv[(k >> 1) - 1])
        out.append("s_nop 0")
        tailcv = [cv[7]]
    mB = []
    fr = []
    for dt in range(16):
        for qt in range(2):
            mB.append(mf16(v(Oreg(dt, qt), 4), ring(dt), v(V_P + qt * 4, 4), v(Oreg(dt, qt), 4))); fr.append((dt, qt))
            if dt == 0:
                mB.append(mf16(v(V_L + qt * 4, 4), v(V_ONE, 4), v(V_P + qt * 4, 4), v(V_L + qt * 4, 4))); fr.append(None)
    nB = len(mB)
    gB = [[] for _ in range(nB)]
    ns = next_src(S_SRC[p], S_SRC[q])
    gB[0] += tailcv
    first_of = {}
    for m, x in enumerate(fr):
        if x is not None and x[1] == 0:
            first_of[x[0]] = m
    for dt in range(16):
        x = rd(16 + dt + 12)
        if x is not None:
            gB[first_of[dt]].append(x)
    dm = [["s_mov_b32 m0, %s" % s(S_DM0[p])], [dma_k(p, 0)], [dma_k(p, 1)], [dma_k(p, 2)], [dma_k(p, 3)],
          ["s_add_u32 m0, %s, 0x10000" % s(S_DM0[q])], [dma_v(q, 0)], [dma_v(q, 1)], [dma_v(q, 2)], [dma_v(q, 3)]]
    free = [m for m in range(nB) if m not in first_of.values()]
    place = {}
    if not final:
        mt = max_tree(q)
        gB[3] += [ns[4], "s_cmp_ge_u32 %s, %s" % (s(S_TABS), s(S_DIAG))]
        gB[5] += ["s_cbranch_scc1 L_k2_mask%d" % p, "L_k2_maskret%d:" % p]
        pos = [7, 7, 9, 9, 11, 11, 13, 13, 15]
        for x, g in zip(mt, pos):
            gB[g].append(x)
    gB[1] += ns[0:2]
    gB[2] += ns[2:3]
    gB[2] += ns[3:4]
    if final:
        gB[3] += ns[4:5]
    pos = [16, 17, 19, 21, 23, 24, 25, 27, 29, 31]
    for x, g in zip(dm, pos):
        gB[g] += x
    gB[32] += ["s_add_u32 %s, %s, 1" % (s(S_TABS), s(S_TABS))]
    seq = []
    for m in range(nB):
        if fr[m] is not None and fr[m][1] == 0 and fr[m][0] % 4 == 0:
            if final:
                k = {0: 8, 4: 8, 8: 4, 12: 0}[fr[m][0]]
                k = {0: 8, 4: 8, 8: 4, 12: 0}[fr[m][0]]
            else:
                k = 8
            seq.append("s_waitcnt lgkmcnt(%d)" % k)
        seq.append(mB[m]); seq += gB[m]
    out += seq
    if not final:
        out += ["s_cbranch_vccnz L_k2_resc%d" % p, "L_k2_rescret%d:" % p]
    if not final:
        def drop(pred):
            return [x for x in out if not pred(x)]
        if opts.get("k2noexp"): out = drop(lambda x: x.startswith("v_exp"))
        if opts.get("k2nocvt"): out = drop(lambda x: x.startswith("v_cvt"))
        if opts.get("k2nodma"): out = drop(lambda x: " lds" in x)
        if opts.get("k2nobar"): out = drop(lambda x: x.startswith("s_barrier"))
        if opts.get("k2noreads"): out = drop(lambda x: x.startswith("ds_read") or "lgkmcnt" in x)
        if opts.get("k2nomax"): out = drop(lambda x: x.startswith("v_max") or x.startswith("v_cmp") or x.startswith("s_cbranch_vccnz"))
        if opts.get("k2nosalu"): out = drop(lambda x: x.startswith("s_cselect") or x.startswith("s_cmp_eq"))
    return out

def mask_block(p_s, ret, lbl):
    o = [lbl + ":"]
    o += ["s_lshl_b32 %s, %s, 5" % (s(S_D), s(S_TABS)),
          "s_sub_u32 %s, %s, %s" % (s(S_D), s(S_QROW), s(S_D)),
          "v_add_u32 %s, %s, %s" % (v(V_X), s(S_D), v(V_U[0])),
          "v_add_u32 %s, %s, %s" % (v(V_X + 1), s(S_D), v(V_U[1])),
          "v_mov_b32 %s, 0xff800000" % v(V_X + 2),
          "s_nop 4"]
    for qt in range(2):
        for kt in range(2):
            for r in range(4):
                o += ["v_cmp_gt_i32 vcc, %d, %s" % (16 * kt + r, v(V_X + qt)),
                      "s_nop 1",
                      "v_cndmask_b32 %s, %s, %s, vcc" % (Sreg(p_s, kt, qt, r), Sreg(p_s, kt, qt, r), v(V_X + 2))]
    o += ["s_nop 0", "s_branch %s" % ret]
    return o

def rowmax(qt, p_s, dst, tmp):
    x = [Sreg(p_s, kt, qt, r) for kt in range(2) for r in range(4)]
    return ["v_max3_f32 %s, %s, %s, %s" % (v(dst), x[0], x[1], x[2]),
            "v_max3_f32 %s, %s, %s, %s" % (v(tmp), x[3], x[4], x[5]),
            "v_max3_f32 %s, %s, %s, %s" % (v(dst), v(dst), x[6], x[7]),
            "v_max_f32 %s, %s, %s" % (v(dst), v(dst), v(tmp)),
            "v_mov_b32 %s, %s" % (v(tmp), v(dst)),
            "s_nop 1",
            "v_permlane32_swap_b32 %s, %s" % (v(dst), v(tmp)),
            "s_nop 1",
            "v_max_f32 %s, %s, %s" % (v(dst), v(dst), v(tmp)),
            "v_mov_b32 %s, %s" % (v(tmp), v(dst)),
            "s_nop 1",
            "v_permlane16_swap_b32 %s, %s" % (v(dst), v(tmp)),
            "s_nop 1",
            "v_max_f32 %s, %s, %s" % (v(dst), v(dst), v(tmp))]

def resc_block(p_s, ret, lbl):
    o = [lbl + ":", "s_nop 7", "s_nop 1"]
    X = V_X
    for qt in range(2):
        o += rowmax(qt, p_s, X, X + 1)
        o += ["v_max_f32 %s, 0, %s" % (v(X), v(X)),
              "v_exp_f32 %s, -%s" % (v(X + 2), v(X))]
        for kt in range(2):
            for r in range(4):
                o += ["v_sub_f32 %s, %s, %s" % (Sreg(p_s, kt, qt, r), Sreg(p_s, kt, qt, r), v(X))]
        for r in range(4):
            o += ["v_sub_f32 %s, %s, %s" % (v(V_CI + qt * 4 + r), v(V_CI + qt * 4 + r), v(X))]
        for r in range(4):
            o += ["v_mul_f32 %s, %s, %s" % (v(V_L + qt * 4 + r), v(V_L + qt * 4 + r), v(X + 2))]
        for dt in range(16):
            for r in range(4):
                o += ["v_mul_f32 %s, %s, %s" % (v(Oreg(dt, qt) + r), v(Oreg(dt, qt) + r), v(X + 2))]
    o += ["s_nop 1", "s_branch %s" % ret]
    return o

def seg_prologue(A):
    for n in range(16):
        A(kread(n, V_KA[0]))
    for r in range(128):
        A("v_mov_b32 %s, 0" % v(V_O + r))
    for r in range(8):
        A("v_mov_b32 %s, 0" % v(V_L + r))
    A("s_waitcnt lgkmcnt(0)")
    A(qk_mfmas(0, True))
    for n in range(12):
        A(kread(n, V_KA[1]))
    A("s_nop 7")
    A("s_cmp_ge_u32 %s, %s" % (s(S_TABS), s(S_DIAG)))
    A("s_cbranch_scc1 L_k2_maskP")
    A.label("L_k2_maskPret")
    X = V_X
    for qt in range(2):
        A(rowmax(qt, 0, X, X + 1))
        for kt in range(2):
            for r in range(4):
                A("v_sub_f32 %s, %s, %s" % (Sreg(0, kt, qt, r), Sreg(0, kt, qt, r), v(X)))
        for r in range(4):
            A("v_sub_f32 %s, 0, %s" % (v(V_CI + qt * 4 + r), v(X)))
    A("s_add_u32 %s, %s, 1" % (s(S_TABS), s(S_TABS)))

def load_q(A, qset, qb_sgpr):
    A("s_lshl_b32 %s, %s, 3" % (s(S_T0), s(qb_sgpr)))
    A("s_lshl_b32 %s, %s, 1" % (s(S_T1), s(S_WAVE)))
    A("s_add_u32 %s, %s, %s" % (s(S_T0), s(S_T0), s(S_T1)))
    A("s_lshl_b32 %s, %s, 13" % (s(S_T0), s(S_T0)))
    A("s_lshl_b32 %s, %s, 20" % (s(S_T1), s(S_HEAD)))
    A("s_add_u32 %s, %s, %s" % (s(S_T0), s(S_T0), s(S_T1)))
    A("s_add_u32 %s, %s, %d" % (s(S_T0), s(S_T0), WS_Q))
    for k in range(16):
        if k % 4 == 0 and k:
            A("s_add_u32 %s, %s, 4096" % (s(S_T0), s(S_T0)))
        A("buffer_load_dwordx4 %s, %s, %s, %s offen offset:%d" % (a(A_Q[qset] + 4 * k, 4), v(V_L16), s(S_WS, 4), s(S_T0), (k % 4) * 1024))

def ctx_base(A, dst):
    A("s_lshl_b32 %s, %s, 3" % (s(dst), s(S_QB)))
    A("s_lshl_b32 %s, %s, 1" % (s(S_T1), s(S_WAVE)))
    A("s_add_u32 %s, %s, %s" % (s(dst), s(dst), s(S_T1)))
    A("s_lshl_b32 %s, %s, 4" % (s(dst), s(dst)))
    A("s_add_u32 %s, %s, %s" % (s(dst), s(dst), s(S_HEAD)))
    A("s_lshl_b32 %s, %s, 13" % (s(dst), s(dst)))
    A("s_add_u32 %s, %s, %d" % (s(dst), s(dst), WS_CTX))

def epi_final(A, merge):
    X = V_X
    AP = [64, 192]
    def areg(unit, r):
        return a((64 + unit * 4 + r) if unit < 16 else (192 + (unit - 16) * 4 + r))
    ctx_base(A, S_T0)
    sc = [X + 4, X + 5]; sc2 = [X + 6, X + 7]
    for qt in range(2):
        if not merge:
            A("v_rcp_f32 %s, %s" % (v(sc[qt]), v(V_L + qt * 4)))
        else:
            m2 = X + 8 + qt; l2 = X + 10 + qt
            A("v_sub_f32 %s, 0, %s" % (v(X), v(V_CI + qt * 4)))
            A("v_max_f32 %s, %s, %s" % (v(X + 1), v(X), v(m2)))
            A("v_sub_f32 %s, %s, %s" % (v(X), v(X), v(X + 1)))
            A("v_sub_f32 %s, %s, %s" % (v(X + 2), v(m2), v(X + 1)))
            A("v_exp_f32 %s, %s" % (v(X), v(X)))
            A("v_exp_f32 %s, %s" % (v(X + 2), v(X + 2)))
            A("s_nop 0")
            A("v_mul_f32 %s, %s, %s" % (v(X + 1), v(X), v(V_L + qt * 4)))
            A("v_fmac_f32 %s, %s, %s" % (v(X + 1), v(X + 2), v(l2)))
            A("v_rcp_f32 %s, %s" % (v(X + 1), v(X + 1)))
            A("s_nop 0")
            A("v_mul_f32 %s, %s, %s" % (v(sc[qt]), v(X), v(X + 1)))
            A("v_mul_f32 %s, %s, %s" % (v(sc2[qt]), v(X + 2), v(X + 1)))
    A("s_nop 0")
    R = X + 12
    k = 0
    for qt in range(2):
        for f in range(8):
            t = R + (k & 1) * 12
            for h in range(2):
                dt = 2 * f + h
                for r in range(4):
                    o = Oreg(dt, qt) + r
                    if not merge:
                        A("v_mul_f32 %s, %s, %s" % (v(t + h * 4 + r), v(o), v(sc[qt])))
                    else:
                        A("v_accvgpr_read_b32 %s, %s" % (v(t + h * 4 + r), areg(dt * 2 + qt, r)))
                        A("v_mul_f32 %s, %s, %s" % (v(o), v(o), v(sc[qt])))
                        A("v_fma_f32 %s, %s, %s, %s" % (v(t + h * 4 + r), v(t + h * 4 + r), v(sc2[qt]), v(o)))
            for r in range(4):
                A("v_cvt_pk_bf16_f32 %s, %s, %s" % (v(t + 8 + r), v(t + 2 * r), v(t + 2 * r + 1)))
            if f % 4 == 0:
                A("s_add_u32 %s, %s, %d" % (s(S_T1), s(S_T0), qt * 131072 + f * 1024))
            A("buffer_store_dwordx4 %s, %s, %s, %s offen offset:%d" % (v(t + 8, 4), v(V_L16), s(S_WS, 4), s(S_T1), (f % 4) * 1024))
            k += 1

def part_base(A, dst):
    A("s_lshl_b32 %s, %s, 3" % (s(dst), s(S_HEAD)))
    A("s_add_u32 %s, %s, %s" % (s(dst), s(dst), s(S_PAIR)))
    A("s_mul_i32 %s, %s, %d" % (s(dst), s(dst), 135168))
    A("s_mul_i32 %s, %s, %d" % (s(S_T1), s(S_WAVE), 33792))
    A("s_add_u32 %s, %s, %s" % (s(dst), s(dst), s(S_T1)))
    A("s_add_u32 %s, %s, %d" % (s(dst), s(dst), WS_PART))

def flag_off(A, dst):
    A("s_lshl_b32 %s, %s, 3" % (s(dst), s(S_HEAD)))
    A("s_add_u32 %s, %s, %s" % (s(dst), s(dst), s(S_PAIR)))
    A("s_lshl_b32 %s, %s, 7" % (s(dst), s(dst)))
    A("s_add_u32 %s, %s, %d" % (s(dst), s(dst), WS_FLAG))

def epi_publish(A):
    X = V_X
    part_base(A, S_T0)
    for qt in range(2):
        A("v_sub_f32 %s, 0, %s" % (v(X + qt), v(V_CI + qt * 4)))
        A("v_mov_b32 %s, %s" % (v(X + 2 + qt), v(V_L + qt * 4)))
    for u in range(32):
        if u % 4 == 0:
            A("s_add_u32 %s, %s, %d" % (s(S_T1), s(S_T0), u * 1024))
        A("buffer_store_dwordx4 %s, %s, %s, %s offen offset:%d sc0 sc1" % (v(V_O + 4 * u, 4), v(V_L16), s(S_WS, 4), s(S_T1), (u % 4) * 1024))
    A("s_add_u32 %s, %s, %d" % (s(S_T1), s(S_T0), 32768))
    A("buffer_store_dwordx4 %s, %s, %s, %s offen sc0 sc1" % (v(X, 4), v(V_L16), s(S_WS, 4), s(S_T1)))
    A("s_waitcnt vmcnt(0)")
    A("s_barrier")
    A("s_cmp_lg_u32 %s, 0" % s(S_WAVE))
    A("s_cbranch_scc1 L_k2_pubdone")
    flag_off(A, S_T0)
    A("v_mov_b32 %s, 0" % v(X))
    A("v_mov_b32 %s, 0x600df1a6" % v(X + 1))
    A("s_mov_b64 exec, 1")
    A("buffer_store_dword %s, %s, %s, %s offen sc0 sc1" % (v(X + 1), v(X), s(S_WS, 4), s(S_T0)))
    A("s_mov_b64 exec, -1")
    A.label("L_k2_pubdone")

def epi_merge_load(A):
    X = V_X
    flag_off(A, S_T0)
    A("v_mov_b32 %s, 0" % v(X))
    A("s_mov_b32 %s, 0" % s(S_SPIN))
    A("s_cmp_lg_u32 %s, 0" % s(S_WAVE))
    A("s_cbranch_scc1 L_k2_polled")
    A.label("L_k2_poll")
    A("buffer_load_dword %s, %s, %s, %s offen sc0 sc1" % (v(X + 1), v(X), s(S_WS, 4), s(S_T0)))
    A("s_waitcnt vmcnt(0)")
    A("v_readfirstlane_b32 %s, %s" % (s(S_T1), v(X + 1)))
    A("s_add_u32 %s, %s, 1" % (s(S_SPIN), s(S_SPIN)))
    A("s_cmp_eq_u32 %s, 0x600df1a6" % s(S_T1))
    A("s_cbranch_scc1 L_k2_polled")
    A("s_sleep 2")
    A("s_cmp_lt_u32 %s, 200000" % s(S_SPIN))
    A("s_cbranch_scc1 L_k2_poll")
    A.label("L_k2_polled")
    A("s_barrier")
    part_base(A, S_T0)
    for u in range(32):
        if u % 4 == 0:
            A("s_add_u32 %s, %s, %d" % (s(S_T1), s(S_T0), u * 1024))
        dst = (64 + u * 4) if u < 16 else (192 + (u - 16) * 4)
        A("buffer_load_dwordx4 %s, %s, %s, %s offen offset:%d sc0 sc1" % (a(dst, 4), v(V_L16), s(S_WS, 4), s(S_T1), (u % 4) * 1024))
    A("s_add_u32 %s, %s, %d" % (s(S_T1), s(S_T0), 32768))
    A("buffer_load_dwordx4 %s, %s, %s, %s offen sc0 sc1" % (v(X + 8, 4), v(V_L16), s(S_WS, 4), s(S_T1)))
    A("s_waitcnt vmcnt(0)")

def b2(A):
    HB = S_T0; TQ = S_T1; TB = S_T2; TC = S_T3
    A("s_and_b32 %s, s2, 15" % s(S_HEAD))
    A("s_lshr_b32 %s, s2, 4" % s(S_QB))
    A("s_lshl_b32 %s, %s, 2" % (s(TQ), s(S_QB)))
    A("s_add_u32 %s, %s, %s" % (s(TQ), s(TQ), s(S_WAVE)))
    A("s_lshl_b32 %s, %s, 17" % (s(HB), s(S_HEAD)))
    A("s_lshl_b32 %s, %s, 11" % (s(TB), s(TQ)))
    A("s_add_u32 %s, %s, %s" % (s(TB), s(TB), s(HB)))
    A("s_add_u32 %s, %s, %d" % (s(TC), s(TB), WS_BQ))
    for qt in range(2):
        A("buffer_load_dwordx4 %s, %s, %s, %s offen offset:%d" % (a(4 * qt, 4), v(V_L16), s(S_WS, 4), s(TC), qt * 1024))
    for tt in range(9):
        A("s_sub_u32 %s, %s, %d" % (s(S_D), s(TB), (8 - tt) * 2048))
        A("s_cmp_ge_u32 %s, %d" % (s(TQ), 8 - tt))
        A("s_cselect_b32 %s, %s, %s" % (s(S_D), s(S_D), s(S_OOB)))
        A("s_add_u32 %s, %s, %d" % (s(TC), s(S_D), WS_BK))
        for kt in range(2):
            A("buffer_load_dwordx4 %s, %s, %s, %s offen offset:%d" % (a(8 + (tt * 2 + kt) * 4, 4), v(V_L16), s(S_WS, 4), s(TC), kt * 1024))
        A("s_add_u32 %s, %s, %d" % (s(TC), s(S_D), WS_BV))
        for dt in range(2):
            A("buffer_load_dwordx4 %s, %s, %s, %s offen offset:%d" % (a(80 + (tt * 2 + dt) * 4, 4), v(V_L16), s(S_WS, 4), s(TC), dt * 1024))
    def S(tt, kt, qt, r=None):
        idx = (tt * 4 + kt * 2 + qt) * 4
        b = 128 + idx if idx < 128 else 84 + (idx - 128)
        return v(b, 4) if r is None else v(b + r)
    X = V_X
    A("v_mov_b32 %s, 0xff800000" % v(X))
    A("s_waitcnt vmcnt(0)")
    for tt in range(9):
        for kt in range(2):
            for qt in range(2):
                A(mf16(S(tt, kt, qt), a(8 + (tt * 2 + kt) * 4, 4), a(4 * qt, 4), "0"))
    A("s_nop 7")
    for qt in range(2):
        for kt in range(2):
            for r in range(4):
                A("v_cmp_gt_i32 vcc, %d, %s" % (16 * kt + r, v(V_U[qt])))
                A("s_nop 1")
                A("v_cndmask_b32 %s, %s, %s, vcc" % (S(8, kt, qt, r), S(8, kt, qt, r), v(X)))
                A("v_cndmask_b32 %s, %s, %s, vcc" % (S(0, kt, qt, r), v(X), S(0, kt, qt, r)))
    for tt in range(8):
        A("s_cmp_ge_u32 %s, %d" % (s(TQ), 8 - tt))
        A("s_cbranch_scc1 L_b2_ok%d" % tt)
        for kt in range(2):
            for qt in range(2):
                for r in range(4):
                    A("v_mov_b32 %s, %s" % (S(tt, kt, qt, r), v(X)))
        A.label("L_b2_ok%d" % tt)
    P = 100
    O = 116
    O = 16; L = 32
    M = [X + 2, X + 3]
    for qt in range(2):
        xs = [S(tt, kt, qt, r) for tt in range(9) for kt in range(2) for r in range(4)]
        A("v_max3_f32 %s, %s, %s, %s" % (v(X + 4), xs[0], xs[1], xs[2]))
        A("v_max3_f32 %s, %s, %s, %s" % (v(X + 5), xs[3], xs[4], xs[5]))
        k = 6; alt = 0
        while k + 1 < len(xs):
            A("v_max3_f32 %s, %s, %s, %s" % (v(X + 4 + alt), v(X + 4 + alt), xs[k], xs[k + 1]))
            k += 2; alt ^= 1
        A("v_max_f32 %s, %s, %s" % (v(M[qt]), v(X + 4), v(X + 5)))
        A("v_mov_b32 %s, %s" % (v(X + 4), v(M[qt])))
        A("s_nop 1")
        A("v_permlane32_swap_b32 %s, %s" % (v(M[qt]), v(X + 4)))
        A("s_nop 1")
        A("v_max_f32 %s, %s, %s" % (v(M[qt]), v(M[qt]), v(X + 4)))
        A("v_mov_b32 %s, %s" % (v(X + 4), v(M[qt])))
        A("s_nop 1")
        A("v_permlane16_swap_b32 %s, %s" % (v(M[qt]), v(X + 4)))
        A("s_nop 1")
        A("v_max_f32 %s, %s, %s" % (v(M[qt]), v(M[qt]), v(X + 4)))
    for tt in range(9):
        pb = P + (tt & 1) * 8
        for qt in range(2):
            for kt in range(2):
                for r in range(4):
                    A("v_sub_f32 %s, %s, %s" % (S(tt, kt, qt, r), S(tt, kt, qt, r), v(M[qt])))
                for r in range(4):
                    A("v_exp_f32 %s, %s" % (S(tt, kt, qt, r), S(tt, kt, qt, r)))
        for qt in range(2):
            for kt in range(2):
                for h in range(2):
                    A("v_cvt_pk_bf16_f32 %s, %s, %s" % (v(pb + qt * 4 + kt * 2 + h), S(tt, kt, qt, 2 * h), S(tt, kt, qt, 2 * h + 1)))
        A("s_nop 1")
        for qt in range(2):
            for dt in range(2):
                o = v(O + (dt * 2 + qt) * 4, 4)
                A(mf16(o, a(80 + (tt * 2 + dt) * 4, 4), v(pb + qt * 4, 4), "0" if tt == 0 else o))
            l = v(L + qt * 4, 4)
            A(mf16(l, v(V_ONE, 4), v(pb + qt * 4, 4), "0" if tt == 0 else l))
    A("s_nop 7")
    A("v_cmp_gt_u32 vcc, 768, %s" % v(V_L16))
    A("s_lshl_b32 %s, %s, 1" % (s(TC), s(TQ)))
    A("s_lshl_b32 %s, %s, 4" % (s(TC), s(TC)))
    A("s_add_u32 %s, %s, %s" % (s(TC), s(TC), s(S_HEAD)))
    A("s_lshl_b32 %s, %s, 10" % (s(TC), s(TC)))
    A("s_add_u32 %s, %s, %d" % (s(TC), s(TC), WS_CTXB))
    for qt in range(2):
        A("v_rcp_f32 %s, %s" % (v(X + 4), v(L + qt * 4)))
        A("s_nop 0")
        A("v_cndmask_b32 %s, 0, %s, vcc" % (v(X + 5), v(X + 4)))
        for dt in range(2):
            for r in range(4):
                A("v_mul_f32 %s, %s, %s" % (v(P + dt * 4 + r), v(O + (dt * 2 + qt) * 4 + r), v(X + 4 + dt)))
        for h in range(4):
            A("v_cvt_pk_bf16_f32 %s, %s, %s" % (v(P + 8 + qt * 4 + h), v(P + 2 * h), v(P + 2 * h + 1)))
        A("s_add_u32 %s, %s, %d" % (s(S_D), s(TC), qt * 16384))
        A("buffer_store_dwordx4 %s, %s, %s, %s offen" % (v(P + 8 + qt * 4, 4), v(V_L16), s(S_WS, 4), s(S_D)))

def gen_k2(name, opts):
    stamps = opts.get("stamps", False)
    split = opts.get("split", 34)
    A = Asm()
    STAMPV[0] = 127
    A(".globl %s" % name); A(".p2align 8"); A(".type %s,@function" % name); A.label(name)
    A("s_cmp_ge_u32 s2, 256")
    A("s_cbranch_scc1 L_k2_end")
    load_ptrs(A)
    A("v_lshrrev_b32 v1, 6, v0")
    A("s_nop 0")
    A("v_readfirstlane_b32 %s, v1" % s(S_WAVE))
    A("s_mov_b32 %s, 0x7f000000" % s(S_OOB))
    A("s_waitcnt lgkmcnt(0)")
    if stamps:
        stamp_init(A); stamp(A)
    set_srd(A, S_WS, P_WS, WS_SIZE)
    set_srd(A, S_K, P_WS, 16 * MB)
    A("s_add_u32 %s, %s, %d" % (s(S_V), s(P_WS), WS_V))
    A("s_addc_u32 %s, %s, 0" % (s(S_V + 1), s(P_WS + 1)))
    A("s_mov_b32 %s, %d" % (s(S_V + 2), 16 * MB))
    A("s_mov_b32 %s, 0x20000" % s(S_V + 3))
    A("s_and_b32 %s, s2, 7" % s(S_T0))
    A("s_lshr_b32 %s, s2, 3" % s(S_T1))
    A("s_lshl_b32 %s, %s, 1" % (s(S_HEAD), s(S_T0)))
    A("s_and_b32 %s, %s, 1" % (s(S_T2), s(S_T1)))
    A("s_add_u32 %s, %s, %s" % (s(S_HEAD), s(S_HEAD), s(S_T2)))
    A("s_lshr_b32 %s, %s, 1" % (s(S_T1), s(S_T1)))
    A("s_and_b32 %s, %s, 1" % (s(S_ROLE), s(S_T1)))
    A("s_lshr_b32 %s, %s, 1" % (s(S_PAIR), s(S_T1)))
    A("v_and_b32 %s, 63, v0" % v(V_T))
    A("v_lshlrev_b32 %s, 4, %s" % (v(V_L16), v(V_T)))
    A("s_lshl_b32 %s, %s, 12" % (s(S_T0), s(S_WAVE)))
    A("v_add_u32 %s, %s, %s" % (v(V_DMA), s(S_T0), v(V_L16)))
    A("v_subrev_u32 %s, %s, %s" % (v(V_B), s(S_T0), v(V_L16)))
    A("v_add_u32 %s, 0x10000, %s" % (v(V_B), v(V_B)))
    A("v_and_b32 %s, 15, %s" % (v(V_T + 1), v(V_T)))
    A("v_lshrrev_b32 %s, 4, %s" % (v(V_T + 2), v(V_T)))
    A("v_lshlrev_b32 %s, 2, %s" % (v(V_T + 2), v(V_T + 2)))
    A("v_sub_u32 %s, %s, %s" % (v(V_U[0]), v(V_T + 1), v(V_T + 2)))
    A("v_add_u32 %s, 16, %s" % (v(V_U[1]), v(V_U[0])))
    for r in range(4):
        A("v_mov_b32 %s, 0x3f803f80" % v(V_ONE + r))
    A("s_sub_u32 %s, 15, %s" % (s(S_QB), s(S_PAIR)))
    A("s_cmp_eq_u32 %s, 7" % s(S_PAIR))
    A("s_cselect_b32 %s, 32, %d" % (s(S_T3), split))
    A("s_lshl_b32 %s, %s, 20" % (s(S_T2), s(S_HEAD)))
    A("s_cmp_eq_u32 %s, 0" % s(S_ROLE))
    A("s_cbranch_scc0 L_k2_roleS")
    A("s_mov_b32 %s, 0" % s(S_TABS))
    A("s_mov_b32 %s, %s" % (s(S_TEND), s(S_T3)))
    A("s_mov_b32 %s, %s" % (s(S_SRC[0]), s(S_T2)))
    A("s_lshl_b32 %s, %s, 14" % (s(S_E1), s(S_T3)))
    A("s_add_u32 %s, %s, %s" % (s(S_E1), s(S_E1), s(S_T2)))
    A("s_mov_b32 %s, %s" % (s(S_S2), s(S_OOB)))
    A("s_mov_b32 %s, 1" % s(S_E2))
    A("s_mov_b32 %s, 2" % s(S_ENDACT))
    A("s_branch L_k2_roledone")
    A.label("L_k2_roleS")
    A("s_mov_b32 %s, %s" % (s(S_TABS), s(S_T3)))
    A("s_add_u32 %s, %s, 1" % (s(S_TEND), s(S_QB)))
    A("s_lshl_b32 %s, %s, 2" % (s(S_TEND), s(S_TEND)))
    A("s_lshl_b32 %s, %s, 14" % (s(S_SRC[0]), s(S_T3)))
    A("s_add_u32 %s, %s, %s" % (s(S_SRC[0]), s(S_SRC[0]), s(S_T2)))
    A("s_lshl_b32 %s, %s, 14" % (s(S_E1), s(S_TEND)))
    A("s_add_u32 %s, %s, %s" % (s(S_E1), s(S_E1), s(S_T2)))
    A("s_mov_b32 %s, %s" % (s(S_S2), s(S_T2)))
    A("s_add_u32 %s, %s, 1" % (s(S_N2), s(S_PAIR)))
    A("s_lshl_b32 %s, %s, 2" % (s(S_N2), s(S_N2)))
    A("s_lshl_b32 %s, %s, 14" % (s(S_E2), s(S_N2)))
    A("s_add_u32 %s, %s, %s" % (s(S_E2), s(S_E2), s(S_T2)))
    A("s_mov_b32 %s, 1" % s(S_ENDACT))
    A.label("L_k2_roledone")
    A("s_mov_b32 %s, 0" % s(S_SEG))
    load_q(A, 0, S_QB)
    A("s_cmp_eq_u32 %s, 0" % s(S_ROLE))
    A("s_cbranch_scc1 L_k2_noq2")
    load_q(A, 1, S_PAIR)
    A.label("L_k2_noq2")
    A("s_lshl_b32 %s, %s, 12" % (s(S_T0), s(S_WAVE)))
    srcs = [S_SRC[0], S_T1, S_T2, S_T3]
    def issue(srd, soff, slot, isv):
        A("s_add_u32 m0, %s, %d" % (s(S_T0), slot * 16384 + (65536 if isv else 0)))
        A("s_nop 0")
        for m in range(4):
            A("buffer_load_dwordx4 %s, %s, %s offen offset:%d lds" % (v(V_DMA), s(srd, 4), s(soff), m * 1024))
    A(next_src(S_T1, S_SRC[0])); A(next_src(S_T2, S_T1)); A(next_src(S_T3, S_T2))
    issue(S_K, S_SRC[0], 0, False)
    issue(S_K, S_T1, 1, False)
    issue(S_V, S_SRC[0], 0, True)
    issue(S_K, S_T2, 2, False)
    issue(S_V, S_T1, 1, True)
    issue(S_K, S_T3, 3, False)
    issue(S_V, S_T2, 2, True)
    A("s_mov_b32 %s, %s" % (s(S_SRC[1]), s(S_T3)))
    A("s_add_u32 %s, %s, %d" % (s(S_DM0[1]), s(S_T0), 3 * 16384))
    A("v_mov_b32 %s, %s" % (v(V_KA[0]), v(V_L16)))
    A("v_add_u32 %s, 16384, %s" % (v(V_KA[1]), v(V_L16)))
    A("s_waitcnt vmcnt(20)")
    A("s_barrier")
    if stamps:
        stamp(A)
    A.label("L_k2_seg")
    A("s_lshl_b32 %s, %s, 2" % (s(S_DIAG), s(S_QB)))
    A("s_add_u32 %s, %s, %s" % (s(S_DIAG), s(S_DIAG), s(S_WAVE)))
    A("s_lshl_b32 %s, %s, 5" % (s(S_QROW), s(S_DIAG)))
    P = Asm(); seg_prologue(P); check(P.L, "k2 segpro"); A(P.L)
    b0 = body(0, False, opts); b1 = body(1, False, opts); bf = body(1, True, opts)
    if not any(k.startswith("k2no") for k in opts):
        check(P.L[-60:] + b0 + b1 + b0 + bf, "k2 bodies")
    A(".p2align 6")
    A.label("L_k2_loop")
    A(b0)
    A("s_cmp_eq_u32 %s, %s" % (s(S_TABS), s(S_TEND)))
    A("s_cbranch_scc1 L_k2_final")
    A(b1)
    A("s_branch L_k2_loop")
    A.label("L_k2_final")
    A(bf)
    if stamps:
        stamp(A)
    A("s_nop 7")
    A("s_nop 1")
    A("s_cmp_eq_u32 %s, 1" % s(S_ENDACT))
    A("s_cbranch_scc1 L_k2_pub")
    A("s_cmp_eq_u32 %s, 2" % s(S_ENDACT))
    A("s_cbranch_scc0 L_k2_fin0")
    M = Asm(); epi_merge_load(M); epi_final(M, True); check(M.L, "k2 merge"); A(M.L)
    A("s_branch L_k2_done")
    A.label("L_k2_fin0")
    M = Asm(); epi_final(M, False); check(M.L, "k2 fin"); A(M.L)
    A("s_branch L_k2_done")
    A.label("L_k2_pub")
    M = Asm(); epi_publish(M); check(M.L, "k2 pub"); A(M.L)
    if stamps:
        stamp(A)
    A("s_mov_b32 %s, %s" % (s(S_QB), s(S_PAIR)))
    A("s_mov_b32 %s, 0" % s(S_TABS))
    A("s_mov_b32 %s, %s" % (s(S_TEND), s(S_N2)))
    A("s_mov_b32 %s, 0" % s(S_ENDACT))
    for r in range(64):
        A("v_accvgpr_mov_b32 %s, %s" % (a(A_Q[0] + r), a(A_Q[1] + r)))
    A("s_add_u32 %s, %s, 16384" % (s(S_T0), s(S_DM0[1])))
    A("s_and_b32 %s, %s, 0xffff" % (s(S_T0), s(S_T0)))
    A("v_add_u32 %s, %s, %s" % (v(V_KA[0]), s(S_T0), v(V_B)))
    A("v_subrev_u32 %s, 0x10000, %s" % (v(V_KA[0]), v(V_KA[0])))
    A("s_add_u32 %s, %s, 16384" % (s(S_T0), s(S_T0)))
    A("s_and_b32 %s, %s, 0xffff" % (s(S_T0), s(S_T0)))
    A("v_add_u32 %s, %s, %s" % (v(V_KA[1]), s(S_T0), v(V_B)))
    A("v_subrev_u32 %s, 0x10000, %s" % (v(V_KA[1]), v(V_KA[1])))
    A("s_branch L_k2_seg")
    A.label("L_k2_done")
    if stamps:
        stamp(A)
    X = Asm(); b2(X); check(X.L, "k2 b2"); A(X.L)
    if stamps:
        A("s_waitcnt vmcnt(0)")
        stamp(A)
        stamp_flush(A, S_WS, S_WAVE, 1, "L_k2_stf")
    A.label("L_k2_end")
    A("s_endpgm")
    for p in range(2):
        mb = mask_block(p ^ 1, "L_k2_maskret%d" % p, "L_k2_mask%d" % p); check(mb, "mask"); A(mb)
        rb = resc_block(p ^ 1, "L_k2_rescret%d" % p, "L_k2_resc%d" % p); check(rb, "resc"); A(rb)
    mb = mask_block(0, "L_k2_maskPret", "L_k2_maskP"); A(mb)
    return A
```

```python
from common import *

LDS_BYTES = 65536
S_WS = 4; S_OUT = 8
S_WAVE = 16; S_AO = 17; S_BO = 18; S_T0 = 19; S_T1 = 20; S_T2 = 21; S_MT = 22; S_QT = 23; S_CNT = 24
V_L16 = 1
V_T = 2
V_ACC = 16
V_F = 128

DEPTH = 7

def fbuf(slot, k):
    return a((slot * 8 + k) * 4, 4)

def a_loads(slot):
    o = []
    for mt in range(4):
        o.append("buffer_load_dwordx4 %s, %s, %s, %s offen" % (fbuf(slot, mt), v(V_T + mt), s(S_WS, 4), s(S_AO)))
    for qt in range(4):
        o.append("buffer_load_dwordx4 %s, %s, %s, %s offen" % (fbuf(slot, 4 + qt), v(V_T + qt), s(S_WS, 4), s(S_BO)))
    return o

def gen_A(A):
    A("s_and_b32 %s, s2, 7" % s(S_T0))
    A("s_lshr_b32 %s, s2, 3" % s(S_T1))
    A("s_lshl_b32 %s, %s, 2" % (s(S_QT), s(S_T0)))
    A("s_and_b32 %s, %s, 3" % (s(S_T2), s(S_T1)))
    A("s_add_u32 %s, %s, %s" % (s(S_QT), s(S_QT), s(S_T2)))
    A("s_lshr_b32 %s, %s, 2" % (s(S_MT), s(S_T1)))
    for t in range(4):
        A("v_add_u32 %s, %d, %s" % (v(V_T + t), t * 131072, v(V_L16)))
    A("s_lshl_b32 %s, %s, 19" % (s(S_AO), s(S_MT)))
    A("s_lshl_b32 %s, %s, 15" % (s(S_T0), s(S_WAVE)))
    A("s_add_u32 %s, %s, %s" % (s(S_AO), s(S_AO), s(S_T0)))
    A("s_add_u32 %s, %s, %d" % (s(S_AO), s(S_AO), WS_WOT))
    A("s_lshl_b32 %s, %s, 19" % (s(S_BO), s(S_QT)))
    A("s_add_u32 %s, %s, %s" % (s(S_BO), s(S_BO), s(S_T0)))
    A("s_add_u32 %s, %s, %d" % (s(S_BO), s(S_BO), WS_CTX))
    adv = ["s_add_u32 %s, %s, 1024" % (s(S_AO), s(S_AO)), "s_add_u32 %s, %s, 1024" % (s(S_BO), s(S_BO))]
    for d in range(DEPTH):
        A(a_loads(d)); A(adv)
    for ks in range(32):
        slot = ks % DEPTH
        inflight_after = min(DEPTH - 1, 31 - ks)
        A("s_waitcnt vmcnt(%d)" % (8 * inflight_after))
        mfs = []
        for mt in range(4):
            for qt in range(4):
                acc = v(V_ACC + (mt * 4 + qt) * 4, 4)
                mfs.append(mf16(acc, fbuf(slot, mt), fbuf(slot, 4 + qt), "0" if ks == 0 else acc))
        A(mfs)
        if ks + DEPTH < 32:
            A(a_loads(slot)); A(adv)
    A("s_nop 7")
    A("s_lshl_b32 %s, %s, 14" % (s(S_T0), s(S_WAVE)))
    A("v_add_u32 %s, %s, %s" % (v(V_T + 4), s(S_T0), v(V_L16)))
    for k in range(16):
        A("ds_write_b128 %s, %s offset:%d" % (v(V_T + 4), v(V_ACC + 4 * k, 4), k * 1024))
    A("s_waitcnt lgkmcnt(0)")
    A("s_barrier")
    A("s_lshl_b32 %s, %s, 10" % (s(S_T0), s(S_WAVE)))
    A("v_add_u32 %s, %s, %s" % (v(V_T + 4), s(S_T0), v(V_L16)))
    R = 128
    for mt in range(4):
        for w in range(4):
            A("ds_read_b128 %s, %s offset:%d" % (v(R + (mt * 4 + w) * 4, 4), v(V_T + 4), w * 16384 + mt * 4096))
    A("v_lshrrev_b32 %s, 4, %s" % (v(V_T + 5), v(V_L16)))
    A("v_and_b32 %s, 15, %s" % (v(V_T + 6), v(V_T + 5)))
    A("v_lshrrev_b32 %s, 4, %s" % (v(V_T + 5), v(V_T + 5)))
    A("s_lshl_b32 %s, %s, 6" % (s(S_T0), s(S_QT)))
    A("s_lshl_b32 %s, %s, 4" % (s(S_T1), s(S_WAVE)))
    A("s_add_u32 %s, %s, %s" % (s(S_T0), s(S_T0), s(S_T1)))
    A("v_add_u32 %s, %s, %s" % (v(V_T + 6), s(S_T0), v(V_T + 6)))
    A("v_mul_u32_u24 %s, 1792, %s" % (v(V_T + 6), v(V_T + 6)))
    A("v_lshl_add_u32 %s, %s, 3, %s" % (v(V_T + 6), v(V_T + 5), v(V_T + 6)))
    A("s_lshl_b32 %s, %s, 7" % (s(S_T0), s(S_MT)))
    A("s_waitcnt lgkmcnt(0)")
    for mt in range(4):
        b = R + mt * 16
        for r in range(4):
            A("v_add_f32 %s, %s, %s" % (v(b + r), v(b + r), v(b + 4 + r)))
            A("v_add_f32 %s, %s, %s" % (v(b + 8 + r), v(b + 8 + r), v(b + 12 + r)))
        for r in range(4):
            A("v_add_f32 %s, %s, %s" % (v(b + r), v(b + r), v(b + 8 + r)))
        A("v_cvt_pk_bf16_f32 %s, %s, %s" % (v(b + 4), v(b), v(b + 1)))
        A("v_cvt_pk_bf16_f32 %s, %s, %s" % (v(b + 5), v(b + 2), v(b + 3)))
        A("buffer_store_dwordx2 %s, %s, %s, %s offen offset:%d" % (v(b + 4, 2), v(V_T + 6), s(S_OUT, 4), s(S_T0), mt * 32))

def gen_B(A):
    A("s_sub_u32 %s, s2, 224" % s(S_QT))
    A("s_mul_i32 %s, %s, %d" % (s(S_AO), s(S_WAVE), 7 * 16384))
    A("s_add_u32 %s, %s, %d" % (s(S_AO), s(S_AO), WS_WOBT))
    A("s_lshl_b32 %s, %s, 16" % (s(S_BO), s(S_QT)))
    A("s_add_u32 %s, %s, %d" % (s(S_BO), s(S_BO), WS_CTXB))
    for t in range(7):
        A("v_add_u32 %s, %d, %s" % (v(V_T + t), t * 16384, v(V_L16)))
    D = 5
    def buf(slot, k):
        return a((slot * 11 + k) * 4, 4)
    def loads(slot):
        o = []
        for mt in range(7):
            o.append("buffer_load_dwordx4 %s, %s, %s, %s offen" % (buf(slot, mt), v(V_T + mt), s(S_WS, 4), s(S_AO)))
        for qt in range(4):
            o.append("buffer_load_dwordx4 %s, %s, %s, %s offen" % (buf(slot, 7 + qt), v(V_T + qt), s(S_WS, 4), s(S_BO)))
        o += ["s_add_u32 %s, %s, 1024" % (s(S_AO), s(S_AO)), "s_add_u32 %s, %s, 1024" % (s(S_BO), s(S_BO))]
        return o
    for d in range(D):
        A(loads(d))
    for ks in range(16):
        slot = ks % D
        A("s_waitcnt vmcnt(%d)" % (11 * min(D - 1, 15 - ks)))
        for mt in range(7):
            for qt in range(4):
                acc = v(V_ACC + (mt * 4 + qt) * 4, 4)
                A(mf16(acc, buf(slot, mt), buf(slot, 7 + qt), "0" if ks == 0 else acc))
        if ks + D < 16:
            A(loads(slot))
    A("s_nop 7")
    A("v_lshrrev_b32 %s, 4, %s" % (v(V_T + 8), v(V_L16)))
    A("v_and_b32 %s, 15, %s" % (v(V_T + 9), v(V_T + 8)))
    A("v_lshrrev_b32 %s, 4, %s" % (v(V_T + 8), v(V_T + 8)))
    A("s_lshl_b32 %s, %s, 6" % (s(S_T0), s(S_QT)))
    A("v_add_u32 %s, %s, %s" % (v(V_T + 9), s(S_T0), v(V_T + 9)))
    A("v_mul_u32_u24 %s, 1792, %s" % (v(V_T + 9), v(V_T + 9)))
    A("v_lshl_add_u32 %s, %s, 3, %s" % (v(V_T + 9), v(V_T + 8), v(V_T + 9)))
    A("s_mul_i32 %s, %s, %d" % (s(S_T0), s(S_WAVE), 7 * 32))
    A("s_add_u32 %s, %s, 896" % (s(S_T0), s(S_T0)))
    k = 0
    for qt in range(4):
        A("s_add_u32 %s, %s, %d" % (s(S_T1), s(S_T0), qt * 16 * 1792))
        for mt in range(7):
            b = V_ACC + (mt * 4 + qt) * 4
            P = 128 + (k % 8) * 2
            A("v_cvt_pk_bf16_f32 %s, %s, %s" % (v(P), v(b), v(b + 1)))
            A("v_cvt_pk_bf16_f32 %s, %s, %s" % (v(P + 1), v(b + 2), v(b + 3)))
            A("buffer_store_dwordx2 %s, %s, %s, %s offen offset:%d" % (v(P, 2), v(V_T + 9), s(S_OUT, 4), s(S_T1), mt * 32))
            k += 1

def gen_k3(name, opts):
    stamps = opts.get("stamps", False)
    STAMPV[0] = 15
    A = Asm()
    A(".globl %s" % name); A(".p2align 8"); A(".type %s,@function" % name); A.label(name)
    A("s_cmp_ge_u32 s2, 256")
    A("s_cbranch_scc1 L_k3_end")
    load_ptrs(A)
    A("v_lshrrev_b32 v1, 6, v0")
    A("s_nop 0")
    A("v_readfirstlane_b32 %s, v1" % s(S_WAVE))
    A("v_and_b32 v1, 63, v0")
    A("v_lshlrev_b32 v1, 4, v1")
    A("s_waitcnt lgkmcnt(0)")
    if stamps:
        stamp_init(A); stamp(A)
    set_srd(A, S_WS, P_WS, WS_SIZE)
    set_srd(A, S_OUT, P_OUT, 2048 * 896 * 2)
    A("s_cmp_ge_u32 s2, 224")
    A("s_cbranch_scc1 L_k3_B")
    X = Asm(); gen_A(X); check(X.L, "k3 A"); A(X.L)
    A("s_branch L_k3_done")
    A.label("L_k3_B")
    X = Asm(); gen_B(X); check(X.L, "k3 B"); A(X.L)
    A.label("L_k3_done")
    if stamps:
        A("s_waitcnt vmcnt(0)")
        stamp(A)
        stamp_flush(A, S_WS, S_WAVE, 2, "L_k3_stf")
    A.label("L_k3_end")
    A("s_endpgm")
    return A
```

```python
import sys, os
sys.path.insert(0, os.path.dirname(os.path.abspath(__file__)))
from asmgen import *
import k1 as K1
from common import descriptor

NAME = "concat_heads__compressed_kv_cla__sliding_block__prompt"
HEADER = """; Kernarg layout for this problem (96 bytes, ptrs only, base s[0:1]):
"""

def build(opts):
    stamps = opts.get("stamps", False)
    launches = []
    bodies = []
    descs = []
    which = opts.get("kernels", ["k1"])
    if "k1" in which:
        launches.append("; @launch kernel=proj_kernel grid=(256,1,1) block=(256,1,1) lds=%d" % K1.LDS_BYTES)
        bodies.append(K1.gen_k1("proj_kernel", opts).text())
        descs.append(descriptor("proj_kernel"))
    if "k2" in which:
        import k2 as K2
        launches.append("; @launch kernel=attn_kernel grid=(256,1,1) block=(256,1,1) lds=%d" % K2.LDS_BYTES)
        bodies.append(K2.gen_k2("attn_kernel", opts).text())
        descs.append(descriptor("attn_kernel"))
    if "k3" in which:
        import k3 as K3
        launches.append("; @launch kernel=oproj_kernel grid=(256,1,1) block=(256,1,1) lds=%d" % K3.LDS_BYTES)
        bodies.append(K3.gen_k3("oproj_kernel", opts).text())
        descs.append(descriptor("oproj_kernel"))
    txt = HEADER + "\n".join(launches) + "\n"
    txt += '.amdgcn_target "amdgcn-amd-amdhsa--gfx950"\n.text\n'
    txt += "\n".join(bodies)
    txt += "\n".join(descs)
    return txt

if __name__ == "__main__":
    out = sys.argv[1]
    opts = {}
    for x in sys.argv[2:]:
        k, _, val = x.partition("=")
        if k == "kernels":
            opts[k] = val.split(",")
        else:
            opts[k] = int(val) if val.lstrip("-").isdigit() else (val or True)
    open(out, "w").write(build(opts))
    print("wrote", out)
```

```python
from common import *

LDS_BYTES = 131072
S_ACT = 4; S_W = 8; S_WS = 12
S_WAVE = 16; S_SOA = 17; S_SOW = 18; S_WSTEP = 19; S_CNT = 20; S_M0C = 21; S_M0W = 22
S_OUT = 23; S_TN = 26; S_ROA = 27; S_ROW = 28; S_T = 29; S_OOB = 30; S_TILE = 31
S_ASTR = 56; S_WSTR = 57; S_BT = 58; S_ROW0 = 59; S_TYPE = 60; S_T0 = 61; S_T1 = 62; S_T2 = 63; S_EPI = 64
S_SCALE = 65; S_ESCALE = 66; S_HASN = 67; S_EOUT = 68; S_EEPI = 69
S_DREM = 70; S_DTILE = 71; S_ACT2 = 72; S_W2 = 76; S_WSTEP2 = 80; S_OUT2 = 81; S_EPI2 = 82; S_SCALE2 = 83; S_TYPE2 = 84

V_L16 = 1
V_AC = 2
V_AW = 4
V_VC = 12
V_VW = 20
V_T = 28
FC = [36, 100]; FW = [68, 132]
V_AW2 = 164
V_VC2 = 172
V_VW2 = 180
V_E = 188
V_TCH = 240
V_TD = 241
V_GA = 242
S_TCH = 85

def acc_idx(ktype, i, j):
    if ktype:
        return (i * 8 + j) * 4
    return (((i >> 1) * 8 + j) * 2 + (i & 1)) * 4

def frag_reads(sub, buf):
    def rc(i):
        return "ds_read_b128 %s, %s offset:%d" % (v(FC[buf] + 4 * i, 4), v(V_AC + sub), i * 2048)
    def rw(j, t):
        return "ds_read_b64_tr_b16 %s, %s offset:%d" % (v(FW[buf] + 4 * j + 2 * t, 2), v(V_AW + j), 16384 * sub + 2048 * t)
    r = [rc(0)]
    for j in range(8):
        r.append(rw(j, 0)); r.append(rw(j, 1))
    for i in range(1, 8):
        r.append(rc(i))
    return r

def dma_c(m):
    return "buffer_load_dwordx4 %s, %s, %s offen offset:%d lds" % (v(V_VC + m), s(S_ACT, 4), s(S_SOA), (m & 3) * 1024)
def dma_w(m):
    return "buffer_load_dwordx4 %s, %s, %s offen offset:%d lds" % (v(V_VW + m), s(S_W, 4), s(S_SOW), (m & 3) * 1024)

def touch_prep(wv, opts, td=None):
    td = opts.get("k1touch", 3) if td is None else td
    if wv == 0:
        return ["s_add_u32 %s, %s, %d" % (s(S_TCH), s(S_SOA), 128 * td)]
    if wv == 1:
        return ["s_mul_i32 %s, %s, %d" % (s(S_TCH), s(S_WSTEP), td), "s_add_u32 %s, %s, %s" % (s(S_TCH), s(S_TCH), s(S_SOW))]
    return []
def touch_issue(wv):
    if wv == 0:
        return ["buffer_load_dword %s, %s, %s, %s offen" % (v(V_TD), v(V_TCH), s(S_ACT, 4), s(S_TCH))]
    if wv == 1:
        return ["buffer_load_dword %s, %s, %s, %s offen" % (v(V_TD), v(V_TCH), s(S_W, 4), s(S_TCH))]
    return ["global_load_dword %s, %s, off" % (v(V_TD), v(V_GA, 2))]

def global_touch_setup(A, opts={}):
    ranges = [(P_WQ, 0), (P_AX, 448), (P_BWQKV, 672), (P_BX, 819), (P_WO, 1043), (P_BWO, 1491), (P_WQ, 1540)]
    ID = S_T0; OFF = S_T1; LO = S_T2; HI = S_TCH
    off0 = 0
    A("v_and_b32 %s, 63, v0" % v(V_T))
    A("v_lshlrev_b32 %s, 7, %s" % (v(V_T), v(V_T)))
    for r in range(4):
        A("s_lshl_b32 %s, s2, 1" % s(ID))
        A("s_add_u32 %s, %s, %s" % (s(ID), s(ID), s(S_WAVE)))
        A("s_add_u32 %s, %s, %d" % (s(ID), s(ID), (r + off0) * 512 - 2 if not opts.get("k1noglob") else 100000))
        A("s_mov_b32 %s, %s" % (s(LO), s(ranges[0][0])))
        A("s_mov_b32 %s, %s" % (s(HI), s(ranges[0][0] + 1)))
        A("s_mov_b32 %s, %s" % (s(OFF), s(ID)))
        for ptr, st in ranges[1:]:
            A("s_cmp_ge_u32 %s, %d" % (s(ID), st))
            A("s_cselect_b32 %s, %s, %s" % (s(LO), s(ptr), s(LO)))
            A("s_cselect_b32 %s, %s, %s" % (s(HI), s(ptr + 1), s(HI)))
            if st == 1540:
                A("s_cselect_b32 %s, 0, %s" % (s(OFF), s(OFF)))
            else:
                A("s_cbranch_scc0 L_k1_gt_%d_%d" % (r, st))
                A("s_sub_u32 %s, %s, %d" % (s(OFF), s(ID), st))
                A.label("L_k1_gt_%d_%d" % (r, st))
        A("s_lshl_b32 %s, %s, 13" % (s(OFF), s(OFF)))
        A("s_add_u32 %s, %s, %s" % (s(LO), s(LO), s(OFF)))
        A("s_addc_u32 %s, %s, 0" % (s(HI), s(HI)))
        A("v_add_co_u32 %s, vcc, %s, %s" % (v(V_GA + 2 * r), s(LO), v(V_T)))
        A("v_mov_b32 %s, %s" % (v(V_GA + 2 * r + 1), s(HI)))
        A("s_nop 0")
        A("v_addc_co_u32 %s, vcc, 0, %s, vcc" % (v(V_GA + 2 * r + 1), v(V_GA + 2 * r + 1)))

def body(first, ktype, opts, wv=0):
    out = []
    tag = "%d_%d_%d" % (ktype, wv, 1 if first else 0)
    for sub in range(2):
        cur = sub; nxt = cur ^ 1
        mfs = []
        for i in range(8):
            for j in range(8):
                acc = a(acc_idx(ktype, i, j), 4)
                C = "0" if (first and sub == 0) else acc
                cf = v(FC[cur] + 4 * i, 4); wf = v(FW[cur] + 4 * j, 4)
                mfs.append(mf16(acc, wf, cf, C) if ktype else mf16(acc, cf, wf, C))
        gaps = [[] for _ in range(64)]
        if sub == 0:
            rd = frag_reads(1, nxt)
            for n, x in enumerate(rd):
                gaps[2 * n].append(x)
            if not first:
                d = [dma_w(3), ["s_add_u32 m0, %s, 4096" % s(S_M0W)], dma_w(4), dma_w(5), dma_w(6), dma_w(7)]
                pos = opts.get("k1p2", [3, 5, 9, 15, 21, 27])
                for x, p in zip(d, pos):
                    gaps[p] += x if isinstance(x, list) else [x]
            tp = opts.get("k1tpos", 33)
            gaps[tp - 2] += touch_prep(wv, opts)
            gaps[tp] += touch_issue(wv)
            if wv >= 2:
                for k in range(6):
                    gaps[tp + 2 + 2 * k] += ["v_mov_b32 %s, %s" % (v(V_GA + k), v(V_GA + k + 2))]
            bp = opts.get("k1barpos", 57)
            if first:
                gaps[bp] += ["s_cmp_eq_u32 %s, 0" % s(S_TILE),
                             "s_cbranch_scc1 L_k1_fw0_%s" % tag,
                             "s_waitcnt vmcnt(33) lgkmcnt(0)",
                             "s_branch L_k1_fw1_%s" % tag,
                             "L_k1_fw0_%s:" % tag,
                             "s_waitcnt vmcnt(3) lgkmcnt(0)",
                             "L_k1_fw1_%s:" % tag]
            else:
                gaps[bp] += ["s_waitcnt vmcnt(1) lgkmcnt(0)"]
            if not opts.get("nobar"):
                gaps[bp] += ["s_barrier"]
            dl = opts.get("k1delay", 2) * wv
            while dl > 0:
                gaps[bp] += ["s_nop %d" % (min(dl, 16) - 1)]
                dl -= 16
            gaps[bp + 1] += ["s_sub_u32 %s, %s, 1" % (s(S_DREM), s(S_DREM)),
                             "s_cmp_eq_u32 %s, 0" % s(S_DREM)]
            gaps[bp + 2] += ["s_cbranch_scc1 L_k1_swd_%s" % tag, "L_k1_swdret_%s:" % tag,
                             "s_add_u32 %s, %s, 128" % (s(S_SOA), s(S_SOA))]
            gaps[bp + 3] += ["s_add_u32 %s, %s, %s" % (s(S_SOW), s(S_SOW), s(S_WSTEP)),
                             "s_xor_b32 %s, %s, 0x8000" % (s(S_M0C), s(S_M0C))]
            gaps[bp + 4] += ["s_xor_b32 %s, %s, 0x8000" % (s(S_M0W), s(S_M0W)),
                             "s_cmp_eq_u32 %s, 1" % s(S_CNT)]
            gaps[bp + 5] += ["s_cbranch_scc1 L_k1_swa_%s" % tag, "L_k1_swaret_%s:" % tag,
                             "s_mov_b32 m0, %s" % s(S_M0C)]
        else:
            gaps[0] += ["v_xor_b32 %s, 0x8000, %s" % (v(V_AC), v(V_AC))]
            for j in range(8):
                gaps[1 + 2 * j] += ["v_xor_b32 %s, 0x8000, %s" % (v(V_AW + j), v(V_AW + j))]
            rd = frag_reads(0, nxt)
            for n, x in enumerate(rd):
                gaps[2 + 2 * n].append(x)
            gaps[17] += ["v_xor_b32 %s, 0x8000, %s" % (v(V_AC + 1), v(V_AC + 1))]
            d = [dma_c(0), dma_c(1), dma_c(2), dma_c(3), "s_add_u32 m0, %s, 4096" % s(S_M0C), dma_c(4), dma_c(5), dma_c(6), dma_c(7),
                 "s_mov_b32 m0, %s" % s(S_M0W), dma_w(0), dma_w(1), dma_w(2)]
            pos = opts.get("k1p1", [0, 6, 12, 19, 21, 25, 31, 37, 43, 45, 49, 55, 61])
            for x, p in zip(d, pos):
                gaps[p].append(x)
            gaps[62] += ["s_sub_u32 %s, %s, 1" % (s(S_CNT), s(S_CNT))]
            gaps[63] += ["s_cmp_lg_u32 %s, 0" % s(S_CNT)]
        if opts.get("nodma"):
            gaps = [[x for x in g if " lds" not in x] for g in gaps]
        if opts.get("noreads"):
            gaps = [[x for x in g if not x.startswith("ds_read")] for g in gaps]
        out.append("s_waitcnt lgkmcnt(0)")
        out += weave(mfs, gaps)
    return out

def switch_blocks(A, tag):
    A.label("L_k1_swd_%s" % tag)
    A("s_cmp_eq_u32 %s, 0" % s(S_DTILE))
    A("s_cbranch_scc0 L_k1_swd0_%s" % tag)
    A("s_cmp_eq_u32 %s, 0" % s(S_HASN))
    A("s_cbranch_scc1 L_k1_swd0_%s" % tag)
    for m in range(8):
        A("v_mov_b32 %s, %s" % (v(V_VC + m), v(V_VC2 + m)))
        A("v_mov_b32 %s, %s" % (v(V_VW + m), v(V_VW2 + m)))
    for r in range(4):
        A("s_mov_b32 %s, %s" % (s(S_ACT + r), s(S_ACT2 + r)))
        A("s_mov_b32 %s, %s" % (s(S_W + r), s(S_W2 + r)))
    A("s_mov_b32 %s, %s" % (s(S_WSTEP), s(S_WSTEP2)))
    A("s_mov_b32 %s, -128" % s(S_SOA))
    A("s_sub_u32 %s, 0, %s" % (s(S_SOW), s(S_WSTEP)))
    A("s_mov_b32 %s, 7" % s(S_DREM))
    A("s_mov_b32 %s, 1" % s(S_DTILE))
    A("s_branch L_k1_swdret_%s" % tag)
    A.label("L_k1_swd0_%s" % tag)
    A("s_mov_b32 %s, %s" % (s(S_SOA), s(S_OOB)))
    A("s_mov_b32 %s, %s" % (s(S_SOW), s(S_OOB)))
    A("s_mov_b32 %s, 0" % s(S_WSTEP))
    A("s_mov_b32 %s, 1000" % s(S_DREM))
    A("s_branch L_k1_swdret_%s" % tag)
    A.label("L_k1_swa_%s" % tag)
    for j in range(8):
        A("v_xor_b32 %s, 0x8000, %s" % (v(V_AW + j), v(V_AW2 + j)))
    A("s_branch L_k1_swaret_%s" % tag)

def tile_setup(A, second=False):
    T = V_T
    V_AW = V_AW2 if second else globals()["V_AW"]
    V_VC = V_VC2 if second else globals()["V_VC"]
    V_VW = V_VW2 if second else globals()["V_VW"]
    A("v_and_b32 %s, 63, v0" % v(T))
    A("v_lshlrev_b32 %s, 4, %s" % (v(V_L16), v(T)))
    A("v_and_b32 %s, 15, %s" % (v(T + 1), v(T)))
    A("v_lshrrev_b32 %s, 4, %s" % (v(T + 2), v(T)))
    A("v_lshrrev_b32 %s, 1, %s" % (v(T + 3), v(T + 1)))
    A("v_xor_b32 %s, %s, %s" % (v(T + 3), v(T + 3), v(T + 2)))
    A("s_lshr_b32 %s, %s, 1" % (s(S_T0), s(S_WAVE)))
    A("s_lshl_b32 %s, %s, 14" % (s(S_T0), s(S_T0)))
    A("v_lshlrev_b32 %s, 7, %s" % (v(T + 4), v(T + 1)))
    A("v_add_u32 %s, %s, %s" % (v(T + 4), s(S_T0), v(T + 4)))
    for sub in range(2):
        A("v_xor_b32 %s, %d, %s" % (v(T + 5), 4 * sub, v(T + 3)))
        A("v_lshl_add_u32 %s, %s, 4, %s" % (v(V_AC + sub), v(T + 5), v(T + 4)))
    A("v_bfe_u32 %s, %s, 2, 2" % (v(T + 3), v(T)))
    A("v_and_b32 %s, 3, %s" % (v(T + 4), v(T)))
    A("v_lshlrev_b32 %s, 3, %s" % (v(T + 4), v(T + 4)))
    A("v_lshl_add_u32 %s, %s, 3, %s" % (v(T + 1), v(T + 2), v(T + 3)))
    A("v_lshlrev_b32 %s, 9, %s" % (v(T + 1), v(T + 1)))
    A("v_add_u32 %s, 0x10000, %s" % (v(T + 1), v(T + 1)))
    A("v_and_b32 %s, 1, %s" % (v(T + 2), v(T + 2)))
    A("v_lshl_add_u32 %s, %s, 2, %s" % (v(T + 3), v(T + 2), v(T + 3)))
    A("v_lshlrev_b32 %s, 5, %s" % (v(T + 3), v(T + 3)))
    A("s_and_b32 %s, %s, 1" % (s(S_T0), s(S_WAVE)))
    A("s_cmp_eq_u32 %s, 0" % s(S_BT))
    A("s_cselect_b32 %s, 64, 56" % s(S_T1))
    A("s_mul_i32 %s, %s, %s" % (s(S_T0), s(S_T0), s(S_T1)))
    A("s_lshl_b32 %s, %s, 2" % (s(S_T0), s(S_T0)))
    for j in range(8):
        A("v_add_u32 %s, %s, %s" % (v(T + 5), s(S_T0), v(T + 4)))
        if j & 1:
            A("v_add_u32 %s, 32, %s" % (v(T + 5), v(T + 5)))
        A("v_xor_b32 %s, %s, %s" % (v(T + 5), v(T + 5), v(T + 3)))
        A("v_add_u32 %s, %s, %s" % (v(V_AW + j), v(T + 5), v(T + 1)))
        if j & 1:
            A("s_add_u32 %s, %s, %s" % (s(S_T0), s(S_T0), s(S_T1)))
    A("v_lshrrev_b32 %s, 3, %s" % (v(T + 1), v(T)))
    A("s_lshl_b32 %s, %s, 6" % (s(S_T0), s(S_WAVE)))
    A("s_add_u32 %s, %s, %s" % (s(S_T0), s(S_T0), s(S_ROW0)))
    A("v_add_u32 %s, %s, %s" % (v(T + 1), s(S_T0), v(T + 1)))
    A("v_mul_lo_u32 %s, %s, %s" % (v(T + 1), v(T + 1), s(S_ASTR)))
    A("v_and_b32 %s, 7, %s" % (v(T + 2), v(T)))
    A("v_lshrrev_b32 %s, 4, %s" % (v(T + 3), v(T)))
    A("v_xor_b32 %s, %s, %s" % (v(T + 2), v(T + 2), v(T + 3)))
    A("v_xor_b32 %s, 4, %s" % (v(T + 3), v(T + 2)))
    A("v_lshlrev_b32 %s, 4, %s" % (v(T + 2), v(T + 2)))
    A("v_lshlrev_b32 %s, 4, %s" % (v(T + 3), v(T + 3)))
    A("s_lshl_b32 %s, %s, 3" % (s(S_T1), s(S_ASTR)))
    A("s_mov_b32 %s, 0" % s(S_T0))
    for m in range(8):
        A("v_add3_u32 %s, %s, %s, %s" % (v(V_VC + m), v(T + 1), v(T + 2 + (m & 1)), s(S_T0)))
        if m < 7:
            A("s_add_u32 %s, %s, %s" % (s(S_T0), s(S_T0), s(S_T1)))
            dl = (((m + 1) & 3) - (m & 3)) * 1024
            A(("s_sub_u32 %s, %s, %d" % (s(S_T0), s(S_T0), dl)) if dl > 0 else ("s_add_u32 %s, %s, %d" % (s(S_T0), s(S_T0), -dl)))
    A("v_lshrrev_b32 %s, 5, %s" % (v(T + 1), v(T)))
    A("v_and_b32 %s, 31, %s" % (v(T + 2), v(T)))
    A("v_lshlrev_b32 %s, 1, %s" % (v(T + 3), v(T + 1)))
    A("v_xor_b32 %s, %s, %s" % (v(T + 2), v(T + 2), v(T + 3)))
    A("s_lshl_b32 %s, %s, 4" % (s(S_T0), s(S_WAVE)))
    A("v_add_u32 %s, %s, %s" % (v(T + 1), s(S_T0), v(T + 1)))
    A("v_mul_lo_u32 %s, %s, %s" % (v(T + 1), v(T + 1), s(S_WSTR)))
    A("s_lshl_b32 %s, %s, 1" % (s(S_T1), s(S_WSTR)))
    A("s_mov_b32 %s, 0" % s(S_T0))
    for m in range(8):
        x = ((m & 1) << 2) ^ (((m >> 2) & 1) << 3)
        A("v_xor_b32 %s, %d, %s" % (v(T + 3), x, v(T + 2)))
        A("v_lshlrev_b32 %s, 4, %s" % (v(T + 3), v(T + 3)))
        A("v_add3_u32 %s, %s, %s, %s" % (v(V_VW + m), v(T + 1), v(T + 3), s(S_T0)))
        if m < 7:
            A("s_add_u32 %s, %s, %s" % (s(S_T0), s(S_T0), s(S_T1)))
            dl = (((m + 1) & 3) - (m & 3)) * 1024
            A(("s_sub_u32 %s, %s, %d" % (s(S_T0), s(S_T0), dl)) if dl > 0 else ("s_add_u32 %s, %s, %d" % (s(S_T0), s(S_T0), -dl)))
    A("s_lshl_b32 %s, %s, 6" % (s(S_WSTEP2 if second else S_WSTEP), s(S_WSTR)))
    A("s_lshl_b32 %s, %s, 13" % (s(S_T0), s(S_WAVE)))

def tile_prologue_dma(A):
    A("s_mov_b32 %s, 0" % s(S_SOA))
    A("s_mov_b32 %s, 0" % s(S_SOW))
    for stage in range(2):
        if stage == 1:
            A("s_mov_b32 %s, 128" % s(S_SOA))
            A("s_mov_b32 %s, %s" % (s(S_SOW), s(S_WSTEP)))
        for g in range(2):
            A("s_add_u32 m0, %s, %d" % (s(S_T0), stage * 32768 + g * 4096))
            A("s_nop 0")
            for m in range(4):
                A(dma_c(4 * g + m))
        for g in range(2):
            A("s_add_u32 m0, %s, %d" % (s(S_T0), 65536 + stage * 32768 + g * 4096))
            A("s_nop 0")
            for m in range(4):
                A(dma_w(4 * g + m))
    A("s_add_u32 %s, %s, 32768" % (s(S_M0C), s(S_T0)))
    A("s_add_u32 %s, %s, %d" % (s(S_M0W), s(S_T0), 65536 + 32768))
    A("s_sub_u32 %s, %s, 1" % (s(S_DREM), s(S_T)))
    A("s_mov_b32 %s, 0" % s(S_DTILE))

def epi_offsets(kind):
    if kind == 0 or kind == 4:
        return 8 * 8192, 4 * 1024, [(n >> 2) * 8192 + (n & 3) * 1024 for n in range(32)]
    if kind == 1:
        return 4 * 16384, 8 * 1024, [(n >> 3) * 16384 + (n & 7) * 1024 for n in range(32)]
    if kind == 2:
        return 8 * 1024, 4 * 131072, [(n >> 2) * 1024 + (n & 3) * 131072 for n in range(32)]
    return 4 * 2048, 4 * 131072, [(n >> 3) * 2048 + ((n & 7) >> 1) * 131072 + (n & 1) * 1024 for n in range(32)]

def epilogue(A, kind, opts={}):
    E = V_E
    wms, wns, offs = epi_offsets(kind)
    A("s_lshr_b32 %s, %s, 1" % (s(S_T0), s(S_WAVE)))
    A("s_mul_i32 %s, %s, %d" % (s(S_T0), s(S_T0), wms))
    A("s_and_b32 %s, %s, 1" % (s(S_T1), s(S_WAVE)))
    A("s_mul_i32 %s, %s, %d" % (s(S_T1), s(S_T1), wns))
    A("s_add_u32 %s, %s, %s" % (s(S_T0), s(S_T0), s(S_T1)))
    A("s_add_u32 %s, %s, %s" % (s(S_T0), s(S_T0), s(S_EOUT)))
    if kind == 2:
        A("v_cmp_gt_u32 vcc, 768, %s" % v(V_L16))
        A("s_nop 1")
        A("v_cndmask_b32 %s, 0, -1, vcc" % v(V_T + 1))
    if kind == 3:
        A("v_and_b32 %s, 0xf0, %s" % (v(V_T), v(V_L16)))
        A("v_cmp_gt_u32 vcc, 192, %s" % v(V_T))
        A("s_nop 1")
        A("v_cndmask_b32 %s, 0, -1, vcc" % v(V_T + 1))
        A("v_cmp_eq_u32 vcc, 192, %s" % v(V_T))
        A("v_mov_b32 %s, 0x3f803f80" % v(V_T + 3))
        A("s_nop 0")
        A("v_cndmask_b32 %s, 0, %s, vcc" % (v(V_T + 2), v(V_T + 3)))
    cur = None
    for n in range(32):
        R = E + (n & 3) * 8
        P = E + 32 + (n & 3) * 4
        for r in range(8):
            A("v_accvgpr_read_b32 %s, %s" % (v(R + r), a(8 * n + r)))
        if kind in (2, 4):
            for r in range(8):
                A("v_mul_f32 %s, %s, %s" % (v(R + r), s(S_ESCALE), v(R + r)))
        for r in range(4):
            A("v_cvt_pk_bf16_f32 %s, %s, %s" % (v(P + r), v(R + 2 * r), v(R + 2 * r + 1)))
        if kind == 2:
            A("v_and_b32 %s, %s, %s" % (v(P + 2), v(V_T + 1), v(P + 2)))
            A("v_and_b32 %s, %s, %s" % (v(P + 3), v(V_T + 1), v(P + 3)))
        if kind == 3 and (n & 1):
            for r in range(4):
                A("v_and_or_b32 %s, %s, %s, %s" % (v(P + r), v(P + r), v(V_T + 1), v(V_T + 2)))
        o = offs[n]
        if cur is None or not (0 <= o - cur < 4096):
            A("s_add_u32 %s, %s, %d" % (s(S_T1), s(S_T0), o))
            cur = o
        A("buffer_store_dwordx4 %s, %s, %s, %s offen offset:%d%s" % (v(P, 4), v(V_L16), s(S_WS, 4), s(S_T1), o - cur, opts.get("stflag", "")))

def wo_transform(A):
    A("s_sub_u32 %s, s2, 176" % s(S_T0))
    A("s_lshl_b32 %s, %s, 2" % (s(S_T0), s(S_T0)))
    A("s_add_u32 %s, %s, %s" % (s(S_T0), s(S_T0), s(S_WAVE)))
    A("s_cmp_ge_u32 %s, 144" % s(S_T0))
    A("s_cbranch_scc1 L_k1_wotdone")
    A("s_cmp_ge_u32 %s, 128" % s(S_T0))
    A("s_cbranch_scc1 L_k1_wotB")
    set_srd(A, S_W, P_WO, 4096 * 448 * 2)
    A("s_mul_i32 %s, %s, %d" % (s(S_SOW), s(S_T0), 32 * 896))
    A("s_lshl_b32 %s, %s, 10" % (s(S_OUT), s(S_T0)))
    A("s_add_u32 %s, %s, %d" % (s(S_OUT), s(S_OUT), WS_WOT))
    A("s_mov_b32 %s, %d" % (s(S_T2), 131072))
    A("s_branch L_k1_wotgo")
    A.label("L_k1_wotB")
    A("s_sub_u32 %s, %s, 128" % (s(S_T0), s(S_T0)))
    set_srd(A, S_W, P_BWO, 448 * 448 * 2)
    A("s_mul_i32 %s, %s, %d" % (s(S_SOW), s(S_T0), 28 * 896))
    A("s_lshl_b32 %s, %s, 10" % (s(S_OUT), s(S_T0)))
    A("s_add_u32 %s, %s, %d" % (s(S_OUT), s(S_OUT), WS_WOBT))
    A("s_mov_b32 %s, %d" % (s(S_T2), 16384))
    A.label("L_k1_wotgo")
    A("s_mul_i32 %s, %s, 28672" % (s(S_T1), s(S_WAVE)))
    for k in range(28):
        if k % 4 == 0:
            A("s_add_u32 m0, %s, %d" % (s(S_T1), k * 1024))
            A("s_add_u32 %s, %s, %d" % (s(S_ROW), s(S_SOW), k * 1024))
        A("buffer_load_dwordx4 %s, %s, %s offen offset:%d lds" % (v(V_L16), s(S_W, 4), s(S_ROW), (k % 4) * 1024))
    T = V_T
    A("v_lshrrev_b32 %s, 4, %s" % (v(T), v(V_L16)))
    A("v_lshrrev_b32 %s, 4, %s" % (v(T + 1), v(T)))
    A("v_bfe_u32 %s, %s, 2, 2" % (v(T + 2), v(T)))
    A("v_lshl_add_u32 %s, %s, 2, %s" % (v(T + 1), v(T + 1), v(T + 2)))
    A("v_mul_u32_u24 %s, 896, %s" % (v(T + 1), v(T + 1)))
    A("v_and_b32 %s, 3, %s" % (v(T + 2), v(T)))
    A("v_lshl_add_u32 %s, %s, 3, %s" % (v(T + 1), v(T + 2), v(T + 1)))
    A("v_add_u32 %s, %s, %s" % (v(T + 1), s(S_T1), v(T + 1)))
    A("s_waitcnt vmcnt(0)")
    R = 36
    for mt in range(28):
        for t in range(2):
            A("ds_read_b64_tr_b16 %s, %s offset:%d" % (v(R + 4 * mt + 2 * t, 2), v(T + 1), t * 16 * 896 + mt * 32))
        if mt % 7 == 6:
            A("s_waitcnt lgkmcnt(0)")
    for mt in range(28):
        A("buffer_store_dwordx4 %s, %s, %s, %s offen" % (v(R + 4 * mt, 4), v(V_L16), s(S_WS, 4), s(S_OUT)))
        A("s_add_u32 %s, %s, %s" % (s(S_OUT), s(S_OUT), s(S_T2)))
    A.label("L_k1_wotdone")

def gen_k1(name, opts):
    stamps = opts.get("stamps", False)
    STAMPV[0] = 255
    A = Asm()
    A(".globl %s" % name)
    A(".p2align 8")
    A(".type %s,@function" % name)
    A.label(name)
    A("s_cmp_ge_u32 s2, 256")
    A("s_cbranch_scc1 L_k1_end")
    load_ptrs(A)
    A("v_lshrrev_b32 v1, 6, v0")
    A("s_nop 0")
    A("v_readfirstlane_b32 %s, v1" % s(S_WAVE))
    A("s_mov_b32 %s, 0x7f000000" % s(S_OOB))
    A("s_waitcnt lgkmcnt(0)")
    if stamps:
        stamp_init(A); stamp(A)
    set_srd(A, S_WS, P_WS, WS_SIZE)
    A("s_and_b32 %s, s2, 7" % s(S_T0))
    A("s_lshr_b32 %s, s2, 3" % s(S_T1))
    A("s_lshl_b32 %s, %s, 2" % (s(S_T0), s(S_T0)))
    A("s_and_b32 %s, %s, 3" % (s(S_T2), s(S_T1)))
    A("s_add_u32 %s, %s, %s" % (s(S_T0), s(S_T0), s(S_T2)))
    A("s_lshr_b32 %s, %s, 2" % (s(S_T1), s(S_T1)))
    A("s_lshl_b32 %s, %s, 8" % (s(S_ROW0), s(S_T1)))
    A("s_lshr_b32 %s, %s, 4" % (s(S_TYPE), s(S_T0)))
    A("s_and_b32 %s, %s, 15" % (s(S_T0), s(S_T0)))
    A("s_lshl_b32 %s, %s, 20" % (s(S_OUT), s(S_T0)))
    A("s_lshl_b32 %s, %s, 17" % (s(S_T1), s(S_T1)))
    A("s_add_u32 %s, %s, %s" % (s(S_OUT), s(S_OUT), s(S_T1)))
    A("s_lshl_b32 %s, %s, 24" % (s(S_T1), s(S_TYPE)))
    A("s_add_u32 %s, %s, %s" % (s(S_OUT), s(S_OUT), s(S_T1)))
    A("s_lshl_b32 %s, %s, 9" % (s(S_T0), s(S_T0)))
    set_srd(A, S_ACT, P_CKV, 2048 * 1024 * 2)
    A("s_cmp_eq_u32 %s, 0" % s(S_TYPE))
    A("s_cselect_b32 %s, %s, %s" % (s(S_T1), s(P_WUK), s(P_WUV)))
    A("s_cselect_b32 %s, %s, %s" % (s(S_T2), s(P_WUK + 1), s(P_WUV + 1)))
    A("s_add_u32 %s, %s, %s" % (s(S_W), s(S_T1), s(S_T0)))
    A("s_addc_u32 %s, %s, 0" % (s(S_W + 1), s(S_T2)))
    A("s_sub_u32 %s, %d, %s" % (s(S_W + 2), 1024 * 4096 * 2, s(S_T0)))
    A("s_mov_b32 %s, 0x20000" % s(S_W + 3))
    A("s_mov_b32 %s, 2048" % s(S_ASTR))
    A("s_mov_b32 %s, 8192" % s(S_WSTR))
    A("s_mov_b32 %s, 0" % s(S_BT))
    A("s_mov_b32 %s, 16" % s(S_T))
    A("s_mov_b32 %s, %s" % (s(S_EPI), s(S_TYPE)))
    A("s_mov_b32 %s, 0" % s(S_TILE))
    A("s_mov_b32 %s, 1.0" % s(S_SCALE))
    A("s_cmp_ge_u32 s2, 128")
    A("s_cbranch_scc1 L_k1_noflag")
    A("s_lshl_b32 %s, s2, 7" % s(S_T0))
    A("s_add_u32 %s, %s, %d" % (s(S_T0), s(S_T0), WS_FLAG))
    A("v_mov_b32 v2, 0")
    A("v_lshlrev_b32 v3, 2, v0")
    A("v_cmp_gt_u32 vcc, 32, v0")
    A("s_and_saveexec_b64 s[70:71], vcc")
    A("s_cbranch_execz L_k1_noflag2")
    A("buffer_store_dword v2, v3, %s, %s offen" % (s(S_WS, 4), s(S_T0)))
    A.label("L_k1_noflag2")
    A("s_mov_b64 exec, s[70:71]")
    A.label("L_k1_noflag")
    tile_setup(A)
    if opts.get("k1prostamp"):
        stamp(A)
        A("s_lshl_b32 %s, %s, 13" % (s(S_T0), s(S_WAVE)))
    tile_prologue_dma(A)
    if opts.get("k1prostamp"):
        stamp(A)
    A("s_lshr_b32 %s, s2, 3" % s(S_T0))
    A("v_and_b32 %s, 63, v0" % v(V_T))
    A("s_lshl_b32 %s, %s, 6" % (s(S_T1), s(S_T0)))
    A("v_add_u32 %s, %s, %s" % (v(V_TCH), s(S_T1), v(V_T)))
    A("v_lshlrev_b32 %s, 11, %s" % (v(V_TCH), v(V_TCH)))
    A("s_lshr_b32 %s, %s, 2" % (s(S_T1), s(S_T0)))
    A("s_lshl_b32 %s, %s, 3" % (s(S_T1), s(S_T1)))
    A("v_bfe_u32 %s, %s, 2, 3" % (v(V_T + 1), v(V_T)))
    A("v_add_u32 %s, %s, %s" % (v(V_T + 1), s(S_T1), v(V_T + 1)))
    A("v_lshlrev_b32 %s, 13, %s" % (v(V_T + 1), v(V_T + 1)))
    A("v_and_b32 %s, 3, %s" % (v(V_T + 2), v(V_T)))
    A("v_lshl_add_u32 %s, %s, 7, %s" % (v(V_T + 1), v(V_T + 2), v(V_T + 1)))
    A("s_cmp_eq_u32 %s, 1" % s(S_WAVE))
    A("s_cbranch_scc0 L_k1_tch")
    A("v_mov_b32 %s, %s" % (v(V_TCH), v(V_T + 1)))
    A.label("L_k1_tch")
    global_touch_setup(A, opts)
    A("s_cmp_ge_u32 %s, 2" % s(S_WAVE))
    A("s_cbranch_scc1 L_k1_tchg")
    for td in (1, 2):
        A("s_cmp_eq_u32 %s, 0" % s(S_WAVE))
        A("s_cbranch_scc0 L_k1_tch1_%d" % td)
        A(touch_prep(0, opts, td)); A(touch_issue(0))
        A("s_branch L_k1_tch2_%d" % td)
        A.label("L_k1_tch1_%d" % td)
        A(touch_prep(1, opts, td)); A(touch_issue(1))
        A.label("L_k1_tch2_%d" % td)
    A("s_branch L_k1_tchd")
    A.label("L_k1_tchg")
    for r in range(2):
        if opts.get("k1lateglob", 1):
            A("buffer_load_dword %s, %s, %s, %s offen" % (v(V_TD), v(V_L16), s(S_ACT, 4), "0"))
        else:
            A(touch_issue(2))
            for k in range(6):
                A("v_mov_b32 %s, %s" % (v(V_GA + k), v(V_GA + k + 2)))
    A.label("L_k1_tchd")
    for r in range(4):
        A("s_mov_b32 %s, %s" % (s(S_ACT2 + r), s(S_ACT + r)))
        A("s_mov_b32 %s, %s" % (s(S_W2 + r), s(S_W + r)))
    A("s_mov_b32 %s, 0" % s(S_HASN))
    A("s_mov_b32 %s, 0" % s(S_TYPE2))
    A("s_mov_b32 %s, 0" % s(S_BT))
    A("s_cmp_ge_u32 s2, 176")
    A("s_cbranch_scc1 L_k1_set2done")
    A("s_mov_b32 %s, 1" % s(S_HASN))
    A("s_cmp_ge_u32 s2, 128")
    A("s_cbranch_scc1 L_k1_setB")
    A("s_and_b32 %s, s2, 7" % s(S_T0))
    A("s_lshr_b32 %s, s2, 3" % s(S_T1))
    A("s_lshl_b32 %s, %s, 1" % (s(S_T0), s(S_T0)))
    A("s_and_b32 %s, %s, 1" % (s(S_T2), s(S_T1)))
    A("s_add_u32 %s, %s, %s" % (s(S_T0), s(S_T0), s(S_T2)))
    A("s_lshr_b32 %s, %s, 1" % (s(S_T1), s(S_T1)))
    A("s_lshl_b32 %s, %s, 8" % (s(S_ROW0), s(S_T1)))
    A("s_lshl_b32 %s, %s, 20" % (s(S_OUT2), s(S_T0)))
    A("s_lshl_b32 %s, %s, 17" % (s(S_T1), s(S_T1)))
    A("s_add_u32 %s, %s, %s" % (s(S_OUT2), s(S_OUT2), s(S_T1)))
    A("s_add_u32 %s, %s, %d" % (s(S_OUT2), s(S_OUT2), WS_Q))
    A("s_lshl_b32 %s, %s, 9" % (s(S_T0), s(S_T0)))
    set_srd(A, S_ACT2, P_AX, 2048 * 448 * 2)
    set_srd(A, S_W2, P_WQ, 448 * 4096 * 2, S_T0)
    A("s_mov_b32 %s, 8192" % s(S_WSTR))
    A("s_mov_b32 %s, 4" % s(S_EPI2))
    A("s_mov_b32 %s, 0x%08x" % (s(S_SCALE2), f32bits(1.4426950408889634 / 16.0)))
    A("s_branch L_k1_setdone")
    A.label("L_k1_setB")
    A("s_sub_u32 %s, s2, 128" % s(S_T0))
    A("s_and_b32 %s, %s, 7" % (s(S_T1), s(S_T0)))
    A("s_lshr_b32 %s, %s, 3" % (s(S_T0), s(S_T0)))
    A("s_lshl_b32 %s, %s, 8" % (s(S_ROW0), s(S_T1)))
    A("s_lshr_b32 %s, %s, 2" % (s(S_TYPE2), s(S_T0)))
    A("s_lshr_b32 %s, %s, 1" % (s(S_T2), s(S_T0)))
    A("s_lshl_b32 %s, %s, 21" % (s(S_OUT2), s(S_T2)))
    A("s_and_b32 %s, %s, 1" % (s(S_T2), s(S_T0)))
    A("s_lshl_b32 %s, %s, 20" % (s(S_T2), s(S_T2)))
    A("s_add_u32 %s, %s, %s" % (s(S_OUT2), s(S_OUT2), s(S_T2)))
    A("s_lshl_b32 %s, %s, 14" % (s(S_T1), s(S_T1)))
    A("s_add_u32 %s, %s, %s" % (s(S_OUT2), s(S_OUT2), s(S_T1)))
    A("s_add_u32 %s, %s, %d" % (s(S_OUT2), s(S_OUT2), WS_BQ))
    A("s_cmp_lt_u32 %s, 2" % s(S_T0))
    A("s_cselect_b32 %s, 0x%08x, 1.0" % (s(S_SCALE2), f32bits(1.4426950408889634 / 28.0 ** 0.5)))
    A("s_mul_i32 %s, %s, 448" % (s(S_T0), s(S_T0)))
    set_srd(A, S_ACT2, P_BX, 2048 * 448 * 2)
    set_srd(A, S_W2, P_BWQKV, 448 * 1344 * 2, S_T0)
    A("s_mov_b32 %s, 2688" % s(S_WSTR))
    A("s_mov_b32 %s, 1" % s(S_BT))
    A("s_add_u32 %s, %s, 2" % (s(S_EPI2), s(S_TYPE2)))
    A.label("L_k1_setdone")
    A("s_mov_b32 %s, 896" % s(S_ASTR))
    A.label("L_k1_set2done")
    tile_setup(A, True)
    if opts.get("k1prostamp"):
        stamp(A)
    A("s_waitcnt vmcnt(18)")
    if opts.get("k1prostamp"):
        stamp(A)
    A("s_barrier")
    if stamps:
        stamp(A)
    A(frag_reads(0, 0))
    A.label("L_k1_tile_go")
    A("s_mov_b32 %s, %s" % (s(S_CNT), s(S_T)))
    ncopy = 4 if opts.get("k1copies", 4) == 4 else 1
    for ktype in (1, 0):
        for wv in range(ncopy):
            if ktype == 1 and wv == 0:
                continue
            A("s_cmp_eq_u32 %s, %d" % (s(S_TYPE), 0 if ktype == 1 else 1))
            A("s_cbranch_scc0 L_k1_nx_%d_%d" % (ktype, wv))
            if ncopy == 4:
                A("s_cmp_eq_u32 %s, %d" % (s(S_WAVE), wv))
                A("s_cbranch_scc1 L_k1_go_%d_%d" % (ktype, wv))
            else:
                A("s_branch L_k1_go_%d_%d" % (ktype, wv))
            A.label("L_k1_nx_%d_%d" % (ktype, wv))
    for ktype in (1, 0):
        for wv in range(ncopy):
            A.label("L_k1_go_%d_%d" % (ktype, wv))
            b0 = body(True, ktype, opts, wv)
            b1 = body(False, ktype, opts, wv)
            A(b0)
            A(".p2align 6")
            A.label("L_k1_loop_%d_%d" % (ktype, wv))
            if opts.get("k1iterstamp"):
                stamp(A)
                A("s_mov_b32 m0, %s" % s(S_M0W))
            A(b1)
            A("s_cbranch_scc1 L_k1_loop_%d_%d" % (ktype, wv))
            if wv == 0:
                check(frag_reads(0, 0) + b0 + b1 + b1, "k1 body %d" % ktype)
            A("s_branch L_k1_done")
    A.label("L_k1_done")
    if stamps:
        stamp(A)
    A("s_mov_b32 %s, %s" % (s(S_EOUT), s(S_OUT)))
    A("s_mov_b32 %s, %s" % (s(S_EEPI), s(S_EPI)))
    A("s_mov_b32 %s, %s" % (s(S_ESCALE), s(S_SCALE)))
    A("s_cmp_eq_u32 %s, 0" % s(S_TILE))
    A("s_cselect_b32 %s, %s, 0" % (s(S_HASN), s(S_HASN)))
    A("s_cmp_eq_u32 %s, 0" % s(S_HASN))
    A("s_cbranch_scc1 L_k1_epi")
    A("s_mov_b32 m0, %s" % s(S_M0W))
    A("s_nop 0")
    A(dma_w(3))
    A("s_add_u32 m0, %s, 4096" % s(S_M0W))
    A("s_nop 0")
    for m in range(4, 8):
        A(dma_w(m))
    A.label("L_k1_epi")
    for kind in (1, 2, 3, 4):
        A("s_cmp_eq_u32 %s, %d" % (s(S_EEPI), kind))
        A("s_cbranch_scc1 L_k1_epi%d" % kind)
    for kind in range(5):
        if kind:
            A.label("L_k1_epi%d" % kind)
        E = Asm()
        epilogue(E, kind, opts)
        check(E.L, "k1 epi %d" % kind)
        A(E.L)
        if kind < 4:
            A("s_branch L_k1_epidone")
    A.label("L_k1_epidone")
    if stamps:
        stamp(A)
    A("s_cmp_eq_u32 %s, 0" % s(S_HASN))
    A("s_cbranch_scc1 L_k1_fin")
    A("s_mov_b32 %s, 1" % s(S_TILE))
    A("s_mov_b32 %s, 7" % s(S_T))
    A("s_mov_b32 %s, %s" % (s(S_TYPE), s(S_TYPE2)))
    A("s_mov_b32 %s, %s" % (s(S_OUT), s(S_OUT2)))
    A("s_mov_b32 %s, %s" % (s(S_EPI), s(S_EPI2)))
    A("s_mov_b32 %s, %s" % (s(S_SCALE), s(S_SCALE2)))
    A("s_branch L_k1_tile_go")
    A.label("L_k1_fin")
    A("s_cmp_lt_u32 s2, 176")
    A("s_cbranch_scc1 L_k1_fin2")
    A("s_waitcnt vmcnt(0) lgkmcnt(0)")
    A("s_barrier")
    X = Asm(); wo_transform(X); check(X.L, "k1 wot"); A(X.L)
    A.label("L_k1_fin2")
    if stamps:
        A("s_waitcnt vmcnt(0)")
        stamp(A)
        stamp_flush(A, S_WS, S_WAVE, 0, "L_k1_stf")
    A.label("L_k1_end")
    A("s_endpgm")
    for ktype in (1, 0):
        for wv in range(ncopy):
            for first in (1, 0):
                switch_blocks(A, "%d_%d_%d" % (ktype, wv, first))
    return A
```

```python
from common import *

LDS_BYTES = 131072
S_K = 4; S_V = 8; S_WS = 12
S_WAVE = 16; S_HEAD = 17; S_ROLE = 18; S_PAIR = 19
S_SRC = [20, 21]
S_E1 = 22; S_S2 = 23; S_E2 = 24
S_DM0 = [25, 26]
S_TABS = 27
S_DIAG = 28
S_TEND = 29
S_QB = 30; S_SEG = 31
S_T0 = 56; S_T1 = 57; S_T2 = 58; S_T3 = 59
S_QB2 = 60; S_N2 = 61; S_OOB = 62; S_D = 63; S_PART = 64; S_ENDACT = 65; S_QROW = 66; S_SPIN = 67
S_RET = 68

V_L16 = 1
V_KA = [2, 3]; V_VA = 4; V_B = 5; V_DMA = 6; V_U = [7, 8]
V_T = 9
V_S = [16, 32]
V_P = 48
V_CI = 56
V_L = 64
V_ONE = 72
V_X = 76
V_O = 128
A_Q = [0, 64]
A_R = 128

def Sreg(p, kt, qt, r=None):
    b = V_S[p] + (kt * 2 + qt) * 4
    return v(b, 4) if r is None else v(b + r)
def Oreg(dt, qt):
    return V_O + (dt * 2 + qt) * 4
def Qf(qt, f, qset=0):
    return a(A_Q[qset] + (qt * 8 + f) * 4, 4)
def ring(n):
    return a(A_R + (n % 16) * 4, 4)

def kread(n, areg):
    f, kt = n >> 1, n & 1
    return "ds_read_b128 %s, %s offset:%d" % (ring(n), v(areg), (kt * 8 + f) * 1024)
def vread(n, areg):
    return "ds_read_b128 %s, %s offset:%d" % (ring(n), v(areg), n * 1024)

def dma_k(p, m):
    return "buffer_load_dwordx4 %s, %s, %s offen offset:%d lds" % (v(V_DMA), s(S_K, 4), s(S_SRC[p]), m * 1024)
def dma_v(p, m):
    return "buffer_load_dwordx4 %s, %s, %s offen offset:%d lds" % (v(V_DMA), s(S_V, 4), s(S_SRC[p]), m * 1024)

def next_src(dst, src):
    return ["s_add_u32 %s, %s, 16384" % (s(dst), s(src)),
            "s_cmp_eq_u32 %s, %s" % (s(dst), s(S_E1)),
            "s_cselect_b32 %s, %s, %s" % (s(dst), s(S_S2), s(dst)),
            "s_cmp_eq_u32 %s, %s" % (s(dst), s(S_E2)),
            "s_cselect_b32 %s, %s, %s" % (s(dst), s(S_OOB), s(dst))]

def qk_mfmas(p, first):
    out = []
    for n in range(16):
        f, kt = n >> 1, n & 1
        for qt in range(2):
            C = ("0" if first else v(V_CI + qt * 4, 4)) if f == 0 else Sreg(p, kt, qt)
            out.append(mf16(Sreg(p, kt, qt), ring(n), Qf(qt, f), C))
    return out

def exp_list(p):
    ex = []; cv = []
    for qt in range(2):
        for kt in range(2):
            for r in range(4):
                ex.append("v_exp_f32 %s, %s" % (Sreg(p, kt, qt, r), Sreg(p, kt, qt, r)))
            for h in range(2):
                cv.append("v_cvt_pk_bf16_f32 %s, %s, %s" % (v(V_P + qt * 4 + kt * 2 + h), Sreg(p, kt, qt, 2 * h), Sreg(p, kt, qt, 2 * h + 1)))
    return ex, cv

def max_tree(p):
    x = [Sreg(p, kt, qt, r) for qt in range(2) for kt in range(2) for r in range(4)]
    T = V_T
    o = ["v_max3_f32 %s, %s, %s, %s" % (v(T), x[0], x[1], x[2]),
         "v_max3_f32 %s, %s, %s, %s" % (v(T + 1), x[3], x[4], x[5]),
         "v_max3_f32 %s, %s, %s, %s" % (v(T + 2), x[6], x[7], x[8]),
         "v_max3_f32 %s, %s, %s, %s" % (v(T), v(T), x[9], x[10]),
         "v_max3_f32 %s, %s, %s, %s" % (v(T + 1), v(T + 1), x[11], x[12]),
         "v_max3_f32 %s, %s, %s, %s" % (v(T + 2), v(T + 2), x[13], x[14]),
         "v_max3_f32 %s, %s, %s, %s" % (v(T), v(T), v(T + 1), x[15]),
         "v_max_f32 %s, %s, %s" % (v(T), v(T), v(T + 2)),
         "v_cmp_lt_f32 vcc, 0x41c00000, %s" % v(T)]
    return o

def body(p, final, opts, wv=0):
    q = p ^ 1
    out = []
    barpos = opts.get("k2barpos", 30)
    if barpos < 0:
        out += ["s_waitcnt vmcnt(12)", "s_barrier"]
    pre = ["s_add_u32 %s, %s, 16384" % (s(S_DM0[p]), s(S_DM0[q])),
           "s_and_b32 %s, %s, 0xffff" % (s(S_DM0[p]), s(S_DM0[p])),
           "v_add_u32 %s, %s, %s" % (v(V_VA), s(S_DM0[p]), v(V_B)),
           "v_xor_b32 %s, 0x18000, %s" % (v(V_KA[p]), v(V_VA))]
    ex, cv = exp_list(p)
    def rd(n):
        if n < 16:
            return None if final else kread(n, V_KA[q])
        if n < 32:
            return vread(n - 16, V_VA)
        return None if final else kread(n - 32, V_KA[p])
    m0k = "s_mov_b32 m0, %s" % s(S_DM0[p])
    m0v = "s_add_u32 m0, %s, 0x10000" % s(S_DM0[q])
    ns = next_src(S_SRC[q], S_SRC[p])
    if not final:
        mA = qk_mfmas(q, False)
        gA = [[] for _ in range(32)]
        out += pre[0:2]
        gA[0] += [pre[2]]
        for n in range(16):
            gA[2 * n].append(rd(n + 12))
        gA[1] += [pre[3]]
        for k in range(16):
            gA[2 * k + 1].append(ex[k])
        for k in range(7):
            gA[4 * k + 4].append(cv[k])
        shift = opts.get("k2shift", 0)
        kpos = [6, 14, 22, 30]; vpos = [9, 15, 21, 27]
        if shift and wv >= 2:
            kpos = [2, 10, 18, 26]
            out.append(m0k)
        else:
            gA[2] += [m0k]
        for m, g in enumerate(kpos):
            gA[g].append(dma_k(p, m))
        for m in range(32):
            if m % 8 == 0:
                out.append("s_waitcnt lgkmcnt(8)")
            out.append(mA[m]); out += gA[m]
    else:
        out += ["s_waitcnt lgkmcnt(0)"]
        out += pre[0:3]
        out += [m0k]
        for n in range(4, 16):
            out.append(rd(n + 12))
        for k in range(16):
            out.append(ex[k])
            if k % 4 == 0:
                out.append(dma_k(p, k // 4))
            if (k & 1) and k >= 3:
                out.append(cv[(k >> 1) - 1])
        out.append("s_nop 0")
    mB = []
    fr = []
    for dt in range(16):
        for qt in range(2):
            mB.append(mf16(v(Oreg(dt, qt), 4), ring(dt), v(V_P + qt * 4, 4), v(Oreg(dt, qt), 4))); fr.append((dt, qt))
            if dt == 0:
                mB.append(mf16(v(V_L + qt * 4, 4), v(V_ONE, 4), v(V_P + qt * 4, 4), v(V_L + qt * 4, 4))); fr.append(None)
    nB = len(mB)
    gB = [[] for _ in range(nB)]
    gB[0] += [cv[7]]
    first_of = {}
    for m, x in enumerate(fr):
        if x is not None and x[1] == 0:
            first_of[x[0]] = m
    for dt in range(16):
        x = rd(16 + dt + 12)
        if x is not None:
            gB[first_of[dt]].append(x)
    if not final:
        mt = max_tree(q)
        gB[3] += ["s_cmp_ge_u32 %s, %s" % (s(S_TABS), s(S_DIAG))]
        gB[5] += ["s_cbranch_scc1 L_k2_mask%d_%d" % (p, wv), "L_k2_maskret%d_%d:" % (p, wv)]
        pos = [7, 7, 11, 11, 13, 13, 17, 17, 19]
        for x, g in zip(mt, pos):
            gB[g].append(x)
    gB[6] += [m0v]
    vpos = [9, 15, 21, 27]
    if opts.get("k2shift", 0) and wv >= 2:
        vpos = [7, 13, 19, 25] if False else [11, 17, 23, 27]
        vpos = [8 + 1, 15, 21, 27]
        vpos = [12, 18, 24, 27] if opts.get("k2shift") == 2 else vpos
    for m, g in enumerate(vpos):
        gB[g].append(dma_v(q, m))
    gB[23] += ["s_add_u32 %s, %s, 1" % (s(S_TABS), s(S_TABS))]
    if barpos < 0:
        gB[29] += ns[0:2]
        gB[31] += ns[2:4]
        gB[33] += ns[4:5]
    else:
        gB[28] += ns[0:1]
        gB[29] += ns[1:3]
        gB[31] += ns[3:5]
        assert barpos > 27
        gB[barpos] += ["s_waitcnt vmcnt(12)", "s_barrier"]
        dl = opts.get("k2delay", 0) * wv
        while dl > 0:
            gB[barpos] += ["s_nop %d" % (min(dl, 16) - 1)]
            dl -= 16
    for m in range(nB):
        if fr[m] is not None and fr[m][1] == 0 and fr[m][0] % 4 == 0:
            k = {0: 8, 4: 8, 8: 4, 12: 0}[fr[m][0]] if final else 8
            out.append("s_waitcnt lgkmcnt(%d)" % k)
        out.append(mB[m]); out += gB[m]
    if not final:
        out += ["s_cbranch_vccnz L_k2_resc%d_%d" % (p, wv), "L_k2_rescret%d_%d:" % (p, wv)]
        def drop(pred):
            return [x for x in out if not pred(x)]
        if opts.get("k2noexp"): out = drop(lambda x: x.startswith("v_exp"))
        if opts.get("k2nocvt"): out = drop(lambda x: x.startswith("v_cvt"))
        if opts.get("k2nodma"): out = drop(lambda x: " lds" in x)
        if opts.get("k2nobar"): out = drop(lambda x: x.startswith("s_barrier"))
        if opts.get("k2noreads"): out = drop(lambda x: x.startswith("ds_read") or "lgkmcnt" in x)
        if opts.get("k2nomax"): out = drop(lambda x: x.startswith("v_max") or x.startswith("v_cmp") or x.startswith("s_cbranch_vccnz"))
    return out

def mask_block(p_s, ret, lbl):
    o = [lbl + ":"]
    o += ["s_lshl_b32 %s, %s, 5" % (s(S_D), s(S_TABS)),
          "s_sub_u32 %s, %s, %s" % (s(S_D), s(S_QROW), s(S_D)),
          "v_add_u32 %s, %s, %s" % (v(V_X), s(S_D), v(V_U[0])),
          "v_add_u32 %s, %s, %s" % (v(V_X + 1), s(S_D), v(V_U[1])),
          "v_mov_b32 %s, 0xff800000" % v(V_X + 2),
          "s_nop 4"]
    for qt in range(2):
        for kt in range(2):
            for r in range(4):
                o += ["v_cmp_gt_i32 vcc, %d, %s" % (16 * kt + r, v(V_X + qt)),
                      "s_nop 1",
                      "v_cndmask_b32 %s, %s, %s, vcc" % (Sreg(p_s, kt, qt, r), Sreg(p_s, kt, qt, r), v(V_X + 2))]
    o += ["s_nop 0", "s_branch %s" % ret]
    return o

def rowmax(qt, p_s, dst, tmp):
    x = [Sreg(p_s, kt, qt, r) for kt in range(2) for r in range(4)]
    return ["v_max3_f32 %s, %s, %s, %s" % (v(dst), x[0], x[1], x[2]),
            "v_max3_f32 %s, %s, %s, %s" % (v(tmp), x[3], x[4], x[5]),
            "v_max3_f32 %s, %s, %s, %s" % (v(dst), v(dst), x[6], x[7]),
            "v_max_f32 %s, %s, %s" % (v(dst), v(dst), v(tmp)),
            "v_mov_b32 %s, %s" % (v(tmp), v(dst)),
            "s_nop 1",
            "v_permlane32_swap_b32 %s, %s" % (v(dst), v(tmp)),
            "s_nop 1",
            "v_max_f32 %s, %s, %s" % (v(dst), v(dst), v(tmp)),
            "v_mov_b32 %s, %s" % (v(tmp), v(dst)),
            "s_nop 1",
            "v_permlane16_swap_b32 %s, %s" % (v(dst), v(tmp)),
            "s_nop 1",
            "v_max_f32 %s, %s, %s" % (v(dst), v(dst), v(tmp))]

def resc_block(p_s, ret, lbl):
    o = [lbl + ":", "s_nop 7", "s_nop 1"]
    X = V_X
    for qt in range(2):
        o += rowmax(qt, p_s, X, X + 1)
        o += ["v_max_f32 %s, 0, %s" % (v(X), v(X)),
              "v_exp_f32 %s, -%s" % (v(X + 2), v(X))]
        for kt in range(2):
            for r in range(4):
                o += ["v_sub_f32 %s, %s, %s" % (Sreg(p_s, kt, qt, r), Sreg(p_s, kt, qt, r), v(X))]
        for r in range(4):
            o += ["v_sub_f32 %s, %s, %s" % (v(V_CI + qt * 4 + r), v(V_CI + qt * 4 + r), v(X))]
        for r in range(4):
            o += ["v_mul_f32 %s, %s, %s" % (v(V_L + qt * 4 + r), v(V_L + qt * 4 + r), v(X + 2))]
        for dt in range(16):
            for r in range(4):
                o += ["v_mul_f32 %s, %s, %s" % (v(Oreg(dt, qt) + r), v(Oreg(dt, qt) + r), v(X + 2))]
    o += ["s_nop 1", "s_branch %s" % ret]
    return o

def seg_prologue(A):
    for n in range(16):
        A(kread(n, V_KA[0]))
    for r in range(128):
        A("v_mov_b32 %s, 0" % v(V_O + r))
    for r in range(8):
        A("v_mov_b32 %s, 0" % v(V_L + r))
    A("s_waitcnt lgkmcnt(0)")
    A(qk_mfmas(0, True))
    for n in range(12):
        A(kread(n, V_KA[1]))
    A("s_nop 7")
    A("s_cmp_ge_u32 %s, %s" % (s(S_TABS), s(S_DIAG)))
    A("s_cbranch_scc1 L_k2_maskP")
    A.label("L_k2_maskPret")
    X = V_X
    for qt in range(2):
        A(rowmax(qt, 0, X, X + 1))
        for kt in range(2):
            for r in range(4):
                A("v_sub_f32 %s, %s, %s" % (Sreg(0, kt, qt, r), Sreg(0, kt, qt, r), v(X)))
        for r in range(4):
            A("v_sub_f32 %s, 0, %s" % (v(V_CI + qt * 4 + r), v(X)))
    A("s_add_u32 %s, %s, 1" % (s(S_TABS), s(S_TABS)))
    A("s_waitcnt vmcnt(12)")
    A("s_barrier")

def load_q(A, qset, qb_sgpr):
    A("s_lshl_b32 %s, %s, 3" % (s(S_T0), s(qb_sgpr)))
    A("s_lshl_b32 %s, %s, 1" % (s(S_T1), s(S_WAVE)))
    A("s_add_u32 %s, %s, %s" % (s(S_T0), s(S_T0), s(S_T1)))
    A("s_lshl_b32 %s, %s, 13" % (s(S_T0), s(S_T0)))
    A("s_lshl_b32 %s, %s, 20" % (s(S_T1), s(S_HEAD)))
    A("s_add_u32 %s, %s, %s" % (s(S_T0), s(S_T0), s(S_T1)))
    A("s_add_u32 %s, %s, %d" % (s(S_T0), s(S_T0), WS_Q))
    for k in range(16):
        if k % 4 == 0 and k:
            A("s_add_u32 %s, %s, 4096" % (s(S_T0), s(S_T0)))
        A("buffer_load_dwordx4 %s, %s, %s, %s offen offset:%d" % (a(A_Q[qset] + 4 * k, 4), v(V_L16), s(S_WS, 4), s(S_T0), (k % 4) * 1024))

def ctx_base(A, dst):
    A("s_lshl_b32 %s, %s, 3" % (s(dst), s(S_QB)))
    A("s_lshl_b32 %s, %s, 1" % (s(S_T1), s(S_WAVE)))
    A("s_add_u32 %s, %s, %s" % (s(dst), s(dst), s(S_T1)))
    A("s_lshl_b32 %s, %s, 4" % (s(dst), s(dst)))
    A("s_add_u32 %s, %s, %s" % (s(dst), s(dst), s(S_HEAD)))
    A("s_lshl_b32 %s, %s, 13" % (s(dst), s(dst)))
    A("s_add_u32 %s, %s, %d" % (s(dst), s(dst), WS_CTX))

def epi_final(A, merge):
    X = V_X
    AP = [64, 192]
    def areg(unit, r):
        return a((64 + unit * 4 + r) if unit < 16 else (192 + (unit - 16) * 4 + r))
    ctx_base(A, S_T0)
    sc = [X + 4, X + 5]; sc2 = [X + 6, X + 7]
    for qt in range(2):
        if not merge:
            A("v_rcp_f32 %s, %s" % (v(sc[qt]), v(V_L + qt * 4)))
        else:
            m2 = X + 8 + qt; l2 = X + 10 + qt
            A("v_sub_f32 %s, 0, %s" % (v(X), v(V_CI + qt * 4)))
            A("v_max_f32 %s, %s, %s" % (v(X + 1), v(X), v(m2)))
            A("v_sub_f32 %s, %s, %s" % (v(X), v(X), v(X + 1)))
            A("v_sub_f32 %s, %s, %s" % (v(X + 2), v(m2), v(X + 1)))
            A("v_exp_f32 %s, %s" % (v(X), v(X)))
            A("v_exp_f32 %s, %s" % (v(X + 2), v(X + 2)))
            A("s_nop 0")
            A("v_mul_f32 %s, %s, %s" % (v(X + 1), v(X), v(V_L + qt * 4)))
            A("v_fmac_f32 %s, %s, %s" % (v(X + 1), v(X + 2), v(l2)))
            A("v_rcp_f32 %s, %s" % (v(X + 1), v(X + 1)))
            A("s_nop 0")
            A("v_mul_f32 %s, %s, %s" % (v(sc[qt]), v(X), v(X + 1)))
            A("v_mul_f32 %s, %s, %s" % (v(sc2[qt]), v(X + 2), v(X + 1)))
    A("s_nop 0")
    R = X + 12
    k = 0
    for qt in range(2):
        for f in range(8):
            t = R + (k & 1) * 12
            for h in range(2):
                dt = 2 * f + h
                for r in range(4):
                    o = Oreg(dt, qt) + r
                    if not merge:
                        A("v_mul_f32 %s, %s, %s" % (v(t + h * 4 + r), v(o), v(sc[qt])))
                    else:
                        A("v_accvgpr_read_b32 %s, %s" % (v(t + h * 4 + r), areg(dt * 2 + qt, r)))
                        A("v_mul_f32 %s, %s, %s" % (v(o), v(o), v(sc[qt])))
                        A("v_fma_f32 %s, %s, %s, %s" % (v(t + h * 4 + r), v(t + h * 4 + r), v(sc2[qt]), v(o)))
            for r in range(4):
                A("v_cvt_pk_bf16_f32 %s, %s, %s" % (v(t + 8 + r), v(t + 2 * r), v(t + 2 * r + 1)))
            if f % 4 == 0:
                A("s_add_u32 %s, %s, %d" % (s(S_T1), s(S_T0), qt * 131072 + f * 1024))
            A("buffer_store_dwordx4 %s, %s, %s, %s offen offset:%d" % (v(t + 8, 4), v(V_L16), s(S_WS, 4), s(S_T1), (f % 4) * 1024))
            k += 1

def part_base(A, dst):
    A("s_lshl_b32 %s, %s, 3" % (s(dst), s(S_HEAD)))
    A("s_add_u32 %s, %s, %s" % (s(dst), s(dst), s(S_PAIR)))
    A("s_mul_i32 %s, %s, %d" % (s(dst), s(dst), 135168))
    A("s_mul_i32 %s, %s, %d" % (s(S_T1), s(S_WAVE), 33792))
    A("s_add_u32 %s, %s, %s" % (s(dst), s(dst), s(S_T1)))
    A("s_add_u32 %s, %s, %d" % (s(dst), s(dst), WS_PART))

def flag_off(A, dst):
    A("s_lshl_b32 %s, %s, 3" % (s(dst), s(S_HEAD)))
    A("s_add_u32 %s, %s, %s" % (s(dst), s(dst), s(S_PAIR)))
    A("s_lshl_b32 %s, %s, 7" % (s(dst), s(dst)))
    A("s_add_u32 %s, %s, %d" % (s(dst), s(dst), WS_FLAG))

def epi_publish(A):
    X = V_X
    part_base(A, S_T0)
    for qt in range(2):
        A("v_sub_f32 %s, 0, %s" % (v(X + qt), v(V_CI + qt * 4)))
        A("v_mov_b32 %s, %s" % (v(X + 2 + qt), v(V_L + qt * 4)))
    for u in range(32):
        if u % 4 == 0:
            A("s_add_u32 %s, %s, %d" % (s(S_T1), s(S_T0), u * 1024))
        A("buffer_store_dwordx4 %s, %s, %s, %s offen offset:%d sc0 sc1" % (v(V_O + 4 * u, 4), v(V_L16), s(S_WS, 4), s(S_T1), (u % 4) * 1024))
    A("s_add_u32 %s, %s, %d" % (s(S_T1), s(S_T0), 32768))
    A("buffer_store_dwordx4 %s, %s, %s, %s offen sc0 sc1" % (v(X, 4), v(V_L16), s(S_WS, 4), s(S_T1)))
    A("s_waitcnt vmcnt(0)")
    A("s_barrier")
    A("s_cmp_lg_u32 %s, 0" % s(S_WAVE))
    A("s_cbranch_scc1 L_k2_pubdone")
    flag_off(A, S_T0)
    A("v_mov_b32 %s, 0" % v(X))
    A("v_mov_b32 %s, 0x600df1a6" % v(X + 1))
    A("s_mov_b64 exec, 1")
    A("buffer_store_dword %s, %s, %s, %s offen sc0 sc1" % (v(X + 1), v(X), s(S_WS, 4), s(S_T0)))
    A("s_mov_b64 exec, -1")
    A.label("L_k2_pubdone")

def epi_merge_load(A):
    X = V_X
    flag_off(A, S_T0)
    A("v_mov_b32 %s, 0" % v(X))
    A("s_mov_b32 %s, 0" % s(S_SPIN))
    A("s_cmp_lg_u32 %s, 0" % s(S_WAVE))
    A("s_cbranch_scc1 L_k2_polled")
    A.label("L_k2_poll")
    A("buffer_load_dword %s, %s, %s, %s offen sc0 sc1" % (v(X + 1), v(X), s(S_WS, 4), s(S_T0)))
    A("s_waitcnt vmcnt(0)")
    A("v_readfirstlane_b32 %s, %s" % (s(S_T1), v(X + 1)))
    A("s_add_u32 %s, %s, 1" % (s(S_SPIN), s(S_SPIN)))
    A("s_cmp_eq_u32 %s, 0x600df1a6" % s(S_T1))
    A("s_cbranch_scc1 L_k2_polled")
    A("s_sleep 2")
    A("s_cmp_lt_u32 %s, 200000" % s(S_SPIN))
    A("s_cbranch_scc1 L_k2_poll")
    A.label("L_k2_polled")
    A("s_barrier")
    part_base(A, S_T0)
    for u in range(32):
        if u % 4 == 0:
            A("s_add_u32 %s, %s, %d" % (s(S_T1), s(S_T0), u * 1024))
        dst = (64 + u * 4) if u < 16 else (192 + (u - 16) * 4)
        A("buffer_load_dwordx4 %s, %s, %s, %s offen offset:%d sc0 sc1" % (a(dst, 4), v(V_L16), s(S_WS, 4), s(S_T1), (u % 4) * 1024))
    A("s_add_u32 %s, %s, %d" % (s(S_T1), s(S_T0), 32768))
    A("buffer_load_dwordx4 %s, %s, %s, %s offen sc0 sc1" % (v(X + 8, 4), v(V_L16), s(S_WS, 4), s(S_T1)))
    A("s_waitcnt vmcnt(0)")

def b2(A):
    HB = S_T0; TQ = S_T1; TB = S_T2; TC = S_T3
    A("s_and_b32 %s, s2, 15" % s(S_HEAD))
    A("s_lshr_b32 %s, s2, 4" % s(S_QB))
    A("s_lshl_b32 %s, %s, 2" % (s(TQ), s(S_QB)))
    A("s_add_u32 %s, %s, %s" % (s(TQ), s(TQ), s(S_WAVE)))
    A("s_lshl_b32 %s, %s, 17" % (s(HB), s(S_HEAD)))
    A("s_lshl_b32 %s, %s, 11" % (s(TB), s(TQ)))
    A("s_add_u32 %s, %s, %s" % (s(TB), s(TB), s(HB)))
    A("s_add_u32 %s, %s, %d" % (s(TC), s(TB), WS_BQ))
    for qt in range(2):
        A("buffer_load_dwordx4 %s, %s, %s, %s offen offset:%d" % (a(4 * qt, 4), v(V_L16), s(S_WS, 4), s(TC), qt * 1024))
    for tt in range(9):
        A("s_sub_u32 %s, %s, %d" % (s(S_D), s(TB), (8 - tt) * 2048))
        A("s_cmp_ge_u32 %s, %d" % (s(TQ), 8 - tt))
        A("s_cselect_b32 %s, %s, %s" % (s(S_D), s(S_D), s(S_OOB)))
        A("s_add_u32 %s, %s, %d" % (s(TC), s(S_D), WS_BK))
        for kt in range(2):
            A("buffer_load_dwordx4 %s, %s, %s, %s offen offset:%d" % (a(8 + (tt * 2 + kt) * 4, 4), v(V_L16), s(S_WS, 4), s(TC), kt * 1024))
        A("s_add_u32 %s, %s, %d" % (s(TC), s(S_D), WS_BV))
        for dt in range(2):
            A("buffer_load_dwordx4 %s, %s, %s, %s offen offset:%d" % (a(80 + (tt * 2 + dt) * 4, 4), v(V_L16), s(S_WS, 4), s(TC), dt * 1024))
    def S(tt, kt, qt, r=None):
        idx = (tt * 4 + kt * 2 + qt) * 4
        b = 128 + idx if idx < 128 else 84 + (idx - 128)
        return v(b, 4) if r is None else v(b + r)
    X = V_X
    A("v_mov_b32 %s, 0xff800000" % v(X))
    A("s_waitcnt vmcnt(0)")
    for tt in range(9):
        for kt in range(2):
            for qt in range(2):
                A(mf16(S(tt, kt, qt), a(8 + (tt * 2 + kt) * 4, 4), a(4 * qt, 4), "0"))
    A("s_nop 7")
    for qt in range(2):
        for kt in range(2):
            for r in range(4):
                A("v_cmp_gt_i32 vcc, %d, %s" % (16 * kt + r, v(V_U[qt])))
                A("s_nop 1")
                A("v_cndmask_b32 %s, %s, %s, vcc" % (S(8, kt, qt, r), S(8, kt, qt, r), v(X)))
                A("v_cndmask_b32 %s, %s, %s, vcc" % (S(0, kt, qt, r), v(X), S(0, kt, qt, r)))
    for tt in range(8):
        A("s_cmp_ge_u32 %s, %d" % (s(TQ), 8 - tt))
        A("s_cbranch_scc1 L_b2_ok%d" % tt)
        for kt in range(2):
            for qt in range(2):
                for r in range(4):
                    A("v_mov_b32 %s, %s" % (S(tt, kt, qt, r), v(X)))
        A.label("L_b2_ok%d" % tt)
    P = 100
    O = 116
    O = 16; L = 32
    M = [X + 2, X + 3]
    for qt in range(2):
        xs = [S(tt, kt, qt, r) for tt in range(9) for kt in range(2) for r in range(4)]
        A("v_max3_f32 %s, %s, %s, %s" % (v(X + 4), xs[0], xs[1], xs[2]))
        A("v_max3_f32 %s, %s, %s, %s" % (v(X + 5), xs[3], xs[4], xs[5]))
        k = 6; alt = 0
        while k + 1 < len(xs):
            A("v_max3_f32 %s, %s, %s, %s" % (v(X + 4 + alt), v(X + 4 + alt), xs[k], xs[k + 1]))
            k += 2; alt ^= 1
        A("v_max_f32 %s, %s, %s" % (v(M[qt]), v(X + 4), v(X + 5)))
        A("v_mov_b32 %s, %s" % (v(X + 4), v(M[qt])))
        A("s_nop 1")
        A("v_permlane32_swap_b32 %s, %s" % (v(M[qt]), v(X + 4)))
        A("s_nop 1")
        A("v_max_f32 %s, %s, %s" % (v(M[qt]), v(M[qt]), v(X + 4)))
        A("v_mov_b32 %s, %s" % (v(X + 4), v(M[qt])))
        A("s_nop 1")
        A("v_permlane16_swap_b32 %s, %s" % (v(M[qt]), v(X + 4)))
        A("s_nop 1")
        A("v_max_f32 %s, %s, %s" % (v(M[qt]), v(M[qt]), v(X + 4)))
    for tt in range(9):
        pb = P + (tt & 1) * 8
        for qt in range(2):
            for kt in range(2):
                for r in range(4):
                    A("v_sub_f32 %s, %s, %s" % (S(tt, kt, qt, r), S(tt, kt, qt, r), v(M[qt])))
                for r in range(4):
                    A("v_exp_f32 %s, %s" % (S(tt, kt, qt, r), S(tt, kt, qt, r)))
        for qt in range(2):
            for kt in range(2):
                for h in range(2):
                    A("v_cvt_pk_bf16_f32 %s, %s, %s" % (v(pb + qt * 4 + kt * 2 + h), S(tt, kt, qt, 2 * h), S(tt, kt, qt, 2 * h + 1)))
        A("s_nop 1")
        for qt in range(2):
            for dt in range(2):
                o = v(O + (dt * 2 + qt) * 4, 4)
                A(mf16(o, a(80 + (tt * 2 + dt) * 4, 4), v(pb + qt * 4, 4), "0" if tt == 0 else o))
            l = v(L + qt * 4, 4)
            A(mf16(l, v(V_ONE, 4), v(pb + qt * 4, 4), "0" if tt == 0 else l))
    A("s_nop 7")
    A("v_cmp_gt_u32 vcc, 768, %s" % v(V_L16))
    A("s_lshl_b32 %s, %s, 1" % (s(TC), s(TQ)))
    A("s_lshl_b32 %s, %s, 4" % (s(TC), s(TC)))
    A("s_add_u32 %s, %s, %s" % (s(TC), s(TC), s(S_HEAD)))
    A("s_lshl_b32 %s, %s, 10" % (s(TC), s(TC)))
    A("s_add_u32 %s, %s, %d" % (s(TC), s(TC), WS_CTXB))
    for qt in range(2):
        A("v_rcp_f32 %s, %s" % (v(X + 4), v(L + qt * 4)))
        A("s_nop 0")
        A("v_cndmask_b32 %s, 0, %s, vcc" % (v(X + 5), v(X + 4)))
        for dt in range(2):
            for r in range(4):
                A("v_mul_f32 %s, %s, %s" % (v(P + dt * 4 + r), v(O + (dt * 2 + qt) * 4 + r), v(X + 4 + dt)))
        for h in range(4):
            A("v_cvt_pk_bf16_f32 %s, %s, %s" % (v(P + 8 + qt * 4 + h), v(P + 2 * h), v(P + 2 * h + 1)))
        A("s_add_u32 %s, %s, %d" % (s(S_D), s(TC), qt * 16384))
        A("buffer_store_dwordx4 %s, %s, %s, %s offen" % (v(P + 8 + qt * 4, 4), v(V_L16), s(S_WS, 4), s(S_D)))

def gen_k2(name, opts):
    stamps = opts.get("stamps", False)
    split = opts.get("split", 34)
    A = Asm()
    STAMPV[0] = 127
    A(".globl %s" % name); A(".p2align 8"); A(".type %s,@function" % name); A.label(name)
    A("s_cmp_ge_u32 s2, 256")
    A("s_cbranch_scc1 L_k2_end")
    load_ptrs(A)
    A("v_lshrrev_b32 v1, 6, v0")
    A("s_nop 0")
    A("v_readfirstlane_b32 %s, v1" % s(S_WAVE))
    A("s_mov_b32 %s, 0x7f000000" % s(S_OOB))
    A("s_waitcnt lgkmcnt(0)")
    if stamps:
        stamp_init(A); stamp(A)
    set_srd(A, S_WS, P_WS, WS_SIZE)
    set_srd(A, S_K, P_WS, 16 * MB)
    A("s_add_u32 %s, %s, %d" % (s(S_V), s(P_WS), WS_V))
    A("s_addc_u32 %s, %s, 0" % (s(S_V + 1), s(P_WS + 1)))
    A("s_mov_b32 %s, %d" % (s(S_V + 2), 16 * MB))
    A("s_mov_b32 %s, 0x20000" % s(S_V + 3))
    A("s_and_b32 %s, s2, 7" % s(S_T0))
    A("s_lshr_b32 %s, s2, 3" % s(S_T1))
    A("s_lshl_b32 %s, %s, 1" % (s(S_HEAD), s(S_T0)))
    A("s_and_b32 %s, %s, 1" % (s(S_T2), s(S_T1)))
    A("s_add_u32 %s, %s, %s" % (s(S_HEAD), s(S_HEAD), s(S_T2)))
    A("s_lshr_b32 %s, %s, 1" % (s(S_T1), s(S_T1)))
    A("s_and_b32 %s, %s, 1" % (s(S_ROLE), s(S_T1)))
    A("s_lshr_b32 %s, %s, 1" % (s(S_PAIR), s(S_T1)))
    A("v_and_b32 %s, 63, v0" % v(V_T))
    A("v_lshlrev_b32 %s, 4, %s" % (v(V_L16), v(V_T)))
    A("s_lshl_b32 %s, %s, 12" % (s(S_T0), s(S_WAVE)))
    A("v_add_u32 %s, %s, %s" % (v(V_DMA), s(S_T0), v(V_L16)))
    A("v_subrev_u32 %s, %s, %s" % (v(V_B), s(S_T0), v(V_L16)))
    A("v_add_u32 %s, 0x10000, %s" % (v(V_B), v(V_B)))
    A("v_and_b32 %s, 15, %s" % (v(V_T + 1), v(V_T)))
    A("v_lshrrev_b32 %s, 4, %s" % (v(V_T + 2), v(V_T)))
    A("v_lshlrev_b32 %s, 2, %s" % (v(V_T + 2), v(V_T + 2)))
    A("v_sub_u32 %s, %s, %s" % (v(V_U[0]), v(V_T + 1), v(V_T + 2)))
    A("v_add_u32 %s, 16, %s" % (v(V_U[1]), v(V_U[0])))
    for r in range(4):
        A("v_mov_b32 %s, 0x3f803f80" % v(V_ONE + r))
    A("s_sub_u32 %s, 15, %s" % (s(S_QB), s(S_PAIR)))
    A("s_cmp_eq_u32 %s, 7" % s(S_PAIR))
    A("s_cselect_b32 %s, 32, %d" % (s(S_T3), split))
    A("s_lshl_b32 %s, %s, 20" % (s(S_T2), s(S_HEAD)))
    A("s_cmp_eq_u32 %s, 0" % s(S_ROLE))
    A("s_cbranch_scc0 L_k2_roleS")
    A("s_mov_b32 %s, 0" % s(S_TABS))
    A("s_mov_b32 %s, %s" % (s(S_TEND), s(S_T3)))
    A("s_mov_b32 %s, %s" % (s(S_SRC[0]), s(S_T2)))
    A("s_lshl_b32 %s, %s, 14" % (s(S_E1), s(S_T3)))
    A("s_add_u32 %s, %s, %s" % (s(S_E1), s(S_E1), s(S_T2)))
    A("s_mov_b32 %s, %s" % (s(S_S2), s(S_OOB)))
    A("s_mov_b32 %s, 1" % s(S_E2))
    A("s_mov_b32 %s, 2" % s(S_ENDACT))
    A("s_branch L_k2_roledone")
    A.label("L_k2_roleS")
    A("s_mov_b32 %s, %s" % (s(S_TABS), s(S_T3)))
    A("s_add_u32 %s, %s, 1" % (s(S_TEND), s(S_QB)))
    A("s_lshl_b32 %s, %s, 2" % (s(S_TEND), s(S_TEND)))
    A("s_lshl_b32 %s, %s, 14" % (s(S_SRC[0]), s(S_T3)))
    A("s_add_u32 %s, %s, %s" % (s(S_SRC[0]), s(S_SRC[0]), s(S_T2)))
    A("s_lshl_b32 %s, %s, 14" % (s(S_E1), s(S_TEND)))
    A("s_add_u32 %s, %s, %s" % (s(S_E1), s(S_E1), s(S_T2)))
    A("s_mov_b32 %s, %s" % (s(S_S2), s(S_T2)))
    A("s_add_u32 %s, %s, 1" % (s(S_N2), s(S_PAIR)))
    A("s_lshl_b32 %s, %s, 2" % (s(S_N2), s(S_N2)))
    A("s_lshl_b32 %s, %s, 14" % (s(S_E2), s(S_N2)))
    A("s_add_u32 %s, %s, %s" % (s(S_E2), s(S_E2), s(S_T2)))
    A("s_mov_b32 %s, 1" % s(S_ENDACT))
    A.label("L_k2_roledone")
    A("s_mov_b32 %s, 0" % s(S_SEG))
    A("s_lshl_b32 %s, %s, 12" % (s(S_RET), s(S_WAVE)))
    def issue(srd, soff, slot, isv):
        A("s_add_u32 m0, %s, %d" % (s(S_RET), slot * 16384 + (65536 if isv else 0)))
        A("s_nop 0")
        for m in range(4):
            A("buffer_load_dwordx4 %s, %s, %s offen offset:%d lds" % (v(V_DMA), s(srd, 4), s(soff), m * 1024))
    issue(S_K, S_SRC[0], 0, False)
    load_q(A, 0, S_QB)
    A(next_src(S_T1, S_SRC[0])); A(next_src(S_T2, S_T1)); A(next_src(S_T3, S_T2))
    issue(S_K, S_T1, 1, False)
    issue(S_V, S_SRC[0], 0, True)
    issue(S_K, S_T2, 2, False)
    issue(S_V, S_T1, 1, True)
    issue(S_K, S_T3, 3, False)
    issue(S_V, S_T2, 2, True)
    A("s_mov_b32 %s, %s" % (s(S_SRC[1]), s(S_T3)))
    A(next_src(S_SRC[0], S_SRC[1]))
    A("s_mov_b32 %s, %s" % (s(S_T0), s(S_RET)))
    A("s_add_u32 %s, %s, %d" % (s(S_DM0[1]), s(S_T0), 3 * 16384))
    A("v_mov_b32 %s, %s" % (v(V_KA[0]), v(V_L16)))
    A("v_add_u32 %s, 16384, %s" % (v(V_KA[1]), v(V_L16)))
    A("s_waitcnt vmcnt(20)")
    A("s_barrier")
    if stamps:
        stamp(A)
    A("s_cmp_eq_u32 %s, 0" % s(S_ROLE))
    A("s_cbranch_scc1 L_k2_noq2")
    load_q(A, 1, S_PAIR)
    A.label("L_k2_noq2")
    A.label("L_k2_seg")
    A("s_lshl_b32 %s, %s, 2" % (s(S_DIAG), s(S_QB)))
    A("s_add_u32 %s, %s, %s" % (s(S_DIAG), s(S_DIAG), s(S_WAVE)))
    A("s_lshl_b32 %s, %s, 5" % (s(S_QROW), s(S_DIAG)))
    P = Asm(); seg_prologue(P); check(P.L, "k2 segpro"); A(P.L)
    ncopy = 4 if opts.get("k2copies", 1) == 4 else 1
    if ncopy == 4:
        for wv in range(1, 4):
            A("s_cmp_eq_u32 %s, %d" % (s(S_WAVE), wv))
            A("s_cbranch_scc1 L_k2_loop_%d" % wv)
    for wv in range(ncopy):
        b0 = body(0, False, opts, wv); b1 = body(1, False, opts, wv); bf = body(1, True, opts, wv)
        if not any(k.startswith("k2no") for k in opts):
            check(P.L[-60:] + b0 + b1 + b0 + bf, "k2 bodies")
        A(".p2align 6")
        A.label("L_k2_loop_%d" % wv)
        A(b0)
        A("s_cmp_eq_u32 %s, %s" % (s(S_TABS), s(S_TEND)))
        A("s_cbranch_scc1 L_k2_final_%d" % wv)
        A(b1)
        A("s_branch L_k2_loop_%d" % wv)
        A.label("L_k2_final_%d" % wv)
        A(bf)
        if wv < ncopy - 1:
            A("s_branch L_k2_segend")
    A.label("L_k2_segend")
    if stamps:
        stamp(A)
    A("s_nop 7")
    A("s_nop 1")
    A("s_cmp_eq_u32 %s, 1" % s(S_ENDACT))
    A("s_cbranch_scc1 L_k2_pub")
    A("s_cmp_eq_u32 %s, 2" % s(S_ENDACT))
    A("s_cbranch_scc0 L_k2_fin0")
    M = Asm(); epi_merge_load(M); epi_final(M, True); check(M.L, "k2 merge"); A(M.L)
    A("s_branch L_k2_done")
    A.label("L_k2_fin0")
    M = Asm(); epi_final(M, False); check(M.L, "k2 fin"); A(M.L)
    A("s_branch L_k2_done")
    A.label("L_k2_pub")
    M = Asm(); epi_publish(M); check(M.L, "k2 pub"); A(M.L)
    if stamps:
        stamp(A)
    A("s_mov_b32 %s, %s" % (s(S_QB), s(S_PAIR)))
    A("s_mov_b32 %s, 0" % s(S_TABS))
    A("s_mov_b32 %s, %s" % (s(S_TEND), s(S_N2)))
    A("s_mov_b32 %s, 0" % s(S_ENDACT))
    for r in range(64):
        A("v_accvgpr_mov_b32 %s, %s" % (a(A_Q[0] + r), a(A_Q[1] + r)))
    A("s_add_u32 %s, %s, 16384" % (s(S_T0), s(S_DM0[1])))
    A("s_and_b32 %s, %s, 0xffff" % (s(S_T0), s(S_T0)))
    A("v_add_u32 %s, %s, %s" % (v(V_KA[0]), s(S_T0), v(V_B)))
    A("v_subrev_u32 %s, 0x10000, %s" % (v(V_KA[0]), v(V_KA[0])))
    A("s_add_u32 %s, %s, 16384" % (s(S_T0), s(S_T0)))
    A("s_and_b32 %s, %s, 0xffff" % (s(S_T0), s(S_T0)))
    A("v_add_u32 %s, %s, %s" % (v(V_KA[1]), s(S_T0), v(V_B)))
    A("v_subrev_u32 %s, 0x10000, %s" % (v(V_KA[1]), v(V_KA[1])))
    A("s_branch L_k2_seg")
    A.label("L_k2_done")
    if stamps:
        stamp(A)
    X = Asm(); b2(X); check(X.L, "k2 b2"); A(X.L)
    if stamps:
        A("s_waitcnt vmcnt(0)")
        stamp(A)
        stamp_flush(A, S_WS, S_WAVE, 1, "L_k2_stf")
    A.label("L_k2_end")
    A("s_endpgm")
    for wv in range(ncopy):
        for p in range(2):
            mb = mask_block(p ^ 1, "L_k2_maskret%d_%d" % (p, wv), "L_k2_mask%d_%d" % (p, wv)); check(mb, "mask"); A(mb)
            rb = resc_block(p ^ 1, "L_k2_rescret%d_%d" % (p, wv), "L_k2_resc%d_%d" % (p, wv)); check(rb, "resc"); A(rb)
    mb = mask_block(0, "L_k2_maskPret", "L_k2_maskP"); A(mb)
    return A
```

```python
from common import *

LDS_BYTES = 131072
S_ACT = 4; S_W = 8; S_WS = 12
S_WAVE = 16; S_SOA = 17; S_SOW = 18; S_WSTEP = 19; S_CNT = 20; S_M0C = 21; S_M0W = 22
S_OUT = 23; S_TN = 26; S_ROA = 27; S_ROW = 28; S_T = 29; S_OOB = 30; S_TILE = 31
S_ASTR = 56; S_WSTR = 57; S_BT = 58; S_ROW0 = 59; S_TYPE = 60; S_T0 = 61; S_T1 = 62; S_T2 = 63; S_EPI = 64
S_SCALE = 65; S_ESCALE = 66; S_HASN = 67; S_EOUT = 68; S_EEPI = 69
S_DREM = 70; S_DTILE = 71; S_ACT2 = 72; S_W2 = 76; S_WSTEP2 = 80; S_OUT2 = 81; S_EPI2 = 82; S_SCALE2 = 83; S_TYPE2 = 84

V_L16 = 1
V_AC = 2
V_AW = 4
V_VC = 12
V_VW = 20
V_T = 28
FC = [36, 100]; FW = [68, 132]
V_AW2 = 164
V_VC2 = 172
V_VW2 = 180
V_E = 188
V_TCH = 240
V_TD = 241
V_GA = 242
S_TCH = 85

def acc_idx(ktype, i, j):
    if ktype:
        return (i * 8 + j) * 4
    return (((i >> 1) * 8 + j) * 2 + (i & 1)) * 4

def frag_reads(sub, buf):
    def rc(i):
        return "ds_read_b128 %s, %s offset:%d" % (v(FC[buf] + 4 * i, 4), v(V_AC + sub), i * 2048)
    def rw(j, t):
        return "ds_read_b64_tr_b16 %s, %s offset:%d" % (v(FW[buf] + 4 * j + 2 * t, 2), v(V_AW + j), 16384 * sub + 2048 * t)
    r = [rc(0)]
    for j in range(8):
        r.append(rw(j, 0)); r.append(rw(j, 1))
    for i in range(1, 8):
        r.append(rc(i))
    return r

def dma_c(m):
    return "buffer_load_dwordx4 %s, %s, %s offen offset:%d lds" % (v(V_VC + m), s(S_ACT, 4), s(S_SOA), (m & 3) * 1024)
def dma_w(m):
    return "buffer_load_dwordx4 %s, %s, %s offen offset:%d lds" % (v(V_VW + m), s(S_W, 4), s(S_SOW), (m & 3) * 1024)

def touch_prep(wv, opts, td=None):
    td = opts.get("k1touch", 3) if td is None else td
    if wv == 0:
        return ["s_add_u32 %s, %s, %d" % (s(S_TCH), s(S_SOA), 128 * td)]
    if wv == 1:
        return ["s_mul_i32 %s, %s, %d" % (s(S_TCH), s(S_WSTEP), td), "s_add_u32 %s, %s, %s" % (s(S_TCH), s(S_TCH), s(S_SOW))]
    return []
def touch_issue(wv):
    if wv == 0:
        return ["buffer_load_dword %s, %s, %s, %s offen" % (v(V_TD), v(V_TCH), s(S_ACT, 4), s(S_TCH))]
    if wv == 1:
        return ["buffer_load_dword %s, %s, %s, %s offen" % (v(V_TD), v(V_TCH), s(S_W, 4), s(S_TCH))]
    return ["global_load_dword %s, %s, off" % (v(V_TD), v(V_GA, 2))]

def global_touch_setup(A, opts={}):
    ID = S_T0; OFF = S_T1; LO = S_T2; HI = S_TCH
    A("v_and_b32 %s, 63, v0" % v(V_T))
    A("v_lshlrev_b32 %s, 7, %s" % (v(V_T), v(V_T)))
    A("s_lshl_b32 %s, s2, 1" % s(ID))
    A("s_add_u32 %s, %s, %s" % (s(ID), s(ID), s(S_WAVE)))
    A("s_sub_u32 %s, %s, 2" % (s(ID), s(ID)))
    A("s_min_u32 %s, %s, 511" % (s(ID), s(ID)))
    rounds = [(P_WQ, 448, P_BWO, 49), (P_WO, 448, P_WO, 1), (P_AX, 224, P_BX, 224), (P_BWQKV, 147, P_BWQKV, 1)]
    for r, (p0, n0, p1, n1) in enumerate(rounds):
        A("s_sub_u32 %s, %s, %d" % (s(OFF), s(ID), n0))
        A("s_min_u32 %s, %s, %d" % (s(OFF), s(OFF), n1 - 1))
        A("s_cmp_lt_u32 %s, %d" % (s(ID), n0))
        A("s_cselect_b32 %s, %s, %s" % (s(OFF), s(ID), s(OFF)))
        A("s_cselect_b32 %s, %s, %s" % (s(LO), s(p0), s(p1)))
        A("s_cselect_b32 %s, %s, %s" % (s(HI), s(p0 + 1), s(p1 + 1)))
        A("s_lshl_b32 %s, %s, 13" % (s(OFF), s(OFF)))
        A("s_add_u32 %s, %s, %s" % (s(LO), s(LO), s(OFF)))
        A("s_addc_u32 %s, %s, 0" % (s(HI), s(HI)))
        A("v_add_co_u32 %s, vcc, %s, %s" % (v(V_GA + 2 * r), s(LO), v(V_T)))
        A("v_mov_b32 %s, %s" % (v(V_GA + 2 * r + 1), s(HI)))
        A("s_nop 0")
        A("v_addc_co_u32 %s, vcc, 0, %s, vcc" % (v(V_GA + 2 * r + 1), v(V_GA + 2 * r + 1)))

def body(first, ktype, opts, wv=0):
    out = []
    tag = "%d_%d_%d" % (ktype, wv, 1 if first else 0)
    for sub in range(2):
        cur = sub; nxt = cur ^ 1
        mfs = []
        for i in range(8):
            for j in range(8):
                acc = a(acc_idx(ktype, i, j), 4)
                C = "0" if (first and sub == 0) else acc
                cf = v(FC[cur] + 4 * i, 4); wf = v(FW[cur] + 4 * j, 4)
                mfs.append(mf16(acc, wf, cf, C) if ktype else mf16(acc, cf, wf, C))
        gaps = [[] for _ in range(64)]
        if sub == 0:
            rd = frag_reads(1, nxt)
            for n, x in enumerate(rd):
                gaps[2 * n].append(x)
            if not first:
                d = [dma_w(3), ["s_add_u32 m0, %s, 4096" % s(S_M0W)], dma_w(4), dma_w(5), dma_w(6), dma_w(7)]
                pos = opts.get("k1p2", [3, 5, 9, 15, 21, 27])
                for x, p in zip(d, pos):
                    gaps[p] += x if isinstance(x, list) else [x]
            tp = opts.get("k1tpos", 33)
            gaps[tp - 2] += touch_prep(wv, opts)
            gaps[tp] += touch_issue(wv)
            if wv >= 2:
                for k in range(6):
                    gaps[tp + 2 + 2 * k] += ["v_mov_b32 %s, %s" % (v(V_GA + k), v(V_GA + k + 2))]
            bp = opts.get("k1barpos", 57)
            if first:
                gaps[bp] += ["s_cmp_eq_u32 %s, 0" % s(S_TILE),
                             "s_cbranch_scc1 L_k1_fw0_%s" % tag,
                             "s_waitcnt vmcnt(33) lgkmcnt(0)",
                             "s_branch L_k1_fw1_%s" % tag,
                             "L_k1_fw0_%s:" % tag,
                             "s_waitcnt vmcnt(3) lgkmcnt(0)",
                             "L_k1_fw1_%s:" % tag]
            else:
                gaps[bp] += ["s_waitcnt vmcnt(1) lgkmcnt(0)"]
            if not opts.get("nobar"):
                gaps[bp] += ["s_barrier"]
            dl = opts.get("k1delay", 2) * wv
            while dl > 0:
                gaps[bp] += ["s_nop %d" % (min(dl, 16) - 1)]
                dl -= 16
            gaps[bp + 1] += ["s_sub_u32 %s, %s, 1" % (s(S_DREM), s(S_DREM)),
                             "s_cmp_eq_u32 %s, 0" % s(S_DREM)]
            gaps[bp + 2] += ["s_cbranch_scc1 L_k1_swd_%s" % tag, "L_k1_swdret_%s:" % tag,
                             "s_add_u32 %s, %s, 128" % (s(S_SOA), s(S_SOA))]
            gaps[bp + 3] += ["s_add_u32 %s, %s, %s" % (s(S_SOW), s(S_SOW), s(S_WSTEP)),
                             "s_xor_b32 %s, %s, 0x8000" % (s(S_M0C), s(S_M0C))]
            gaps[bp + 4] += ["s_xor_b32 %s, %s, 0x8000" % (s(S_M0W), s(S_M0W)),
                             "s_cmp_eq_u32 %s, 1" % s(S_CNT)]
            gaps[bp + 5] += ["s_cbranch_scc1 L_k1_swa_%s" % tag, "L_k1_swaret_%s:" % tag,
                             "s_mov_b32 m0, %s" % s(S_M0C)]
        else:
            gaps[0] += ["v_xor_b32 %s, 0x8000, %s" % (v(V_AC), v(V_AC))]
            for j in range(8):
                gaps[1 + 2 * j] += ["v_xor_b32 %s, 0x8000, %s" % (v(V_AW + j), v(V_AW + j))]
            rd = frag_reads(0, nxt)
            for n, x in enumerate(rd):
                gaps[2 + 2 * n].append(x)
            gaps[17] += ["v_xor_b32 %s, 0x8000, %s" % (v(V_AC + 1), v(V_AC + 1))]
            d = [dma_c(0), dma_c(1), dma_c(2), dma_c(3), "s_add_u32 m0, %s, 4096" % s(S_M0C), dma_c(4), dma_c(5), dma_c(6), dma_c(7),
                 "s_mov_b32 m0, %s" % s(S_M0W), dma_w(0), dma_w(1), dma_w(2)]
            pos = opts.get("k1p1", [0, 6, 12, 19, 21, 25, 31, 37, 43, 45, 49, 55, 61])
            for x, p in zip(d, pos):
                gaps[p].append(x)
            gaps[62] += ["s_sub_u32 %s, %s, 1" % (s(S_CNT), s(S_CNT))]
            gaps[63] += ["s_cmp_lg_u32 %s, 0" % s(S_CNT)]
        if opts.get("nodma"):
            gaps = [[x for x in g if " lds" not in x] for g in gaps]
        if opts.get("noreads"):
            gaps = [[x for x in g if not x.startswith("ds_read")] for g in gaps]
        out.append("s_waitcnt lgkmcnt(0)")
        out += weave(mfs, gaps)
    return out

def switch_blocks(A, tag):
    A.label("L_k1_swd_%s" % tag)
    A("s_cmp_eq_u32 %s, 0" % s(S_DTILE))
    A("s_cbranch_scc0 L_k1_swd0_%s" % tag)
    A("s_cmp_eq_u32 %s, 0" % s(S_HASN))
    A("s_cbranch_scc1 L_k1_swd0_%s" % tag)
    for m in range(8):
        A("v_mov_b32 %s, %s" % (v(V_VC + m), v(V_VC2 + m)))
        A("v_mov_b32 %s, %s" % (v(V_VW + m), v(V_VW2 + m)))
    for r in range(4):
        A("s_mov_b32 %s, %s" % (s(S_ACT + r), s(S_ACT2 + r)))
        A("s_mov_b32 %s, %s" % (s(S_W + r), s(S_W2 + r)))
    A("s_mov_b32 %s, %s" % (s(S_WSTEP), s(S_WSTEP2)))
    A("s_mov_b32 %s, -128" % s(S_SOA))
    A("s_sub_u32 %s, 0, %s" % (s(S_SOW), s(S_WSTEP)))
    A("s_mov_b32 %s, 7" % s(S_DREM))
    A("s_mov_b32 %s, 1" % s(S_DTILE))
    A("s_branch L_k1_swdret_%s" % tag)
    A.label("L_k1_swd0_%s" % tag)
    A("s_mov_b32 %s, %s" % (s(S_SOA), s(S_OOB)))
    A("s_mov_b32 %s, %s" % (s(S_SOW), s(S_OOB)))
    A("s_mov_b32 %s, 0" % s(S_WSTEP))
    A("s_mov_b32 %s, 1000" % s(S_DREM))
    A("s_branch L_k1_swdret_%s" % tag)
    A.label("L_k1_swa_%s" % tag)
    for j in range(8):
        A("v_xor_b32 %s, 0x8000, %s" % (v(V_AW + j), v(V_AW2 + j)))
    A("s_branch L_k1_swaret_%s" % tag)

def tile_setup(A, second=False):
    T = V_T
    V_AW = V_AW2 if second else globals()["V_AW"]
    V_VC = V_VC2 if second else globals()["V_VC"]
    V_VW = V_VW2 if second else globals()["V_VW"]
    A("v_and_b32 %s, 63, v0" % v(T))
    A("v_lshlrev_b32 %s, 4, %s" % (v(V_L16), v(T)))
    A("v_and_b32 %s, 15, %s" % (v(T + 1), v(T)))
    A("v_lshrrev_b32 %s, 4, %s" % (v(T + 2), v(T)))
    A("v_lshrrev_b32 %s, 1, %s" % (v(T + 3), v(T + 1)))
    A("v_xor_b32 %s, %s, %s" % (v(T + 3), v(T + 3), v(T + 2)))
    A("s_lshr_b32 %s, %s, 1" % (s(S_T0), s(S_WAVE)))
    A("s_lshl_b32 %s, %s, 14" % (s(S_T0), s(S_T0)))
    A("v_lshlrev_b32 %s, 7, %s" % (v(T + 4), v(T + 1)))
    A("v_add_u32 %s, %s, %s" % (v(T + 4), s(S_T0), v(T + 4)))
    for sub in range(2):
        A("v_xor_b32 %s, %d, %s" % (v(T + 5), 4 * sub, v(T + 3)))
        A("v_lshl_add_u32 %s, %s, 4, %s" % (v(V_AC + sub), v(T + 5), v(T + 4)))
    A("v_bfe_u32 %s, %s, 2, 2" % (v(T + 3), v(T)))
    A("v_and_b32 %s, 3, %s" % (v(T + 4), v(T)))
    A("v_lshlrev_b32 %s, 3, %s" % (v(T + 4), v(T + 4)))
    A("v_lshl_add_u32 %s, %s, 3, %s" % (v(T + 1), v(T + 2), v(T + 3)))
    A("v_lshlrev_b32 %s, 9, %s" % (v(T + 1), v(T + 1)))
    A("v_add_u32 %s, 0x10000, %s" % (v(T + 1), v(T + 1)))
    A("v_and_b32 %s, 1, %s" % (v(T + 2), v(T + 2)))
    A("v_lshl_add_u32 %s, %s, 2, %s" % (v(T + 3), v(T + 2), v(T + 3)))
    A("v_lshlrev_b32 %s, 5, %s" % (v(T + 3), v(T + 3)))
    A("s_and_b32 %s, %s, 1" % (s(S_T0), s(S_WAVE)))
    A("s_cmp_eq_u32 %s, 0" % s(S_BT))
    A("s_cselect_b32 %s, 64, 56" % s(S_T1))
    A("s_mul_i32 %s, %s, %s" % (s(S_T0), s(S_T0), s(S_T1)))
    A("s_lshl_b32 %s, %s, 2" % (s(S_T0), s(S_T0)))
    for j in range(8):
        A("v_add_u32 %s, %s, %s" % (v(T + 5), s(S_T0), v(T + 4)))
        if j & 1:
            A("v_add_u32 %s, 32, %s" % (v(T + 5), v(T + 5)))
        A("v_xor_b32 %s, %s, %s" % (v(T + 5), v(T + 5), v(T + 3)))
        A("v_add_u32 %s, %s, %s" % (v(V_AW + j), v(T + 5), v(T + 1)))
        if j & 1:
            A("s_add_u32 %s, %s, %s" % (s(S_T0), s(S_T0), s(S_T1)))
    A("v_lshrrev_b32 %s, 3, %s" % (v(T + 1), v(T)))
    A("s_lshl_b32 %s, %s, 6" % (s(S_T0), s(S_WAVE)))
    A("s_add_u32 %s, %s, %s" % (s(S_T0), s(S_T0), s(S_ROW0)))
    A("v_add_u32 %s, %s, %s" % (v(T + 1), s(S_T0), v(T + 1)))
    A("v_mul_lo_u32 %s, %s, %s" % (v(T + 1), v(T + 1), s(S_ASTR)))
    A("v_and_b32 %s, 7, %s" % (v(T + 2), v(T)))
    A("v_lshrrev_b32 %s, 4, %s" % (v(T + 3), v(T)))
    A("v_xor_b32 %s, %s, %s" % (v(T + 2), v(T + 2), v(T + 3)))
    A("v_xor_b32 %s, 4, %s" % (v(T + 3), v(T + 2)))
    A("v_lshlrev_b32 %s, 4, %s" % (v(T + 2), v(T + 2)))
    A("v_lshlrev_b32 %s, 4, %s" % (v(T + 3), v(T + 3)))
    A("s_lshl_b32 %s, %s, 3" % (s(S_T1), s(S_ASTR)))
    A("s_mov_b32 %s, 0" % s(S_T0))
    for m in range(8):
        A("v_add3_u32 %s, %s, %s, %s" % (v(V_VC + m), v(T + 1), v(T + 2 + (m & 1)), s(S_T0)))
        if m < 7:
            A("s_add_u32 %s, %s, %s" % (s(S_T0), s(S_T0), s(S_T1)))
            dl = (((m + 1) & 3) - (m & 3)) * 1024
            A(("s_sub_u32 %s, %s, %d" % (s(S_T0), s(S_T0), dl)) if dl > 0 else ("s_add_u32 %s, %s, %d" % (s(S_T0), s(S_T0), -dl)))
    A("v_lshrrev_b32 %s, 5, %s" % (v(T + 1), v(T)))
    A("v_and_b32 %s, 31, %s" % (v(T + 2), v(T)))
    A("v_lshlrev_b32 %s, 1, %s" % (v(T + 3), v(T + 1)))
    A("v_xor_b32 %s, %s, %s" % (v(T + 2), v(T + 2), v(T + 3)))
    A("s_lshl_b32 %s, %s, 4" % (s(S_T0), s(S_WAVE)))
    A("v_add_u32 %s, %s, %s" % (v(T + 1), s(S_T0), v(T + 1)))
    A("v_mul_lo_u32 %s, %s, %s" % (v(T + 1), v(T + 1), s(S_WSTR)))
    A("s_lshl_b32 %s, %s, 1" % (s(S_T1), s(S_WSTR)))
    A("s_mov_b32 %s, 0" % s(S_T0))
    for m in range(8):
        x = ((m & 1) << 2) ^ (((m >> 2) & 1) << 3)
        A("v_xor_b32 %s, %d, %s" % (v(T + 3), x, v(T + 2)))
        A("v_lshlrev_b32 %s, 4, %s" % (v(T + 3), v(T + 3)))
        A("v_add3_u32 %s, %s, %s, %s" % (v(V_VW + m), v(T + 1), v(T + 3), s(S_T0)))
        if m < 7:
            A("s_add_u32 %s, %s, %s" % (s(S_T0), s(S_T0), s(S_T1)))
            dl = (((m + 1) & 3) - (m & 3)) * 1024
            A(("s_sub_u32 %s, %s, %d" % (s(S_T0), s(S_T0), dl)) if dl > 0 else ("s_add_u32 %s, %s, %d" % (s(S_T0), s(S_T0), -dl)))
    A("s_lshl_b32 %s, %s, 6" % (s(S_WSTEP2 if second else S_WSTEP), s(S_WSTR)))
    A("s_lshl_b32 %s, %s, 13" % (s(S_T0), s(S_WAVE)))

S_PM = 86
def prologue_dma0(A):
    A("s_mov_b32 %s, 0" % s(S_SOA))
    A("s_mov_b32 %s, 0" % s(S_SOW))
    A("s_add_u32 %s, %s, 32768" % (s(S_M0C), s(S_T0)))
    A("s_add_u32 %s, %s, %d" % (s(S_M0W), s(S_T0), 65536 + 32768))
    A("s_add_u32 %s, %s, %d" % (s(S_PM), s(S_T0), 32768 + 4096))
    A("s_add_u32 %s, %s, %d" % (s(S_PM + 1), s(S_T0), 65536 + 32768 + 4096))
    for g in range(2):
        A("s_add_u32 m0, %s, %d" % (s(S_T0), g * 4096))
        A("s_nop 0")
        for m in range(4):
            A(dma_c(4 * g + m))
    for g in range(2):
        A("s_add_u32 m0, %s, %d" % (s(S_T0), 65536 + g * 4096))
        A("s_nop 0")
        for m in range(4):
            A(dma_w(4 * g + m))
    A("s_mov_b32 %s, 128" % s(S_SOA))
    A("s_mov_b32 %s, %s" % (s(S_SOW), s(S_WSTEP)))
    A("s_sub_u32 %s, %s, 1" % (s(S_DREM), s(S_T)))
    A("s_mov_b32 %s, 0" % s(S_DTILE))

def prologue_dma1_items():
    it = []
    for base, f in ((S_M0C, dma_c), (S_PM, dma_c), (S_M0W, dma_w), (S_PM + 1, dma_w)):
        g = 1 if base in (S_PM, S_PM + 1) else 0
        it.append(["s_mov_b32 m0, %s" % s(base), "s_nop 0", f(4 * g)])
        for m in range(1, 4):
            it.append([f(4 * g + m)])
    return it

def insert_items(lines, items):
    out = []
    n = len(items)
    step = max(1, len(lines) // (n + 1))
    k = 0
    for idx, x in enumerate(lines):
        out.append(x)
        if (idx + 1) % step == 0 and k < n:
            out += items[k]; k += 1
    while k < n:
        out += items[k]; k += 1
    return out

def epi_offsets(kind):
    if kind == 0 or kind == 4:
        return 8 * 8192, 4 * 1024, [(n >> 2) * 8192 + (n & 3) * 1024 for n in range(32)]
    if kind == 1:
        return 4 * 16384, 8 * 1024, [(n >> 3) * 16384 + (n & 7) * 1024 for n in range(32)]
    if kind == 2:
        return 8 * 1024, 4 * 131072, [(n >> 2) * 1024 + (n & 3) * 131072 for n in range(32)]
    return 4 * 2048, 4 * 131072, [(n >> 3) * 2048 + ((n & 7) >> 1) * 131072 + (n & 1) * 1024 for n in range(32)]

def epilogue(A, kind, opts={}):
    E = V_E
    wms, wns, offs = epi_offsets(kind)
    A("s_lshr_b32 %s, %s, 1" % (s(S_T0), s(S_WAVE)))
    A("s_mul_i32 %s, %s, %d" % (s(S_T0), s(S_T0), wms))
    A("s_and_b32 %s, %s, 1" % (s(S_T1), s(S_WAVE)))
    A("s_mul_i32 %s, %s, %d" % (s(S_T1), s(S_T1), wns))
    A("s_add_u32 %s, %s, %s" % (s(S_T0), s(S_T0), s(S_T1)))
    A("s_add_u32 %s, %s, %s" % (s(S_T0), s(S_T0), s(S_EOUT)))
    if kind == 2:
        A("v_cmp_gt_u32 vcc, 768, %s" % v(V_L16))
        A("s_nop 1")
        A("v_cndmask_b32 %s, 0, -1, vcc" % v(V_T + 1))
    if kind == 3:
        A("v_and_b32 %s, 0xf0, %s" % (v(V_T), v(V_L16)))
        A("v_cmp_gt_u32 vcc, 192, %s" % v(V_T))
        A("s_nop 1")
        A("v_cndmask_b32 %s, 0, -1, vcc" % v(V_T + 1))
        A("v_cmp_eq_u32 vcc, 192, %s" % v(V_T))
        A("v_mov_b32 %s, 0x3f803f80" % v(V_T + 3))
        A("s_nop 0")
        A("v_cndmask_b32 %s, 0, %s, vcc" % (v(V_T + 2), v(V_T + 3)))
    cur = None
    for n in range(32):
        R = E + (n & 3) * 8
        P = E + 32 + (n & 3) * 4
        for r in range(8):
            A("v_accvgpr_read_b32 %s, %s" % (v(R + r), a(8 * n + r)))
        if kind in (2, 4):
            for r in range(8):
                A("v_mul_f32 %s, %s, %s" % (v(R + r), s(S_ESCALE), v(R + r)))
        for r in range(4):
            A("v_cvt_pk_bf16_f32 %s, %s, %s" % (v(P + r), v(R + 2 * r), v(R + 2 * r + 1)))
        if kind == 2:
            A("v_and_b32 %s, %s, %s" % (v(P + 2), v(V_T + 1), v(P + 2)))
            A("v_and_b32 %s, %s, %s" % (v(P + 3), v(V_T + 1), v(P + 3)))
        if kind == 3 and (n & 1):
            for r in range(4):
                A("v_and_or_b32 %s, %s, %s, %s" % (v(P + r), v(P + r), v(V_T + 1), v(V_T + 2)))
        o = offs[n]
        if cur is None or not (0 <= o - cur < 4096):
            A("s_add_u32 %s, %s, %d" % (s(S_T1), s(S_T0), o))
            cur = o
        A("buffer_store_dwordx4 %s, %s, %s, %s offen offset:%d%s" % (v(P, 4), v(V_L16), s(S_WS, 4), s(S_T1), o - cur, opts.get("stflag", "")))

def wo_transform(A):
    A("s_sub_u32 %s, s2, 176" % s(S_T0))
    A("s_lshl_b32 %s, %s, 2" % (s(S_T0), s(S_T0)))
    A("s_add_u32 %s, %s, %s" % (s(S_T0), s(S_T0), s(S_WAVE)))
    A("s_cmp_ge_u32 %s, 144" % s(S_T0))
    A("s_cbranch_scc1 L_k1_wotdone")
    A("s_cmp_ge_u32 %s, 128" % s(S_T0))
    A("s_cbranch_scc1 L_k1_wotB")
    set_srd(A, S_W, P_WO, 4096 * 448 * 2)
    A("s_mul_i32 %s, %s, %d" % (s(S_SOW), s(S_T0), 32 * 896))
    A("s_lshl_b32 %s, %s, 10" % (s(S_OUT), s(S_T0)))
    A("s_add_u32 %s, %s, %d" % (s(S_OUT), s(S_OUT), WS_WOT))
    A("s_mov_b32 %s, %d" % (s(S_T2), 131072))
    A("s_branch L_k1_wotgo")
    A.label("L_k1_wotB")
    A("s_sub_u32 %s, %s, 128" % (s(S_T0), s(S_T0)))
    set_srd(A, S_W, P_BWO, 448 * 448 * 2)
    A("s_mul_i32 %s, %s, %d" % (s(S_SOW), s(S_T0), 28 * 896))
    A("s_lshl_b32 %s, %s, 10" % (s(S_OUT), s(S_T0)))
    A("s_add_u32 %s, %s, %d" % (s(S_OUT), s(S_OUT), WS_WOBT))
    A("s_mov_b32 %s, %d" % (s(S_T2), 16384))
    A.label("L_k1_wotgo")
    A("s_mul_i32 %s, %s, 28672" % (s(S_T1), s(S_WAVE)))
    for k in range(28):
        if k % 4 == 0:
            A("s_add_u32 m0, %s, %d" % (s(S_T1), k * 1024))
            A("s_add_u32 %s, %s, %d" % (s(S_ROW), s(S_SOW), k * 1024))
        A("buffer_load_dwordx4 %s, %s, %s offen offset:%d lds" % (v(V_L16), s(S_W, 4), s(S_ROW), (k % 4) * 1024))
    T = V_T
    A("v_lshrrev_b32 %s, 4, %s" % (v(T), v(V_L16)))
    A("v_lshrrev_b32 %s, 4, %s" % (v(T + 1), v(T)))
    A("v_bfe_u32 %s, %s, 2, 2" % (v(T + 2), v(T)))
    A("v_lshl_add_u32 %s, %s, 2, %s" % (v(T + 1), v(T + 1), v(T + 2)))
    A("v_mul_u32_u24 %s, 896, %s" % (v(T + 1), v(T + 1)))
    A("v_and_b32 %s, 3, %s" % (v(T + 2), v(T)))
    A("v_lshl_add_u32 %s, %s, 3, %s" % (v(T + 1), v(T + 2), v(T + 1)))
    A("v_add_u32 %s, %s, %s" % (v(T + 1), s(S_T1), v(T + 1)))
    A("s_waitcnt vmcnt(0)")
    R = 36
    for mt in range(28):
        for t in range(2):
            A("ds_read_b64_tr_b16 %s, %s offset:%d" % (v(R + 4 * mt + 2 * t, 2), v(T + 1), t * 16 * 896 + mt * 32))
        if mt % 7 == 6:
            A("s_waitcnt lgkmcnt(0)")
    for mt in range(28):
        A("buffer_store_dwordx4 %s, %s, %s, %s offen" % (v(R + 4 * mt, 4), v(V_L16), s(S_WS, 4), s(S_OUT)))
        A("s_add_u32 %s, %s, %s" % (s(S_OUT), s(S_OUT), s(S_T2)))
    A.label("L_k1_wotdone")

def gen_k1(name, opts):
    stamps = opts.get("stamps", False)
    STAMPV[0] = 255
    A = Asm()
    A(".globl %s" % name)
    A(".p2align 8")
    A(".type %s,@function" % name)
    A.label(name)
    A("s_cmp_ge_u32 s2, 256")
    A("s_cbranch_scc1 L_k1_end")
    load_ptrs(A)
    A("v_lshrrev_b32 v1, 6, v0")
    A("s_nop 0")
    A("v_readfirstlane_b32 %s, v1" % s(S_WAVE))
    A("s_mov_b32 %s, 0x7f000000" % s(S_OOB))
    A("s_waitcnt lgkmcnt(0)")
    if stamps:
        stamp_init(A); stamp(A)
    set_srd(A, S_WS, P_WS, WS_SIZE)
    A("s_and_b32 %s, s2, 7" % s(S_T0))
    A("s_lshr_b32 %s, s2, 3" % s(S_T1))
    A("s_lshl_b32 %s, %s, 2" % (s(S_T0), s(S_T0)))
    A("s_and_b32 %s, %s, 3" % (s(S_T2), s(S_T1)))
    A("s_add_u32 %s, %s, %s" % (s(S_T0), s(S_T0), s(S_T2)))
    A("s_lshr_b32 %s, %s, 2" % (s(S_T1), s(S_T1)))
    A("s_lshl_b32 %s, %s, 8" % (s(S_ROW0), s(S_T1)))
    A("s_lshr_b32 %s, %s, 4" % (s(S_TYPE), s(S_T0)))
    A("s_and_b32 %s, %s, 15" % (s(S_T0), s(S_T0)))
    A("s_lshl_b32 %s, %s, 20" % (s(S_OUT), s(S_T0)))
    A("s_lshl_b32 %s, %s, 17" % (s(S_T1), s(S_T1)))
    A("s_add_u32 %s, %s, %s" % (s(S_OUT), s(S_OUT), s(S_T1)))
    A("s_lshl_b32 %s, %s, 24" % (s(S_T1), s(S_TYPE)))
    A("s_add_u32 %s, %s, %s" % (s(S_OUT), s(S_OUT), s(S_T1)))
    A("s_lshl_b32 %s, %s, 9" % (s(S_T0), s(S_T0)))
    set_srd(A, S_ACT, P_CKV, 2048 * 1024 * 2)
    A("s_cmp_eq_u32 %s, 0" % s(S_TYPE))
    A("s_cselect_b32 %s, %s, %s" % (s(S_T1), s(P_WUK), s(P_WUV)))
    A("s_cselect_b32 %s, %s, %s" % (s(S_T2), s(P_WUK + 1), s(P_WUV + 1)))
    A("s_add_u32 %s, %s, %s" % (s(S_W), s(S_T1), s(S_T0)))
    A("s_addc_u32 %s, %s, 0" % (s(S_W + 1), s(S_T2)))
    A("s_sub_u32 %s, %d, %s" % (s(S_W + 2), 1024 * 4096 * 2, s(S_T0)))
    A("s_mov_b32 %s, 0x20000" % s(S_W + 3))
    A("s_mov_b32 %s, 2048" % s(S_ASTR))
    A("s_mov_b32 %s, 8192" % s(S_WSTR))
    A("s_mov_b32 %s, 0" % s(S_BT))
    A("s_mov_b32 %s, 16" % s(S_T))
    A("s_mov_b32 %s, %s" % (s(S_EPI), s(S_TYPE)))
    A("s_mov_b32 %s, 0" % s(S_TILE))
    A("s_mov_b32 %s, 1.0" % s(S_SCALE))
    A("s_cmp_ge_u32 s2, 128")
    A("s_cbranch_scc1 L_k1_noflag")
    A("s_lshl_b32 %s, s2, 7" % s(S_T0))
    A("s_add_u32 %s, %s, %d" % (s(S_T0), s(S_T0), WS_FLAG))
    A("v_mov_b32 v2, 0")
    A("v_lshlrev_b32 v3, 2, v0")
    A("v_cmp_gt_u32 vcc, 32, v0")
    A("s_and_saveexec_b64 s[70:71], vcc")
    A("s_cbranch_execz L_k1_noflag2")
    A("buffer_store_dword v2, v3, %s, %s offen" % (s(S_WS, 4), s(S_T0)))
    A.label("L_k1_noflag2")
    A("s_mov_b64 exec, s[70:71]")
    A.label("L_k1_noflag")
    tile_setup(A)
    prologue_dma0(A)
    if opts.get("k1prostamp"):
        stamp(A)
    for r in range(4):
        A("s_mov_b32 %s, %s" % (s(S_ACT2 + r), s(S_ACT + r)))
        A("s_mov_b32 %s, %s" % (s(S_W2 + r), s(S_W + r)))
    A("s_mov_b32 %s, 0" % s(S_HASN))
    A("s_mov_b32 %s, 0" % s(S_TYPE2))
    A("s_mov_b32 %s, 0" % s(S_BT))
    A("s_cmp_ge_u32 s2, 176")
    A("s_cbranch_scc1 L_k1_set2done")
    A("s_mov_b32 %s, 1" % s(S_HASN))
    A("s_cmp_ge_u32 s2, 128")
    A("s_cbranch_scc1 L_k1_setB")
    A("s_and_b32 %s, s2, 7" % s(S_T0))
    A("s_lshr_b32 %s, s2, 3" % s(S_T1))
    A("s_lshl_b32 %s, %s, 1" % (s(S_T0), s(S_T0)))
    A("s_and_b32 %s, %s, 1" % (s(S_T2), s(S_T1)))
    A("s_add_u32 %s, %s, %s" % (s(S_T0), s(S_T0), s(S_T2)))
    A("s_lshr_b32 %s, %s, 1" % (s(S_T1), s(S_T1)))
    A("s_lshl_b32 %s, %s, 8" % (s(S_ROW0), s(S_T1)))
    A("s_lshl_b32 %s, %s, 20" % (s(S_OUT2), s(S_T0)))
    A("s_lshl_b32 %s, %s, 17" % (s(S_T1), s(S_T1)))
    A("s_add_u32 %s, %s, %s" % (s(S_OUT2), s(S_OUT2), s(S_T1)))
    A("s_add_u32 %s, %s, %d" % (s(S_OUT2), s(S_OUT2), WS_Q))
    A("s_lshl_b32 %s, %s, 9" % (s(S_T0), s(S_T0)))
    set_srd(A, S_ACT2, P_AX, 2048 * 448 * 2)
    set_srd(A, S_W2, P_WQ, 448 * 4096 * 2, S_T0)
    A("s_mov_b32 %s, 8192" % s(S_WSTR))
    A("s_mov_b32 %s, 4" % s(S_EPI2))
    A("s_mov_b32 %s, 0x%08x" % (s(S_SCALE2), f32bits(1.4426950408889634 / 16.0)))
    A("s_branch L_k1_setdone")
    A.label("L_k1_setB")
    A("s_sub_u32 %s, s2, 128" % s(S_T0))
    A("s_and_b32 %s, %s, 7" % (s(S_T1), s(S_T0)))
    A("s_lshr_b32 %s, %s, 3" % (s(S_T0), s(S_T0)))
    A("s_lshl_b32 %s, %s, 8" % (s(S_ROW0), s(S_T1)))
    A("s_lshr_b32 %s, %s, 2" % (s(S_TYPE2), s(S_T0)))
    A("s_lshr_b32 %s, %s, 1" % (s(S_T2), s(S_T0)))
    A("s_lshl_b32 %s, %s, 21" % (s(S_OUT2), s(S_T2)))
    A("s_and_b32 %s, %s, 1" % (s(S_T2), s(S_T0)))
    A("s_lshl_b32 %s, %s, 20" % (s(S_T2), s(S_T2)))
    A("s_add_u32 %s, %s, %s" % (s(S_OUT2), s(S_OUT2), s(S_T2)))
    A("s_lshl_b32 %s, %s, 14" % (s(S_T1), s(S_T1)))
    A("s_add_u32 %s, %s, %s" % (s(S_OUT2), s(S_OUT2), s(S_T1)))
    A("s_add_u32 %s, %s, %d" % (s(S_OUT2), s(S_OUT2), WS_BQ))
    A("s_cmp_lt_u32 %s, 2" % s(S_T0))
    A("s_cselect_b32 %s, 0x%08x, 1.0" % (s(S_SCALE2), f32bits(1.4426950408889634 / 28.0 ** 0.5)))
    A("s_mul_i32 %s, %s, 448" % (s(S_T0), s(S_T0)))
    set_srd(A, S_ACT2, P_BX, 2048 * 448 * 2)
    set_srd(A, S_W2, P_BWQKV, 448 * 1344 * 2, S_T0)
    A("s_mov_b32 %s, 2688" % s(S_WSTR))
    A("s_mov_b32 %s, 1" % s(S_BT))
    A("s_add_u32 %s, %s, 2" % (s(S_EPI2), s(S_TYPE2)))
    A.label("L_k1_setdone")
    A("s_mov_b32 %s, 896" % s(S_ASTR))
    A.label("L_k1_set2done")
    X = Asm()
    tile_setup(X, True)
    X("s_lshr_b32 %s, s2, 3" % s(S_T0))
    X("v_and_b32 %s, 63, v0" % v(V_T))
    X("s_lshl_b32 %s, %s, 6" % (s(S_T1), s(S_T0)))
    X("v_add_u32 %s, %s, %s" % (v(V_TCH), s(S_T1), v(V_T)))
    X("v_lshlrev_b32 %s, 11, %s" % (v(V_TCH), v(V_TCH)))
    X("s_lshr_b32 %s, %s, 2" % (s(S_T1), s(S_T0)))
    X("s_lshl_b32 %s, %s, 3" % (s(S_T1), s(S_T1)))
    X("v_bfe_u32 %s, %s, 2, 3" % (v(V_T + 1), v(V_T)))
    X("v_add_u32 %s, %s, %s" % (v(V_T + 1), s(S_T1), v(V_T + 1)))
    X("v_lshlrev_b32 %s, 13, %s" % (v(V_T + 1), v(V_T + 1)))
    X("v_and_b32 %s, 3, %s" % (v(V_T + 2), v(V_T)))
    X("v_lshl_add_u32 %s, %s, 7, %s" % (v(V_T + 1), v(V_T + 2), v(V_T + 1)))
    X("s_cmp_eq_u32 %s, 1" % s(S_WAVE))
    X("s_cselect_b64 vcc, -1, 0")
    X("s_nop 1")
    X("v_cndmask_b32 %s, %s, %s, vcc" % (v(V_TCH), v(V_TCH), v(V_T + 1)))
    global_touch_setup(X, opts)
    A(insert_items(X.L, prologue_dma1_items()))
    A("s_cmp_ge_u32 %s, 2" % s(S_WAVE))
    A("s_cbranch_scc1 L_k1_tchg")
    for td in (1, 2):
        A("s_cmp_eq_u32 %s, 0" % s(S_WAVE))
        A("s_cbranch_scc0 L_k1_tch1_%d" % td)
        A(touch_prep(0, opts, td)); A(touch_issue(0))
        A("s_branch L_k1_tch2_%d" % td)
        A.label("L_k1_tch1_%d" % td)
        A(touch_prep(1, opts, td)); A(touch_issue(1))
        A.label("L_k1_tch2_%d" % td)
    A("s_branch L_k1_tchd")
    A.label("L_k1_tchg")
    for r in range(2):
        A("buffer_load_dword %s, %s, %s, %s offen" % (v(V_TD), v(V_L16), s(S_ACT, 4), "0"))
    A.label("L_k1_tchd")
    if opts.get("k1prostamp"):
        stamp(A)
    A("s_waitcnt vmcnt(18)")
    if opts.get("k1prostamp"):
        stamp(A)
    A("s_barrier")
    if stamps:
        stamp(A)
    A(frag_reads(0, 0))
    A.label("L_k1_tile_go")
    A("s_mov_b32 %s, %s" % (s(S_CNT), s(S_T)))
    ncopy = 4 if opts.get("k1copies", 4) == 4 else 1
    for ktype in (1, 0):
        for wv in range(ncopy):
            if ktype == 1 and wv == 0:
                continue
            A("s_cmp_eq_u32 %s, %d" % (s(S_TYPE), 0 if ktype == 1 else 1))
            A("s_cbranch_scc0 L_k1_nx_%d_%d" % (ktype, wv))
            if ncopy == 4:
                A("s_cmp_eq_u32 %s, %d" % (s(S_WAVE), wv))
                A("s_cbranch_scc1 L_k1_go_%d_%d" % (ktype, wv))
            else:
                A("s_branch L_k1_go_%d_%d" % (ktype, wv))
            A.label("L_k1_nx_%d_%d" % (ktype, wv))
    for ktype in (1, 0):
        for wv in range(ncopy):
            A.label("L_k1_go_%d_%d" % (ktype, wv))
            b0 = body(True, ktype, opts, wv)
            b1 = body(False, ktype, opts, wv)
            A(b0)
            A(".p2align 6")
            A.label("L_k1_loop_%d_%d" % (ktype, wv))
            if opts.get("k1iterstamp"):
                stamp(A)
                A("s_mov_b32 m0, %s" % s(S_M0W))
            A(b1)
            A("s_cbranch_scc1 L_k1_loop_%d_%d" % (ktype, wv))
            if wv == 0:
                check(frag_reads(0, 0) + b0 + b1 + b1, "k1 body %d" % ktype)
            A("s_branch L_k1_done")
    A.label("L_k1_done")
    if stamps:
        stamp(A)
    A("s_mov_b32 %s, %s" % (s(S_EOUT), s(S_OUT)))
    A("s_mov_b32 %s, %s" % (s(S_EEPI), s(S_EPI)))
    A("s_mov_b32 %s, %s" % (s(S_ESCALE), s(S_SCALE)))
    A("s_cmp_eq_u32 %s, 0" % s(S_TILE))
    A("s_cselect_b32 %s, %s, 0" % (s(S_HASN), s(S_HASN)))
    A("s_cmp_eq_u32 %s, 0" % s(S_HASN))
    A("s_cbranch_scc1 L_k1_epi")
    A("s_mov_b32 m0, %s" % s(S_M0W))
    A("s_nop 0")
    A(dma_w(3))
    A("s_add_u32 m0, %s, 4096" % s(S_M0W))
    A("s_nop 0")
    for m in range(4, 8):
        A(dma_w(m))
    A.label("L_k1_epi")
    for kind in (1, 2, 3, 4):
        A("s_cmp_eq_u32 %s, %d" % (s(S_EEPI), kind))
        A("s_cbranch_scc1 L_k1_epi%d" % kind)
    for kind in range(5):
        if kind:
            A.label("L_k1_epi%d" % kind)
        E = Asm()
        epilogue(E, kind, opts)
        check(E.L, "k1 epi %d" % kind)
        A(E.L)
        if kind < 4:
            A("s_branch L_k1_epidone")
    A.label("L_k1_epidone")
    if stamps:
        stamp(A)
    A("s_cmp_eq_u32 %s, 0" % s(S_HASN))
    A("s_cbranch_scc1 L_k1_fin")
    A("s_mov_b32 %s, 1" % s(S_TILE))
    A("s_mov_b32 %s, 7" % s(S_T))
    A("s_mov_b32 %s, %s" % (s(S_TYPE), s(S_TYPE2)))
    A("s_mov_b32 %s, %s" % (s(S_OUT), s(S_OUT2)))
    A("s_mov_b32 %s, %s" % (s(S_EPI), s(S_EPI2)))
    A("s_mov_b32 %s, %s" % (s(S_SCALE), s(S_SCALE2)))
    A("s_branch L_k1_tile_go")
    A.label("L_k1_fin")
    A("s_cmp_lt_u32 s2, 176")
    A("s_cbranch_scc1 L_k1_fin2")
    A("s_waitcnt vmcnt(0) lgkmcnt(0)")
    A("s_barrier")
    X = Asm(); wo_transform(X); check(X.L, "k1 wot"); A(X.L)
    A.label("L_k1_fin2")
    if stamps:
        A("s_waitcnt vmcnt(0)")
        stamp(A)
        stamp_flush(A, S_WS, S_WAVE, 0, "L_k1_stf")
    A.label("L_k1_end")
    A("s_endpgm")
    for ktype in (1, 0):
        for wv in range(ncopy):
            for first in (1, 0):
                switch_blocks(A, "%d_%d_%d" % (ktype, wv, first))
    return A
```

```python
from common import *

LDS_BYTES = 163840
B2_LDS = 114688
S_K = 4; S_V = 8; S_WS = 12
S_WAVE = 16; S_HEAD = 17; S_ROLE = 18; S_PAIR = 19
S_SRC = [20, 21]
S_E1 = 22; S_S2 = 23; S_E2 = 24
S_DM0 = [25, 26]
S_TABS = 27
S_DIAG = 28
S_TEND = 29
S_QB = 30; S_SEG = 31
S_T0 = 56; S_T1 = 57; S_T2 = 58; S_T3 = 59
S_QB2 = 60; S_N2 = 61; S_OOB = 62; S_D = 63; S_PART = 64; S_ENDACT = 65; S_QROW = 66; S_SPIN = 67
S_RET = 68
S_PUBF = 88; S_PREF = 89; S_TLAST = 90; S_QBASE = 96; S_FLAG = 97

V_L16 = 1
V_KA = [2, 3]; V_VA = 4; V_B = 5; V_DMA = 6; V_U = [7, 8]
V_T = 9
V_S = [16, 32]
V_P = 48
V_CI = 56
V_L = 64
V_ONE = 72
V_X = 76
V_O = 128
A_Q = [0, 64]
A_R = 128

def Sreg(p, kt, qt, r=None):
    b = V_S[p] + (kt * 2 + qt) * 4
    return v(b, 4) if r is None else v(b + r)
def Oreg(dt, qt):
    return V_O + (dt * 2 + qt) * 4
def Qf(qt, f, qset=0):
    return a(A_Q[qset] + (qt * 8 + f) * 4, 4)
def ring(n):
    return a(A_R + (n % 16) * 4, 4)

def kread(n, areg):
    f, kt = n >> 1, n & 1
    return "ds_read_b128 %s, %s offset:%d" % (ring(n), v(areg), (kt * 8 + f) * 1024)
def vread(n, areg):
    return "ds_read_b128 %s, %s offset:%d" % (ring(n), v(areg), n * 1024)

def dma_k(p, m):
    return "buffer_load_dwordx4 %s, %s, %s offen offset:%d lds" % (v(V_DMA), s(S_K, 4), s(S_SRC[p]), m * 1024)
def dma_v(p, m):
    return "buffer_load_dwordx4 %s, %s, %s offen offset:%d lds" % (v(V_DMA), s(S_V, 4), s(S_SRC[p]), m * 1024)

def next_src(dst, src):
    return ["s_add_u32 %s, %s, 16384" % (s(dst), s(src)),
            "s_sub_u32 %s, %s, 1" % (s(S_E1), s(S_E1)),
            "s_cmp_eq_u32 %s, 0" % s(S_E1),
            "s_cselect_b32 %s, %s, %s" % (s(dst), s(S_S2), s(dst)),
            "s_cselect_b32 %s, %s, %s" % (s(S_E1), s(S_E2), s(S_E1)),
            "s_cselect_b32 %s, %s, %s" % (s(S_S2), s(S_OOB), s(S_S2))]

def qk_mfmas(p, first):
    out = []
    for n in range(16):
        f, kt = n >> 1, n & 1
        for qt in range(2):
            C = ("0" if first else v(V_CI + qt * 4, 4)) if f == 0 else Sreg(p, kt, qt)
            out.append(mf16(Sreg(p, kt, qt), ring(n), Qf(qt, f), C))
    return out

def exp_list(p):
    ex = []; cv = []
    for qt in range(2):
        for kt in range(2):
            for r in range(4):
                ex.append("v_exp_f32 %s, %s" % (Sreg(p, kt, qt, r), Sreg(p, kt, qt, r)))
            for h in range(2):
                cv.append("v_cvt_pk_bf16_f32 %s, %s, %s" % (v(V_P + qt * 4 + kt * 2 + h), Sreg(p, kt, qt, 2 * h), Sreg(p, kt, qt, 2 * h + 1)))
    return ex, cv

def max_tree(p):
    x = [Sreg(p, kt, qt, r) for qt in range(2) for kt in range(2) for r in range(4)]
    T = V_T
    o = ["v_max3_f32 %s, %s, %s, %s" % (v(T), x[0], x[1], x[2]),
         "v_max3_f32 %s, %s, %s, %s" % (v(T + 1), x[3], x[4], x[5]),
         "v_max3_f32 %s, %s, %s, %s" % (v(T + 2), x[6], x[7], x[8]),
         "v_max3_f32 %s, %s, %s, %s" % (v(T), v(T), x[9], x[10]),
         "v_max3_f32 %s, %s, %s, %s" % (v(T + 1), v(T + 1), x[11], x[12]),
         "v_max3_f32 %s, %s, %s, %s" % (v(T + 2), v(T + 2), x[13], x[14]),
         "v_max3_f32 %s, %s, %s, %s" % (v(T), v(T), v(T + 1), x[15]),
         "v_max_f32 %s, %s, %s" % (v(T), v(T), v(T + 2)),
         "v_cmp_lt_f32 vcc, 0x41c00000, %s" % v(T)]
    return o

def body(p, final, opts, wv=0):
    q = p ^ 1
    out = []
    barpos = opts.get("k2barpos", 30)
    if barpos < 0:
        out += ["s_waitcnt vmcnt(12)", "s_barrier"]
    pre = ["s_add_u32 %s, %s, 16384" % (s(S_DM0[p]), s(S_DM0[q])),
           "s_and_b32 %s, %s, 0xffff" % (s(S_DM0[p]), s(S_DM0[p])),
           "v_add_u32 %s, %s, %s" % (v(V_VA), s(S_DM0[p]), v(V_B)),
           "v_xor_b32 %s, 0x18000, %s" % (v(V_KA[p]), v(V_VA))]
    ex, cv = exp_list(p)
    def rd(n):
        if n < 16:
            return None if final else kread(n, V_KA[q])
        if n < 32:
            return vread(n - 16, V_VA)
        return None if final else kread(n - 32, V_KA[p])
    m0k = "s_mov_b32 m0, %s" % s(S_DM0[p])
    m0v = "s_add_u32 m0, %s, 0x10000" % s(S_DM0[q])
    ns = next_src(S_SRC[q], S_SRC[p])
    if not final:
        mA = qk_mfmas(q, False)
        gA = [[] for _ in range(32)]
        out += pre[0:2]
        gA[0] += [pre[2]]
        for n in range(16):
            gA[2 * n].append(rd(n + 12))
        gA[1] += [pre[3]]
        for k in range(16):
            gA[2 * k + 1].append(ex[k])
        for k in range(7):
            gA[4 * k + 4].append(cv[k])
        shift = opts.get("k2shift", 0)
        kpos = [6, 14, 22, 30]; vpos = [9, 15, 21, 27]
        if shift and wv >= 2:
            kpos = [2, 10, 18, 26]
            out.append(m0k)
        else:
            gA[2] += [m0k]
        for m, g in enumerate(kpos):
            gA[g].append(dma_k(p, m))
        for m in range(32):
            if m % 8 == 0:
                out.append("s_waitcnt lgkmcnt(8)")
            out.append(mA[m]); out += gA[m]
    else:
        out += ["s_waitcnt lgkmcnt(0)"]
        out += pre[0:3]
        out += [m0k]
        for n in range(4, 16):
            out.append(rd(n + 12))
        for k in range(16):
            out.append(ex[k])
            if k % 4 == 0:
                out.append(dma_k(p, k // 4))
            if (k & 1) and k >= 3:
                out.append(cv[(k >> 1) - 1])
        out.append("s_nop 0")
    mB = []
    fr = []
    for dt in range(16):
        for qt in range(2):
            mB.append(mf16(v(Oreg(dt, qt), 4), ring(dt), v(V_P + qt * 4, 4), v(Oreg(dt, qt), 4))); fr.append((dt, qt))
            if dt == 0:
                mB.append(mf16(v(V_L + qt * 4, 4), v(V_ONE, 4), v(V_P + qt * 4, 4), v(V_L + qt * 4, 4))); fr.append(None)
    nB = len(mB)
    gB = [[] for _ in range(nB)]
    gB[0] += [cv[7]]
    first_of = {}
    for m, x in enumerate(fr):
        if x is not None and x[1] == 0:
            first_of[x[0]] = m
    for dt in range(16):
        x = rd(16 + dt + 12)
        if x is not None:
            gB[first_of[dt]].append(x)
    if not final:
        mt = max_tree(q)
        gB[3] += ["s_cmp_ge_u32 %s, %s" % (s(S_TABS), s(S_DIAG))]
        gB[5] += ["s_cbranch_scc1 L_k2_mask%d_%d" % (p, wv), "L_k2_maskret%d_%d:" % (p, wv)]
        pos = [7, 7, 11, 11, 13, 13, 17, 17, 19]
        for x, g in zip(mt, pos):
            gB[g].append(x)
    gB[6] += [m0v]
    vpos = [9, 15, 21, 27]
    if opts.get("k2shift", 0) and wv >= 2:
        vpos = [7, 13, 19, 25] if False else [11, 17, 23, 27]
        vpos = [8 + 1, 15, 21, 27]
        vpos = [12, 18, 24, 27] if opts.get("k2shift") == 2 else vpos
    for m, g in enumerate(vpos):
        gB[g].append(dma_v(q, m))
    gB[23] += ["s_add_u32 %s, %s, 1" % (s(S_TABS), s(S_TABS))]
    if barpos < 0:
        gB[29] += ns[0:2]
        gB[31] += ns[2:4]
        gB[33] += ns[4:5]
    else:
        gB[28] += ns[0:1]
        gB[29] += ns[1:3]
        gB[31] += ns[3:5]
        gB[33] += ns[5:6]
        assert barpos > 27
        gB[barpos] += ["s_waitcnt vmcnt(12)", "s_barrier"]
        dl = opts.get("k2delay", 0) * wv
        while dl > 0:
            gB[barpos] += ["s_nop %d" % (min(dl, 16) - 1)]
            dl -= 16
    for m in range(nB):
        if fr[m] is not None and fr[m][1] == 0 and fr[m][0] % 4 == 0:
            k = {0: 8, 4: 8, 8: 4, 12: 0}[fr[m][0]] if final else 8
            out.append("s_waitcnt lgkmcnt(%d)" % k)
        out.append(mB[m]); out += gB[m]
    if not final:
        out += ["s_cbranch_vccnz L_k2_resc%d_%d" % (p, wv), "L_k2_rescret%d_%d:" % (p, wv)]
        def drop(pred):
            return [x for x in out if not pred(x)]
        if opts.get("k2noexp"): out = drop(lambda x: x.startswith("v_exp"))
        if opts.get("k2nocvt"): out = drop(lambda x: x.startswith("v_cvt"))
        if opts.get("k2nodma"): out = drop(lambda x: " lds" in x)
        if opts.get("k2nobar"): out = drop(lambda x: x.startswith("s_barrier"))
        if opts.get("k2noreads"): out = drop(lambda x: x.startswith("ds_read") or "lgkmcnt" in x)
        if opts.get("k2nomax"): out = drop(lambda x: x.startswith("v_max") or x.startswith("v_cmp") or x.startswith("s_cbranch_vccnz"))
    return out

def mask_block(p_s, ret, lbl):
    o = [lbl + ":"]
    o += ["s_lshl_b32 %s, %s, 5" % (s(S_D), s(S_TABS)),
          "s_sub_u32 %s, %s, %s" % (s(S_D), s(S_QROW), s(S_D)),
          "v_add_u32 %s, %s, %s" % (v(V_X), s(S_D), v(V_U[0])),
          "v_add_u32 %s, %s, %s" % (v(V_X + 1), s(S_D), v(V_U[1])),
          "v_mov_b32 %s, 0xff800000" % v(V_X + 2),
          "s_nop 4"]
    for qt in range(2):
        for kt in range(2):
            for r in range(4):
                o += ["v_cmp_gt_i32 vcc, %d, %s" % (16 * kt + r, v(V_X + qt)),
                      "s_nop 1",
                      "v_cndmask_b32 %s, %s, %s, vcc" % (Sreg(p_s, kt, qt, r), Sreg(p_s, kt, qt, r), v(V_X + 2))]
    o += ["s_nop 0", "s_branch %s" % ret]
    return o

def rowmax(qt, p_s, dst, tmp):
    x = [Sreg(p_s, kt, qt, r) for kt in range(2) for r in range(4)]
    return ["v_max3_f32 %s, %s, %s, %s" % (v(dst), x[0], x[1], x[2]),
            "v_max3_f32 %s, %s, %s, %s" % (v(tmp), x[3], x[4], x[5]),
            "v_max3_f32 %s, %s, %s, %s" % (v(dst), v(dst), x[6], x[7]),
            "v_max_f32 %s, %s, %s" % (v(dst), v(dst), v(tmp)),
            "v_mov_b32 %s, %s" % (v(tmp), v(dst)),
            "s_nop 1",
            "v_permlane32_swap_b32 %s, %s" % (v(dst), v(tmp)),
            "s_nop 1",
            "v_max_f32 %s, %s, %s" % (v(dst), v(dst), v(tmp)),
            "v_mov_b32 %s, %s" % (v(tmp), v(dst)),
            "s_nop 1",
            "v_permlane16_swap_b32 %s, %s" % (v(dst), v(tmp)),
            "s_nop 1",
            "v_max_f32 %s, %s, %s" % (v(dst), v(dst), v(tmp))]

def resc_block(p_s, ret, lbl):
    o = [lbl + ":", "s_nop 7", "s_nop 1"]
    X = V_X
    for qt in range(2):
        o += rowmax(qt, p_s, X, X + 1)
        o += ["v_max_f32 %s, 0, %s" % (v(X), v(X)),
              "v_exp_f32 %s, -%s" % (v(X + 2), v(X))]
        for kt in range(2):
            for r in range(4):
                o += ["v_sub_f32 %s, %s, %s" % (Sreg(p_s, kt, qt, r), Sreg(p_s, kt, qt, r), v(X))]
        for r in range(4):
            o += ["v_sub_f32 %s, %s, %s" % (v(V_CI + qt * 4 + r), v(V_CI + qt * 4 + r), v(X))]
        for r in range(4):
            o += ["v_mul_f32 %s, %s, %s" % (v(V_L + qt * 4 + r), v(V_L + qt * 4 + r), v(X + 2))]
        for dt in range(16):
            for r in range(4):
                o += ["v_mul_f32 %s, %s, %s" % (v(Oreg(dt, qt) + r), v(Oreg(dt, qt) + r), v(X + 2))]
    o += ["s_nop 1", "s_branch %s" % ret]
    return o

def seg_prologue(A):
    for n in range(16):
        A(kread(n, V_KA[0]))
    for r in range(128):
        A("v_mov_b32 %s, 0" % v(V_O + r))
    for r in range(8):
        A("v_mov_b32 %s, 0" % v(V_L + r))
    A("s_waitcnt lgkmcnt(0)")
    A(qk_mfmas(0, True))
    for n in range(12):
        A(kread(n, V_KA[1]))
    A("s_nop 7")
    A("s_cmp_ge_u32 %s, %s" % (s(S_TABS), s(S_DIAG)))
    A("s_cbranch_scc1 L_k2_maskP")
    A.label("L_k2_maskPret")
    X = V_X
    for qt in range(2):
        A(rowmax(qt, 0, X, X + 1))
        for kt in range(2):
            for r in range(4):
                A("v_sub_f32 %s, %s, %s" % (Sreg(0, kt, qt, r), Sreg(0, kt, qt, r), v(X)))
        for r in range(4):
            A("v_sub_f32 %s, 0, %s" % (v(V_CI + qt * 4 + r), v(X)))
    A("s_add_u32 %s, %s, 1" % (s(S_TABS), s(S_TABS)))
    pub_flag(A)
    A("s_waitcnt vmcnt(12)")
    A("s_barrier")

def q_base(A, dst, qb_sgpr):
    A("s_lshl_b32 %s, %s, 3" % (s(dst), s(qb_sgpr)))
    A("s_lshl_b32 %s, %s, 1" % (s(S_T0), s(S_WAVE)))
    A("s_add_u32 %s, %s, %s" % (s(dst), s(dst), s(S_T0)))
    A("s_lshl_b32 %s, %s, 13" % (s(dst), s(dst)))
    A("s_lshl_b32 %s, %s, 20" % (s(S_T0), s(S_HEAD)))
    A("s_add_u32 %s, %s, %s" % (s(dst), s(dst), s(S_T0)))
    A("s_add_u32 %s, %s, %d" % (s(dst), s(dst), WS_Q))

def load_q(A, qset, qb_sgpr):
    A("s_lshl_b32 %s, %s, 3" % (s(S_T0), s(qb_sgpr)))
    A("s_lshl_b32 %s, %s, 1" % (s(S_T1), s(S_WAVE)))
    A("s_add_u32 %s, %s, %s" % (s(S_T0), s(S_T0), s(S_T1)))
    A("s_lshl_b32 %s, %s, 13" % (s(S_T0), s(S_T0)))
    A("s_lshl_b32 %s, %s, 20" % (s(S_T1), s(S_HEAD)))
    A("s_add_u32 %s, %s, %s" % (s(S_T0), s(S_T0), s(S_T1)))
    A("s_add_u32 %s, %s, %d" % (s(S_T0), s(S_T0), WS_Q))
    for k in range(16):
        if k % 4 == 0 and k:
            A("s_add_u32 %s, %s, 4096" % (s(S_T0), s(S_T0)))
        A("buffer_load_dwordx4 %s, %s, %s, %s offen offset:%d" % (a(A_Q[qset] + 4 * k, 4), v(V_L16), s(S_WS, 4), s(S_T0), (k % 4) * 1024))

def ctx_base(A, dst):
    A("s_lshl_b32 %s, %s, 3" % (s(dst), s(S_QB)))
    A("s_lshl_b32 %s, %s, 1" % (s(S_T1), s(S_WAVE)))
    A("s_add_u32 %s, %s, %s" % (s(dst), s(dst), s(S_T1)))
    A("s_lshl_b32 %s, %s, 4" % (s(dst), s(dst)))
    A("s_add_u32 %s, %s, %s" % (s(dst), s(dst), s(S_HEAD)))
    A("s_lshl_b32 %s, %s, 13" % (s(dst), s(dst)))
    A("s_add_u32 %s, %s, %d" % (s(dst), s(dst), WS_CTX))

def epi_final(A, merge):
    X = V_X
    AP = [64, 192]
    def areg(unit, r):
        return a((64 + unit * 4 + r) if unit < 16 else (192 + (unit - 16) * 4 + r))
    ctx_base(A, S_T0)
    sc = [X + 4, X + 5]; sc2 = [X + 6, X + 7]
    for qt in range(2):
        if not merge:
            A("v_rcp_f32 %s, %s" % (v(sc[qt]), v(V_L + qt * 4)))
        else:
            m2 = X + 8 + qt; l2 = X + 10 + qt
            A("v_sub_f32 %s, 0, %s" % (v(X), v(V_CI + qt * 4)))
            A("v_max_f32 %s, %s, %s" % (v(X + 1), v(X), v(m2)))
            A("v_sub_f32 %s, %s, %s" % (v(X), v(X), v(X + 1)))
            A("v_sub_f32 %s, %s, %s" % (v(X + 2), v(m2), v(X + 1)))
            A("v_exp_f32 %s, %s" % (v(X), v(X)))
            A("v_exp_f32 %s, %s" % (v(X + 2), v(X + 2)))
            A("s_nop 0")
            A("v_mul_f32 %s, %s, %s" % (v(X + 1), v(X), v(V_L + qt * 4)))
            A("v_fmac_f32 %s, %s, %s" % (v(X + 1), v(X + 2), v(l2)))
            A("v_rcp_f32 %s, %s" % (v(X + 1), v(X + 1)))
            A("s_nop 0")
            A("v_mul_f32 %s, %s, %s" % (v(sc[qt]), v(X), v(X + 1)))
            A("v_mul_f32 %s, %s, %s" % (v(sc2[qt]), v(X + 2), v(X + 1)))
    A("s_nop 0")
    R = X + 12
    k = 0
    for qt in range(2):
        for f in range(8):
            t = R + (k & 1) * 12
            for h in range(2):
                dt = 2 * f + h
                for r in range(4):
                    o = Oreg(dt, qt) + r
                    if not merge:
                        A("v_mul_f32 %s, %s, %s" % (v(t + h * 4 + r), v(o), v(sc[qt])))
                    else:
                        A("v_accvgpr_read_b32 %s, %s" % (v(t + h * 4 + r), areg(dt * 2 + qt, r)))
                        A("v_mul_f32 %s, %s, %s" % (v(o), v(o), v(sc[qt])))
                        A("v_fma_f32 %s, %s, %s, %s" % (v(t + h * 4 + r), v(t + h * 4 + r), v(sc2[qt]), v(o)))
            for r in range(4):
                A("v_cvt_pk_bf16_f32 %s, %s, %s" % (v(t + 8 + r), v(t + 2 * r), v(t + 2 * r + 1)))
            if f % 4 == 0:
                A("s_add_u32 %s, %s, %d" % (s(S_T1), s(S_T0), qt * 131072 + f * 1024))
            A("buffer_store_dwordx4 %s, %s, %s, %s offen offset:%d" % (v(t + 8, 4), v(V_L16), s(S_WS, 4), s(S_T1), (f % 4) * 1024))
            k += 1

def part_base(A, dst):
    A("s_lshl_b32 %s, %s, 3" % (s(dst), s(S_HEAD)))
    A("s_add_u32 %s, %s, %s" % (s(dst), s(dst), s(S_PAIR)))
    A("s_mul_i32 %s, %s, %d" % (s(dst), s(dst), 135168))
    A("s_mul_i32 %s, %s, %d" % (s(S_T1), s(S_WAVE), 33792))
    A("s_add_u32 %s, %s, %s" % (s(dst), s(dst), s(S_T1)))
    A("s_add_u32 %s, %s, %d" % (s(dst), s(dst), WS_PART))

def flag_off(A, dst):
    A("s_lshl_b32 %s, %s, 3" % (s(dst), s(S_HEAD)))
    A("s_add_u32 %s, %s, %s" % (s(dst), s(dst), s(S_PAIR)))
    A("s_lshl_b32 %s, %s, 7" % (s(dst), s(dst)))
    A("s_add_u32 %s, %s, %d" % (s(dst), s(dst), WS_FLAG))

def epi_publish(A):
    X = V_X
    part_base(A, S_T0)
    for qt in range(2):
        A("v_sub_f32 %s, 0, %s" % (v(X + qt), v(V_CI + qt * 4)))
        A("v_mov_b32 %s, %s" % (v(X + 2 + qt), v(V_L + qt * 4)))
    for u in range(32):
        if u % 4 == 0:
            A("s_add_u32 %s, %s, %d" % (s(S_T1), s(S_T0), u * 1024))
        A("buffer_store_dwordx4 %s, %s, %s, %s offen offset:%d sc0 sc1" % (v(V_O + 4 * u, 4), v(V_L16), s(S_WS, 4), s(S_T1), (u % 4) * 1024))
    A("s_add_u32 %s, %s, %d" % (s(S_T1), s(S_T0), 32768))
    A("buffer_store_dwordx4 %s, %s, %s, %s offen sc0 sc1" % (v(X, 4), v(V_L16), s(S_WS, 4), s(S_T1)))
    A("s_mov_b32 %s, 1" % s(S_PUBF))

def pub_flag(A):
    X = V_X
    A("s_cmp_eq_u32 %s, 0" % s(S_PUBF))
    A("s_cbranch_scc1 L_k2_nopub")
    A("s_waitcnt vmcnt(0)")
    A("s_barrier")
    A("s_mov_b32 %s, 0" % s(S_PUBF))
    A("s_cmp_lg_u32 %s, 0" % s(S_WAVE))
    A("s_cbranch_scc1 L_k2_nopub")
    A("v_mov_b32 %s, 0" % v(X))
    A("v_mov_b32 %s, 0x600df1a6" % v(X + 1))
    A("s_mov_b64 exec, 1")
    A("buffer_store_dword %s, %s, %s, %s offen sc0 sc1" % (v(X + 1), v(X), s(S_WS, 4), s(S_FLAG)))
    A("s_mov_b64 exec, -1")
    A.label("L_k2_nopub")

def partial_loads(A):
    X = V_X
    part_base(A, S_T0)
    A("s_add_u32 %s, %s, %d" % (s(S_T1), s(S_T0), 32768))
    A("buffer_load_dwordx4 %s, %s, %s, %s offen sc0 sc1" % (v(X + 8, 4), v(V_L16), s(S_WS, 4), s(S_T1)))
    for u in range(32):
        if u % 4 == 0:
            A("s_add_u32 %s, %s, %d" % (s(S_T1), s(S_T0), u * 1024))
        dst = (64 + u * 4) if u < 16 else (192 + (u - 16) * 4)
        A("buffer_load_dwordx4 %s, %s, %s, %s offen offset:%d sc0 sc1" % (a(dst, 4), v(V_L16), s(S_WS, 4), s(S_T1), (u % 4) * 1024))

V_FL = 113
def flag_load():
    return "buffer_load_dword %s, %s, %s, %s offen sc0 sc1" % (v(V_FL), v(V_FL + 1), s(S_WS, 4), s(S_FLAG))

def epi_merge_load(A):
    A("s_cmp_eq_u32 %s, 1" % s(S_PREF))
    A("s_cbranch_scc1 L_k2_polled")
    A("s_mov_b32 %s, 0" % s(S_SPIN))
    A.label("L_k2_poll")
    A(flag_load())
    A("s_waitcnt vmcnt(0)")
    A("v_readfirstlane_b32 %s, %s" % (s(S_T1), v(V_FL)))
    A("s_add_u32 %s, %s, 1" % (s(S_SPIN), s(S_SPIN)))
    A("s_cmp_eq_u32 %s, 0x600df1a6" % s(S_T1))
    A("s_cbranch_scc1 L_k2_pollok")
    A("s_sleep 2")
    A("s_cmp_lt_u32 %s, 200000" % s(S_SPIN))
    A("s_cbranch_scc1 L_k2_poll")
    A.label("L_k2_pollok")
    partial_loads(A)
    A.label("L_k2_polled")
    A("s_waitcnt vmcnt(0)")

def early_check_block(lbl, ret):
    A = Asm()
    A.label(lbl)
    A("s_waitcnt vmcnt(8)")
    A("v_readfirstlane_b32 %s, %s" % (s(S_T1), v(V_FL)))
    A("s_cmp_eq_u32 %s, 0x600df1a6" % s(S_T1))
    A("s_cbranch_scc0 %s" % ret)
    partial_loads(A)
    A("s_mov_b32 %s, 1" % s(S_PREF))
    A("s_branch %s" % ret)
    return A.L

S_BH = 69; S_BTQ = 70; S_BTB = 71; S_BM = 72
BQ = 64; BK = 72; BV = 144

def b2_ids(A):
    A("s_and_b32 %s, s2, 15" % s(S_BH))
    A("s_lshr_b32 %s, s2, 4" % s(S_BTQ))
    A("s_lshl_b32 %s, %s, 2" % (s(S_BTQ), s(S_BTQ)))
    A("s_add_u32 %s, %s, %s" % (s(S_BTQ), s(S_BTQ), s(S_WAVE)))
    A("s_lshl_b32 %s, %s, 17" % (s(S_BTB), s(S_BH)))
    A("s_lshl_b32 %s, %s, 11" % (s(S_T0), s(S_BTQ)))
    A("s_add_u32 %s, %s, %s" % (s(S_BTB), s(S_BTB), s(S_T0)))

def b2_loads(A):
    TC = S_T3
    A("s_add_u32 %s, %s, %d" % (s(TC), s(S_BTB), WS_BQ))
    for qt in range(2):
        A("buffer_load_dwordx4 %s, %s, %s, %s offen offset:%d" % (a(BQ + 4 * qt, 4), v(V_L16), s(S_WS, 4), s(TC), qt * 1024))
    A("s_lshr_b32 %s, s2, 4" % s(S_T0))
    A("s_lshl_b32 %s, %s, 3" % (s(S_T0), s(S_T0)))
    A("s_mul_i32 %s, %s, 6" % (s(S_T1), s(S_WAVE)))
    A("s_add_i32 %s, %s, %s" % (s(S_T0), s(S_T0), s(S_T1)))
    A("s_sub_i32 %s, %s, 16" % (s(S_T0), s(S_T0)))
    A("s_lshl_b32 %s, %s, 17" % (s(S_T2), s(S_BH)))
    A("s_mul_i32 %s, %s, 6144" % (s(S_D), s(S_WAVE)))
    for k in range(6):
        A("s_add_i32 %s, %s, %d" % (s(S_T1), s(S_T0), k))
        A("s_cmp_ge_i32 %s, 0" % s(S_T1))
        A("s_cselect_b32 %s, %s, 0" % (s(TC), s(S_T1)))
        A("s_lshl_b32 %s, %s, 10" % (s(TC), s(TC)))
        A("s_add_u32 %s, %s, %s" % (s(TC), s(TC), s(S_T2)))
        A("s_cmp_ge_i32 %s, 0" % s(S_T1))
        A("s_cselect_b32 %s, %s, %s" % (s(TC), s(TC), s(S_OOB)))
        A("s_add_u32 m0, %s, %d" % (s(S_D), B2_LDS + k * 1024))
        A("s_add_u32 %s, %s, %d" % (s(S_T1), s(TC), WS_BK))
        A("buffer_load_dwordx4 %s, %s, %s offen lds" % (v(V_L16), s(S_WS, 4), s(S_T1)))
        A("s_add_u32 m0, %s, %d" % (s(S_D), B2_LDS + 24576 + k * 1024))
        A("s_add_u32 %s, %s, %d" % (s(S_T1), s(TC), WS_BV))
        A("buffer_load_dwordx4 %s, %s, %s offen lds" % (v(V_L16), s(S_WS, 4), s(S_T1)))

def b2_reads(A, which):
    T = V_T + 5
    A("s_lshl_b32 %s, %s, 11" % (s(S_T0), s(S_WAVE)))
    A("s_add_u32 %s, %s, %d" % (s(S_T0), s(S_T0), B2_LDS + (0 if which == "k" else 24576)))
    A("v_add_u32 %s, %s, %s" % (v(T), s(S_T0), v(V_L16)))
    for tt in range(9):
        for k in range(2):
            A("ds_read_b128 %s, %s offset:%d" % (a((BK if which == "k" else BV) + (tt * 2 + k) * 4, 4), v(T), tt * 2048 + k * 1024))

def b2_S(tt, kt, qt, r=None):
    idx = (tt * 4 + kt * 2 + qt) * 4
    b = 128 + idx if idx < 128 else 84 + (idx - 128)
    return v(b, 4) if r is None else v(b + r)

B2_C8 = 16; B2_C0 = 32
def B2_CM(tt):
    return 48 + 4 * (tt - 1) if tt < 7 else 100

def b2_cinit(A):
    X = V_X
    A("v_mov_b32 %s, 0xff800000" % v(X))
    A("v_mov_b32 %s, 0" % v(X + 1))
    for tt in range(8):
        A("s_cmp_ge_u32 %s, %d" % (s(S_BTQ), 8 - tt))
        A("s_cselect_b32 %s, 0, 0xff800000" % s(S_BM + tt))
    k = 0
    pend = []
    for kt in range(2):
        for qt in range(2):
            for r in range(4):
                sp = S_BM + 8 + 2 * (k % 4)
                A("v_cmp_gt_i32 %s, %d, %s" % (s(sp, 2), 16 * kt + r, v(V_U[qt])))
                pend.append((sp, kt, qt, r))
                if len(pend) == 4:
                    A("s_nop 0")
                    for (sp2, kt2, qt2, r2) in pend:
                        o = (kt2 * 2 + qt2) * 4 + r2
                        A("v_cndmask_b32 %s, %s, %s, %s" % (v(B2_C8 + o), v(X + 1), v(X), s(sp2, 2)))
                        A("v_cndmask_b32 %s, %s, %s, %s" % (v(B2_C0 + o), v(X), v(X + 1), s(sp2, 2)))
                    pend = []
                k += 1
    for o in range(16):
        A("v_add_f32 %s, %s, %s" % (v(B2_C0 + o), s(S_BM), v(B2_C0 + o)))
    for tt in range(1, 8):
        for r in range(4):
            A("v_mov_b32 %s, %s" % (v(B2_CM(tt) + r), s(S_BM + tt)))

def b2_qk(A):
    for tt in range(9):
        for kt in range(2):
            for qt in range(2):
                if tt == 8: C = v(B2_C8 + (kt * 2 + qt) * 4, 4)
                elif tt == 0: C = v(B2_C0 + (kt * 2 + qt) * 4, 4)
                else: C = v(B2_CM(tt), 4)
                A(mf16(b2_S(tt, kt, qt), a(BK + (tt * 2 + kt) * 4, 4), a(BQ + 4 * qt, 4), C))

def b2_max(A):
    X = V_X
    M = [X + 2, X + 6]
    chains = []
    for qt in range(2):
        xs = [b2_S(tt, kt, qt, r) for tt in range(9) for kt in range(2) for r in range(4)]
        t0, t1 = V_T + 2 * qt, V_T + 2 * qt + 1
        c = ["v_max3_f32 %s, %s, %s, %s" % (v(t0), xs[0], xs[1], xs[2]), "v_max3_f32 %s, %s, %s, %s" % (v(t1), xs[3], xs[4], xs[5])]
        k = 6; alt = 0
        while k + 1 < len(xs):
            c.append("v_max3_f32 %s, %s, %s, %s" % (v((t0, t1)[alt]), v((t0, t1)[alt]), xs[k], xs[k + 1]))
            k += 2; alt ^= 1
        c.append("v_max_f32 %s, %s, %s" % (v(t0), v(t0), v(t1)))
        chains.append(c)
    for x, y in zip(*chains):
        A(x); A(y)
    for sw in ("v_permlane32_swap_b32", "v_permlane16_swap_b32"):
        for qt in range(2):
            A("v_mov_b32 %s, %s" % (v(V_T + 2 * qt + 1), v(V_T + 2 * qt)))
        A("s_nop 0")
        for qt in range(2):
            A("%s %s, %s" % (sw, v(V_T + 2 * qt), v(V_T + 2 * qt + 1)))
        A("s_nop 0")
        for qt in range(2):
            A("v_max_f32 %s, %s, %s" % (v(V_T + 2 * qt), v(V_T + 2 * qt), v(V_T + 2 * qt + 1)))
    for qt in range(2):
        A("v_mov_b32 %s, %s" % (v(M[qt]), v(V_T + 2 * qt)))
        A("v_mov_b32 %s, %s" % (v(M[qt] + 1), v(V_T + 2 * qt)))

def b2_pv(A):
    X = V_X
    M = [X + 2, X + 6]
    P = [48, 56]; O = 16; L = 32
    def soft(tt):
        o = []
        pb = P[tt & 1]
        for qt in range(2):
            for kt in range(2):
                b = int(b2_S(tt, kt, qt)[2:].split(":")[0])
                for h in range(2):
                    o.append("v_pk_add_f32 %s, %s, %s neg_lo:[0,1] neg_hi:[0,1]" % (v(b + 2 * h, 2), v(b + 2 * h, 2), v(M[qt], 2)))
        for qt in range(2):
            for kt in range(2):
                for r in range(4):
                    o.append("v_exp_f32 %s, %s" % (b2_S(tt, kt, qt, r), b2_S(tt, kt, qt, r)))
        for qt in range(2):
            for kt in range(2):
                for h in range(2):
                    o.append("v_cvt_pk_bf16_f32 %s, %s, %s" % (v(pb + qt * 4 + kt * 2 + h), b2_S(tt, kt, qt, 2 * h), b2_S(tt, kt, qt, 2 * h + 1)))
        return o
    def mm(tt):
        o = []
        pb = P[tt & 1]
        for qt in range(2):
            for dt in range(2):
                oo = v(O + (dt * 2 + qt) * 4, 4)
                o.append(mf16(oo, a(BV + (tt * 2 + dt) * 4, 4), v(pb + qt * 4, 4), "0" if tt == 0 else oo))
            l = v(L + qt * 4, 4)
            o.append(mf16(l, v(V_ONE, 4), v(pb + qt * 4, 4), "0" if tt == 0 else l))
        return o
    A(soft(0))
    for tt in range(9):
        m = mm(tt)
        if tt < 8:
            sf = soft(tt + 1)
            out = []
            step = len(sf) // 6
            for k in range(6):
                out += sf[k * step:k * step + 2]; out.append(m[k]); out += sf[k * step + 2:(k + 1) * step]
            out += sf[6 * step:]
            A(out)
        else:
            A("s_nop 1"); A(m)

def b2_out(A):
    X = V_X; P = 48; O = 16; L = 32; TC = S_T3
    A("s_nop 7")
    A("v_cmp_gt_u32 vcc, 768, %s" % v(V_L16))
    A("s_lshl_b32 %s, %s, 5" % (s(TC), s(S_BTQ)))
    A("s_add_u32 %s, %s, %s" % (s(TC), s(TC), s(S_BH)))
    A("s_lshl_b32 %s, %s, 10" % (s(TC), s(TC)))
    A("s_add_u32 %s, %s, %d" % (s(TC), s(TC), WS_CTXB))
    for qt in range(2):
        A("v_rcp_f32 %s, %s" % (v(X + 4), v(L + qt * 4)))
        A("s_nop 0")
        A("v_cndmask_b32 %s, 0, %s, vcc" % (v(X + 5), v(X + 4)))
        for dt in range(2):
            for r in range(4):
                A("v_mul_f32 %s, %s, %s" % (v(100 + dt * 4 + r), v(O + (dt * 2 + qt) * 4 + r), v(X + 4 + dt)))
        for h in range(4):
            A("v_cvt_pk_bf16_f32 %s, %s, %s" % (v(P + qt * 4 + h), v(100 + 2 * h), v(100 + 2 * h + 1)))
        A("s_add_u32 %s, %s, %d" % (s(S_D), s(TC), qt * 16384))
        A("buffer_store_dwordx4 %s, %s, %s, %s offen" % (v(P + qt * 4, 4), v(V_L16), s(S_WS, 4), s(S_D)))

def gen_k2(name, opts):
    stamps = opts.get("stamps", False)
    split = opts.get("split", 34)
    A = Asm()
    STAMPV[0] = 127
    A(".globl %s" % name); A(".p2align 8"); A(".type %s,@function" % name); A.label(name)
    A("s_cmp_ge_u32 s2, 256")
    A("s_cbranch_scc1 L_k2_end")
    load_ptrs(A)
    A("v_lshrrev_b32 v1, 6, v0")
    A("s_nop 0")
    A("v_readfirstlane_b32 %s, v1" % s(S_WAVE))
    A("s_mov_b32 %s, 0x7f000000" % s(S_OOB))
    A("s_waitcnt lgkmcnt(0)")
    if stamps:
        stamp_init(A); stamp(A)
    set_srd(A, S_WS, P_WS, WS_SIZE)
    set_srd(A, S_K, P_WS, 16 * MB)
    A("s_add_u32 %s, %s, %d" % (s(S_V), s(P_WS), WS_V))
    A("s_addc_u32 %s, %s, 0" % (s(S_V + 1), s(P_WS + 1)))
    A("s_mov_b32 %s, %d" % (s(S_V + 2), 16 * MB))
    A("s_mov_b32 %s, 0x20000" % s(S_V + 3))
    A("s_and_b32 %s, s2, 7" % s(S_T0))
    A("s_lshr_b32 %s, s2, 3" % s(S_T1))
    A("s_lshl_b32 %s, %s, 1" % (s(S_HEAD), s(S_T0)))
    A("s_and_b32 %s, %s, 1" % (s(S_T2), s(S_T1)))
    A("s_add_u32 %s, %s, %s" % (s(S_HEAD), s(S_HEAD), s(S_T2)))
    A("s_lshr_b32 %s, %s, 1" % (s(S_T1), s(S_T1)))
    A("s_and_b32 %s, %s, 1" % (s(S_ROLE), s(S_T1)))
    A("s_lshr_b32 %s, %s, 1" % (s(S_PAIR), s(S_T1)))
    A("v_and_b32 %s, 63, v0" % v(V_T))
    A("v_lshlrev_b32 %s, 4, %s" % (v(V_L16), v(V_T)))
    A("s_lshl_b32 %s, %s, 12" % (s(S_T0), s(S_WAVE)))
    A("v_add_u32 %s, %s, %s" % (v(V_DMA), s(S_T0), v(V_L16)))
    A("v_subrev_u32 %s, %s, %s" % (v(V_B), s(S_T0), v(V_L16)))
    A("v_add_u32 %s, 0x10000, %s" % (v(V_B), v(V_B)))
    A("v_and_b32 %s, 15, %s" % (v(V_T + 1), v(V_T)))
    A("v_lshrrev_b32 %s, 4, %s" % (v(V_T + 2), v(V_T)))
    A("v_lshlrev_b32 %s, 2, %s" % (v(V_T + 2), v(V_T + 2)))
    A("v_sub_u32 %s, %s, %s" % (v(V_U[0]), v(V_T + 1), v(V_T + 2)))
    A("v_add_u32 %s, 16, %s" % (v(V_U[1]), v(V_U[0])))
    for r in range(4):
        A("v_mov_b32 %s, 0x3f803f80" % v(V_ONE + r))
    A("s_sub_u32 %s, 15, %s" % (s(S_QB), s(S_PAIR)))
    A("s_add_u32 %s, %s, 1" % (s(S_T1), s(S_QB)))
    A("s_lshl_b32 %s, %s, 2" % (s(S_T1), s(S_T1)))
    A("s_sub_u32 %s, %s, %d" % (s(S_T3), s(S_T1), split))
    A("s_lshl_b32 %s, %s, 20" % (s(S_T2), s(S_HEAD)))
    A("s_cmp_eq_u32 %s, 0" % s(S_ROLE))
    A("s_cbranch_scc0 L_k2_roleS")
    A("s_mov_b32 %s, %s" % (s(S_TABS), s(S_T3)))
    A("s_mov_b32 %s, %s" % (s(S_TEND), s(S_T1)))
    A("s_lshl_b32 %s, %s, 14" % (s(S_SRC[0]), s(S_T3)))
    A("s_add_u32 %s, %s, %s" % (s(S_SRC[0]), s(S_SRC[0]), s(S_T2)))
    A("s_mov_b32 %s, %d" % (s(S_E1), split))
    A("s_mov_b32 %s, %s" % (s(S_S2), s(S_OOB)))
    A("s_mov_b32 %s, 1000" % s(S_E2))
    A("s_mov_b32 %s, 2" % s(S_ENDACT))
    A("s_branch L_k2_roledone")
    A.label("L_k2_roleS")
    A("s_mov_b32 %s, 0" % s(S_TABS))
    A("s_mov_b32 %s, %s" % (s(S_TEND), s(S_T3)))
    A("s_mov_b32 %s, %s" % (s(S_SRC[0]), s(S_T2)))
    A("s_mov_b32 %s, %s" % (s(S_E1), s(S_T3)))
    A("s_mov_b32 %s, %s" % (s(S_S2), s(S_T2)))
    A("s_add_u32 %s, %s, 1" % (s(S_N2), s(S_PAIR)))
    A("s_lshl_b32 %s, %s, 2" % (s(S_N2), s(S_N2)))
    A("s_mov_b32 %s, %s" % (s(S_E2), s(S_N2)))
    A("s_mov_b32 %s, 1" % s(S_ENDACT))
    A.label("L_k2_roledone")
    A("s_mov_b32 %s, 0" % s(S_PUBF))
    A("s_mov_b32 %s, 0" % s(S_PREF))
    A("s_sub_u32 %s, %s, 1" % (s(S_TLAST), s(S_TEND)))
    A("s_cmp_eq_u32 %s, 2" % s(S_ENDACT))
    A("s_cselect_b32 %s, %s, -1" % (s(S_TLAST), s(S_TLAST)))
    flag_off(A, S_FLAG)
    A("v_mov_b32 %s, 0" % v(V_FL + 1))
    A("s_mov_b32 %s, 0" % s(S_SEG))
    A("s_lshl_b32 %s, %s, 12" % (s(S_RET), s(S_WAVE)))
    def issue(srd, soff, slot, isv):
        A("s_add_u32 m0, %s, %d" % (s(S_RET), slot * 16384 + (65536 if isv else 0)))
        A("s_nop 0")
        for m in range(4):
            A("buffer_load_dwordx4 %s, %s, %s offen offset:%d lds" % (v(V_DMA), s(srd, 4), s(soff), m * 1024))
    b2_ids(A)
    b2_loads(A)
    X = Asm(); b2_cinit(X); check(X.L, "b2 cinit"); A(X.L)
    A("s_mov_b32 %s, %s" % (s(S_BM), s(S_SRC[0])))
    A(next_src(S_T1, S_SRC[0])); A(next_src(S_T2, S_T1)); A(next_src(S_T3, S_T2))
    A("s_mov_b32 %s, %s" % (s(S_SRC[1]), s(S_T3)))
    A("s_mov_b32 %s, %s" % (s(S_BM + 1), s(S_T1)))
    A("s_mov_b32 %s, %s" % (s(S_BM + 2), s(S_T2)))
    A(next_src(S_SRC[0], S_SRC[1]))
    q_base(A, S_QBASE, S_QB)
    if opts.get("b2stamp"): stamp(A)
    A("s_waitcnt vmcnt(0)")
    if opts.get("b2stamp"): stamp(A)
    A("s_barrier")
    def issue_l(srd, soff, slot, isv):
        o = ["s_add_u32 m0, %s, %d" % (s(S_RET), slot * 16384 + (65536 if isv else 0))]
        o2 = []
        for m in range(4):
            o2.append("buffer_load_dwordx4 %s, %s, %s offen offset:%d lds" % (v(V_DMA), s(srd, 4), s(soff), m * 1024))
        return [o] + [[x] for x in o2]
    def weave_items(L, items):
        step = max(1, len(L) // (len(items) + 1))
        out = []
        for k, d in enumerate(items):
            out += L[k * step:(k + 1) * step] + d
        out += L[len(items) * step:]
        return out
    X = Asm(); b2_reads(X, "k"); b2_reads(X, "v"); X("s_waitcnt lgkmcnt(15)"); X("s_waitcnt lgkmcnt(0)")
    A(X.L)
    X = Asm(); b2_qk(X); X("s_nop 7"); b2_max(X)
    items = issue_l(S_K, S_BM, 0, False)
    for k in range(16):
        it = []
        if k % 4 == 0:
            it.append("s_add_u32 %s, %s, %d" % (s(S_T0), s(S_QBASE), k * 1024))
        it.append("buffer_load_dwordx4 %s, %s, %s, %s offen offset:%d" % (a(A_Q[0] + 4 * k, 4), v(V_L16), s(S_WS, 4), s(S_T0), (k % 4) * 1024))
        items.append(it)
    L = weave_items(X.L, items)
    check(L, "b2 qk/max")
    A(L)
    if opts.get("b2stamp"): stamp(A)
    dm = []
    dm += issue_l(S_K, S_BM + 1, 1, False) + issue_l(S_V, S_BM, 0, True)
    late = issue_l(S_K, S_BM + 2, 2, False) + issue_l(S_V, S_BM + 1, 1, True) + issue_l(S_K, S_SRC[1], 3, False) + issue_l(S_V, S_BM + 2, 2, True)
    X = Asm(); b2_pv(X)
    L = X.L
    step = len(L) // (len(dm) + 1)
    out = []
    for k, d in enumerate(dm):
        out += L[k * step:(k + 1) * step] + d
    out += L[len(dm) * step:]
    X = Asm(); X(out); b2_out(X); check(X.L, "b2 pv"); A(X.L)
    if opts.get("b2stamp"): stamp(A)
    for it in late:
        A(it)
        if it[0].startswith("s_add_u32 m0"):
            A("s_nop 0")
    A("s_mov_b32 %s, %s" % (s(S_T0), s(S_RET)))
    A("s_add_u32 %s, %s, %d" % (s(S_DM0[1]), s(S_T0), 3 * 16384))
    A("v_mov_b32 %s, %s" % (v(V_KA[0]), v(V_L16)))
    A("v_add_u32 %s, 16384, %s" % (v(V_KA[1]), v(V_L16)))
    A("s_waitcnt vmcnt(22)")
    A("s_barrier")
    if stamps:
        stamp(A)
    A("s_cmp_eq_u32 %s, 0" % s(S_ROLE))
    A("s_cbranch_scc1 L_k2_noq2")
    load_q(A, 1, S_PAIR)
    A.label("L_k2_noq2")
    A.label("L_k2_seg")
    A("s_lshl_b32 %s, %s, 2" % (s(S_DIAG), s(S_QB)))
    A("s_add_u32 %s, %s, %s" % (s(S_DIAG), s(S_DIAG), s(S_WAVE)))
    A("s_lshl_b32 %s, %s, 5" % (s(S_QROW), s(S_DIAG)))
    P = Asm(); seg_prologue(P); check(P.L, "k2 segpro"); A(P.L)
    ncopy = 4 if opts.get("k2copies", 1) == 4 else 1
    if ncopy == 4:
        for wv in range(1, 4):
            A("s_cmp_eq_u32 %s, %d" % (s(S_WAVE), wv))
            A("s_cbranch_scc1 L_k2_loop_%d" % wv)
    for wv in range(ncopy):
        b0 = body(0, False, opts, wv); b1 = body(1, False, opts, wv); bf = body(1, True, opts, wv)
        if not any(k.startswith("k2no") for k in opts):
            check(P.L[-60:] + b0 + b1 + b0 + bf, "k2 bodies")
        A(".p2align 6")
        A.label("L_k2_loop_%d" % wv)
        A("s_cmp_eq_u32 %s, %s" % (s(S_TABS), s(S_TLAST)))
        A("s_cbranch_scc1 L_k2_fl_%d" % wv)
        A.label("L_k2_flret_%d" % wv)
        if opts.get("k2bodystamp"):
            stamp(A)
        A(b0)
        A("s_cmp_eq_u32 %s, %s" % (s(S_TABS), s(S_TEND)))
        A("s_cbranch_scc1 L_k2_final_%d" % wv)
        A(b1)
        A("s_branch L_k2_loop_%d" % wv)
        A.label("L_k2_final_%d" % wv)
        A("s_cmp_eq_u32 %s, 2" % s(S_ENDACT))
        A("s_cbranch_scc1 L_k2_ec_%d" % wv)
        A.label("L_k2_ecret_%d" % wv)
        A(bf)
        if wv < ncopy - 1:
            A("s_branch L_k2_segend")
    A.label("L_k2_segend")
    if stamps:
        stamp(A)
    A("s_nop 7")
    A("s_nop 1")
    A("s_cmp_eq_u32 %s, 1" % s(S_ENDACT))
    A("s_cbranch_scc1 L_k2_pub")
    A("s_cmp_eq_u32 %s, 2" % s(S_ENDACT))
    A("s_cbranch_scc0 L_k2_fin0")
    M = Asm(); epi_merge_load(M); epi_final(M, True); check(M.L, "k2 merge"); A(M.L)
    A("s_branch L_k2_done")
    A.label("L_k2_fin0")
    M = Asm(); epi_final(M, False); check(M.L, "k2 fin"); A(M.L)
    A("s_branch L_k2_done")
    A.label("L_k2_pub")
    M = Asm(); epi_publish(M); check(M.L, "k2 pub"); A(M.L)
    if stamps:
        stamp(A)
    A("s_mov_b32 %s, %s" % (s(S_QB), s(S_PAIR)))
    A("s_mov_b32 %s, 0" % s(S_TABS))
    A("s_mov_b32 %s, %s" % (s(S_TEND), s(S_N2)))
    A("s_mov_b32 %s, 0" % s(S_ENDACT))
    for r in range(64):
        A("v_accvgpr_mov_b32 %s, %s" % (a(A_Q[0] + r), a(A_Q[1] + r)))
    A("s_add_u32 %s, %s, 16384" % (s(S_T0), s(S_DM0[1])))
    A("s_and_b32 %s, %s, 0xffff" % (s(S_T0), s(S_T0)))
    A("v_add_u32 %s, %s, %s" % (v(V_KA[0]), s(S_T0), v(V_B)))
    A("v_subrev_u32 %s, 0x10000, %s" % (v(V_KA[0]), v(V_KA[0])))
    A("s_add_u32 %s, %s, 16384" % (s(S_T0), s(S_T0)))
    A("s_and_b32 %s, %s, 0xffff" % (s(S_T0), s(S_T0)))
    A("v_add_u32 %s, %s, %s" % (v(V_KA[1]), s(S_T0), v(V_B)))
    A("v_subrev_u32 %s, 0x10000, %s" % (v(V_KA[1]), v(V_KA[1])))
    A("s_branch L_k2_seg")
    A.label("L_k2_done")
    if stamps:
        A("s_waitcnt vmcnt(0)")
        stamp(A)
        stamp_flush(A, S_WS, S_WAVE, 1, "L_k2_stf")
    A.label("L_k2_end")
    A("s_endpgm")
    for wv in range(ncopy):
        for p in range(2):
            mb = mask_block(p ^ 1, "L_k2_maskret%d_%d" % (p, wv), "L_k2_mask%d_%d" % (p, wv)); check(mb, "mask"); A(mb)
            rb = resc_block(p ^ 1, "L_k2_rescret%d_%d" % (p, wv), "L_k2_resc%d_%d" % (p, wv)); check(rb, "resc"); A(rb)
    for wv in range(ncopy):
        A.label("L_k2_fl_%d" % wv)
        A(flag_load())
        A("s_branch L_k2_flret_%d" % wv)
        A(early_check_block("L_k2_ec_%d" % wv, "L_k2_ecret_%d" % wv))
    mb = mask_block(0, "L_k2_maskPret", "L_k2_maskP"); A(mb)
    return A
```

```python
import re

def v(n, c=1):
    return "v%d" % n if c == 1 else "v[%d:%d]" % (n, n + c - 1)
def a(n, c=1):
    return "a%d" % n if c == 1 else "a[%d:%d]" % (n, n + c - 1)
def s(n, c=1):
    return "s%d" % n if c == 1 else "s[%d:%d]" % (n, n + c - 1)

class Asm:
    def __init__(self):
        self.L = []
    def __call__(self, *lines):
        for x in lines:
            if isinstance(x, (list, tuple)):
                self(*x)
            else:
                self.L.append(x)
    def label(self, n):
        self.L.append(n + ":")
    def c(self, text):
        self.L.append("; " + text)
    def text(self):
        out = []
        for x in self.L:
            if x.endswith(":") or x.startswith(";") or x.startswith("."):
                out.append(x)
            else:
                out.append(x)
        return "\n".join(out) + "\n"

def weave(mfmas, gaps):
    out = []
    for i, m in enumerate(mfmas):
        out.append(m)
        out.extend(gaps[i])
    return out

def spread(items, ngaps, start=0, end=None, gaps=None):
    if gaps is None:
        gaps = [[] for _ in range(ngaps)]
    if end is None:
        end = ngaps
    n = len(items)
    span = end - start
    for i, it in enumerate(items):
        g = start + (i * span) // n
        if isinstance(it, (list, tuple)):
            gaps[g].extend(it)
        else:
            gaps[g].append(it)
    return gaps

_REG = re.compile(r"^(v|a|s)(\d+)$")
_RNG = re.compile(r"^(v|a|s)\[(\d+):(\d+)\]$")

def regs_of(tok):
    tok = tok.strip()
    neg = tok.lstrip("-")
    if neg.startswith("abs(") or neg.startswith("|"):
        neg = neg.replace("abs(", "").replace(")", "").replace("|", "")
    m = _REG.match(neg)
    if m:
        return [(m.group(1), int(m.group(2)))]
    m = _RNG.match(neg)
    if m:
        return [(m.group(1), i) for i in range(int(m.group(2)), int(m.group(3)) + 1)]
    if neg == "vcc":
        return [("x", "vcc")]
    if neg == "exec":
        return [("x", "exec")]
    if neg == "m0":
        return [("x", "m0")]
    return []

def split_ops(rest):
    ops = []
    depth = 0
    cur = ""
    for ch in rest:
        if ch in "[(":
            depth += 1
        if ch in "])":
            depth -= 1
        if ch == "," and depth == 0:
            ops.append(cur.strip())
            cur = ""
        else:
            cur += ch
    if cur.strip():
        ops.append(cur.strip())
    return ops

TRANS = ("v_exp_f32", "v_log_f32", "v_rcp_f32", "v_rsq_f32", "v_sqrt_f32", "v_sin_f32", "v_cos_f32")

class Ins:
    def __init__(self, text):
        self.text = text
        t = text.split(";")[0].strip()
        parts = t.split(None, 1)
        self.op = parts[0]
        rest = parts[1] if len(parts) > 1 else ""
        ops = split_ops(rest)
        self.mods = ""
        if ops:
            last = ops[-1].split(None, 1)
            if len(last) > 1:
                ops[-1] = last[0]
                self.mods = last[1]
        self.ops = ops
        op = self.op
        self.cls = ("mfma" if op.startswith("v_mfma") else
                    "valu" if op.startswith("v_") else
                    "ds" if op.startswith("ds_") else
                    "vmem" if op.startswith("buffer_") or op.startswith("global_") else
                    "smem" if op.startswith("s_load") or op.startswith("s_mem") else
                    "salu")
        R, W = [], []
        o = ops
        if self.cls == "mfma":
            W = regs_of(o[0]); R = regs_of(o[1]) + regs_of(o[2]) + regs_of(o[3])
            self.D = regs_of(o[0]); self.A = regs_of(o[1]); self.B = regs_of(o[2]); self.C = regs_of(o[3])
            self.passes = 8 if "32x32" in op else 4
        elif self.cls == "valu":
            if op.startswith("v_cmp"):
                W = regs_of(o[0]); R = sum([regs_of(x) for x in o[1:]], [])
                if op.startswith("v_cmpx"):
                    W += [("x", "exec")]
            elif op.startswith("v_permlane32_swap") or op.startswith("v_permlane16_swap"):
                W = regs_of(o[0]) + regs_of(o[1]); R = list(W)
            elif op.startswith("v_add_co") or op.startswith("v_sub_co") or op.startswith("v_addc_co") or op.startswith("v_subb_co"):
                W = regs_of(o[0]) + regs_of(o[1]); R = sum([regs_of(x) for x in o[2:]], [])
            else:
                W = regs_of(o[0]); R = sum([regs_of(x) for x in o[1:]], [])
                if op.startswith("v_fmac") or op.startswith("v_pk_fmac") or op.startswith("v_writelane") or "_dpp" in op:
                    R += regs_of(o[0])
                if op.startswith("v_cndmask") and len(o) == 3:
                    R += [("x", "vcc")]
        elif self.cls == "ds":
            if op.startswith("ds_read") or op.startswith("ds_bpermute") or op.startswith("ds_swizzle"):
                W = regs_of(o[0]); R = sum([regs_of(x) for x in o[1:]], [])
            else:
                R = sum([regs_of(x) for x in o], [])
        elif self.cls == "vmem":
            self.lds = " lds" in (" " + self.mods) or self.mods.endswith("lds")
            if op.startswith("buffer_inv") or op.startswith("buffer_wbl2"):
                pass
            elif "load" in op and not self.lds:
                W = regs_of(o[0]); R = sum([regs_of(x) for x in o[1:]], [])
            elif "load" in op and self.lds:
                R = sum([regs_of(x) for x in o], []) + [("x", "m0")]
            elif "atomic" in op:
                R = sum([regs_of(x) for x in o], [])
                if "sc0" in self.mods:
                    W = regs_of(o[0]) if op.startswith("buffer") else regs_of(o[0])
            else:
                R = sum([regs_of(x) for x in o], [])
                if op.startswith("buffer_store"):
                    self.sdata = regs_of(o[0])
                else:
                    self.sdata = regs_of(o[1])
        elif self.cls == "smem":
            W = regs_of(o[0]); R = sum([regs_of(x) for x in o[1:]], [])
        else:
            nodst = ("s_cmp", "s_waitcnt", "s_barrier", "s_branch", "s_cbranch", "s_nop", "s_setprio", "s_bitcmp",
                     "s_endpgm", "s_sleep", "s_setreg", "s_sethalt")
            if op.startswith(nodst):
                R = sum([regs_of(x) for x in o], [])
            else:
                W = regs_of(o[0]) if o else []
                R = sum([regs_of(x) for x in o[1:]], [])
                if "saveexec" in op:
                    W += [("x", "exec")]; R += [("x", "exec")]
                if op.startswith("s_addk") or op.startswith("s_mulk") or op.startswith("s_cmov"):
                    R += regs_of(o[0])
        self.R = set(R); self.W = set(W)
        self.states = 1
        if op == "s_nop":
            self.states = int(o[0], 0) + 1

def check(lines, name="", verbose=True):
    ins = [Ins(x) for x in lines if not (x.endswith(":") or x.startswith(";") or x.startswith("."))]
    probs = []
    n = len(ins)
    def dist(i, j):
        return sum(ins[k].states for k in range(i + 1, j))
    WIN = 24
    for j, c in enumerate(ins):
        acc = 0
        for i in range(j - 1, max(-1, j - WIN - 1), -1):
            p = ins[i]
            d = acc
            need = 0; why = ""
            def req(nn, w):
                nonlocal need, why
                if nn > need:
                    need = nn; why = w
            if p.cls == "valu":
                wv = {r for r in p.W if r[0] in "va"}
                ws = {r for r in p.W if r[0] == "s" or r == ("x", "vcc")}
                if c.cls == "mfma" and (wv & c.R):
                    req(2, "VALU->MFMA operand")
                if c.cls == "valu" and c.op.startswith("v_permlane") and (wv & c.R):
                    req(2, "VALU->permlane")
                if c.cls == "valu" and (c.op.startswith("v_readfirstlane") or c.op.startswith("v_readlane")) and (wv & c.R):
                    req(1, "VALU->readlane")
                if c.cls == "valu" and "_dpp" in c.op and (wv & c.R):
                    req(2, "VALU->DPP")
                if p.op.split("_e")[0] in TRANS or p.op in TRANS:
                    if c.cls in ("valu",) and (wv & c.R) and not (c.op in TRANS):
                        req(1, "trans->VALU")
                    if c.cls == "mfma" and (wv & c.R):
                        req(2, "trans->MFMA")
                if ws:
                    if c.cls == "valu" and (ws & c.R):
                        req(2, "VALU sgpr->VALU read")
                    if c.cls == "vmem" and (ws & c.R):
                        req(5, "VALU sgpr->VMEM")
                    if c.cls == "valu" and (c.op.startswith("v_readlane") or c.op.startswith("v_writelane")) and (ws & c.R):
                        req(4, "VALU sgpr->lane select")
                if ("x", "exec") in p.W:
                    if c.cls == "mfma":
                        req(4, "VALU exec->MFMA")
            if p.cls == "mfma":
                D = set(p.D)
                tab_rd = {4: 8, 8: 12}[p.passes]
                tab_c = {4: 6, 8: 10}[p.passes]
                if c.cls == "mfma":
                    if D & (set(c.A) | set(c.B)):
                        req(tab_rd, "MFMA D->MFMA A/B")
                    if D & set(c.C):
                        if not (set(c.C) == D and c.passes == p.passes):
                            req(tab_c, "MFMA D->MFMA C overlap")
                    if (D & set(c.D)) and not (set(c.C) == D):
                        req(tab_c, "MFMA D->MFMA D WAW")
                elif c.cls in ("valu", "vmem", "ds"):
                    if D & (c.R | c.W):
                        req(tab_rd, "MFMA D->VALU/VMEM/DS")
                if c.cls == "valu" and (set(p.C) & c.W):
                    req({4: 3, 8: 7}[p.passes], "MFMA C WAR VALU write")
            if p.cls == "salu" and ("x", "m0") in p.W:
                if c.cls == "vmem" and getattr(c, "lds", False):
                    req(1, "M0->LDS DMA")
            if p.cls == "vmem" and hasattr(p, "sdata") and len(p.sdata) >= 3:
                if set(p.sdata) & c.W:
                    req(2 if c.cls == "valu" else 1, "store data WAR")
            if need > d:
                probs.append("%s HAZARD %s: need %d have %d\n    P: %s\n    C: %s" % (name, why, need, d, p.text, c.text))
            acc += p.states
            if acc > 20:
                break
    vmq = []
    lgq = []
    for j, c in enumerate(ins):
        if c.op == "s_waitcnt":
            t = c.text
            m = re.search(r"vmcnt\((\d+)\)", t)
            if m:
                k = int(m.group(1))
                while len(vmq) > k:
                    vmq.pop(0)
            m = re.search(r"lgkmcnt\((\d+)\)", t)
            if m:
                k = int(m.group(1))
                if any(x[2] for x in lgq) and k != 0:
                    probs.append("%s counted lgkmcnt with SMEM outstanding: %s" % (name, t))
                while len(lgq) > k:
                    lgq.pop(0)
            continue
        touched = c.R | c.W
        for q, nm in ((vmq, "vmcnt"), (lgq, "lgkmcnt")):
            for e in q:
                if e[0] & touched:
                    probs.append("%s WAIT missing (%s): pending %s\n    C: %s" % (name, nm, e[1], c.text))
        if c.cls == "vmem" and not c.op.startswith("buffer_inv") and not c.op.startswith("buffer_wbl2"):
            vmq.append((set(c.W), c.text))
            if len(vmq) > 63:
                probs.append("%s vmcnt overflow at %s" % (name, c.text))
        elif c.cls == "ds":
            lgq.append((set(c.W), c.text, False))
            if len(lgq) > 15:
                pass
        elif c.cls == "smem":
            lgq.append((set(c.W), c.text, True))
    if verbose:
        for p in probs[:40]:
            print(p)
        if len(probs) > 40:
            print("... %d more" % (len(probs) - 40))
    return probs


def auto_lgkm(lines, pending=None):
    q = list(pending or [])
    out = []
    for x in lines:
        if x.endswith(":") or x.startswith(";") or x.startswith("."):
            out.append(x); continue
        c = Ins(x)
        if c.op == "s_waitcnt":
            m = re.search(r"lgkmcnt\((\d+)\)", x)
            if m:
                k = int(m.group(1))
                while len(q) > k:
                    q.pop(0)
            out.append(x); continue
        touched = c.R | c.W
        need = -1
        for i, e in enumerate(q):
            if e & touched:
                need = i
        if need >= 0:
            n = len(q) - 1 - need
            n = min(n, 15)
            out.append("s_waitcnt lgkmcnt(%d)" % n)
            while len(q) > n:
                q.pop(0)
        out.append(x)
        if c.cls == "ds":
            q.append(set(c.W))
    return out, q
```

```python
from asmgen import *

import struct
def f32bits(x):
    return struct.unpack('<I', struct.pack('<f', x))[0]

MB = 1 << 20
WS_K   = 0
WS_V   = 16 * MB
WS_Q   = 32 * MB
WS_CTX = 48 * MB
WS_BQ  = 64 * MB
WS_BK  = 66 * MB
WS_BV  = 68 * MB
WS_CTXB = 70 * MB
WS_WOT = 72 * MB
WS_WOBT = 76 * MB
WS_PART = 80 * MB
WS_FLAG = 100 * MB
WS_DBG = 104 * MB
WS_SIZE = 256 * MB

S_PTR = 32
P_AX, P_CKV, P_WQ, P_WUK, P_WUV, P_WO, P_BX, P_BWQKV, P_BWO, P_OUT, P_DBG, P_WS = [S_PTR + 2 * i for i in range(12)]

def mf16(acc, A, B, C):
    return "v_mfma_f32_16x16x32_bf16 %s, %s, %s, %s" % (acc, A, B, C)

S_ST = 92
S_STI = 91
STAMPV = [255]
def stamp_init(A):
    A("s_mov_b32 %s, 0" % s(S_STI))
    A("v_mov_b32 %s, 0" % v(STAMPV[0]))
def stamp(A):
    A("s_memtime %s" % s(S_ST, 2))
    A("s_memrealtime %s" % s(S_ST + 2, 2))
    A("s_waitcnt lgkmcnt(0)")
    A("s_mov_b32 m0, %s" % s(S_STI))
    A("s_nop 1")
    A("v_writelane_b32 %s, %s, m0" % (v(STAMPV[0]), s(S_ST)))
    A("s_add_u32 m0, %s, 1" % s(S_STI))
    A("s_nop 1")
    A("v_writelane_b32 %s, %s, m0" % (v(STAMPV[0]), s(S_ST + 2)))
    A("s_add_u32 %s, %s, 2" % (s(S_STI), s(S_STI)))
def stamp_flush(A, srd, wave_sgpr, kidx, lbl):
    A("s_lshl_b32 %s, s2, 2" % s(S_ST))
    A("s_add_u32 %s, %s, %s" % (s(S_ST), s(S_ST), s(wave_sgpr)))
    A("s_lshl_b32 %s, %s, 8" % (s(S_ST), s(S_ST)))
    A("s_add_u32 %s, %s, %d" % (s(S_ST), s(S_ST), WS_DBG + kidx * MB))
    A("v_and_b32 v1, 63, v0")
    A("v_lshlrev_b32 v1, 2, v1")
    A("buffer_store_dword %s, v1, %s, %s offen" % (v(STAMPV[0]), s(srd, 4), s(S_ST)))
    A.label(lbl)

def set_srd(A, srd, ptr, nbytes, extra=None):
    if extra is None:
        A("s_mov_b32 %s, %s" % (s(srd), s(ptr)))
        A("s_mov_b32 %s, %s" % (s(srd + 1), s(ptr + 1)))
        A("s_mov_b32 %s, %d" % (s(srd + 2), nbytes))
    else:
        A("s_add_u32 %s, %s, %s" % (s(srd), s(ptr), s(extra)))
        A("s_addc_u32 %s, %s, 0" % (s(srd + 1), s(ptr + 1)))
        A("s_sub_u32 %s, %d, %s" % (s(srd + 2), nbytes, s(extra)))
    A("s_mov_b32 %s, 0x20000" % s(srd + 3))

def descriptor(name, vgpr=512, sgpr=102, accum=256):
    return """.section .rodata,"a"
.p2align 6
.amdhsa_kernel %s
  .amdhsa_next_free_vgpr %d
  .amdhsa_next_free_sgpr %d
  .amdhsa_accum_offset %d
  .amdhsa_group_segment_fixed_size 0
  .amdhsa_kernarg_size 96
  .amdhsa_user_sgpr_count 2
  .amdhsa_user_sgpr_kernarg_segment_ptr 1
  .amdhsa_system_sgpr_workgroup_id_x 1
.end_amdhsa_kernel
""" % (name, vgpr, sgpr, accum)

def load_ptrs(A):
    A("s_load_dwordx16 s[32:47], s[0:1], 0")
    A("s_load_dwordx8 s[48:55], s[0:1], 64")

S_TOKEN = 3
FL_KV = WS_FLAG; FL_B1 = WS_FLAG + 32768; FL_Q = WS_FLAG + 65536; FL_P = WS_FLAG + 98304
FL_CTX = WS_FLAG + 131072; FL_CB = WS_FLAG + 163840; FL_WO = WS_FLAG + 196608
def flag_set(A, off_sgpr, wave_sgpr, srd, lbl, vt):
    A("s_cmp_lg_u32 %s, 0" % s(wave_sgpr))
    A("s_cbranch_scc1 %s" % lbl)
    A("v_mov_b32 %s, 0" % v(vt))
    A("v_mov_b32 %s, %s" % (v(vt + 1), s(S_TOKEN)))
    A("s_mov_b64 exec, 1")
    A("buffer_store_dword %s, %s, %s, %s offen sc1" % (v(vt + 1), v(vt), s(srd, 4), s(off_sgpr)))
    A("s_mov_b64 exec, -1")
    A.label(lbl)
def flag_poll(A, voff, soff_sgpr, srd, tag, vt, spin_sgpr):
    A("s_mov_b32 %s, 0" % s(spin_sgpr))
    A.label("L_poll_%s" % tag)
    A("buffer_load_dword %s, %s, %s, %s offen sc1" % (v(vt), v(voff), s(srd, 4), s(soff_sgpr)))
    A("s_waitcnt vmcnt(0)")
    A("v_cmp_ne_u32 vcc, %s, %s" % (s(S_TOKEN), v(vt)))
    A("s_nop 4")
    A("s_cbranch_vccz L_pollok_%s" % tag)
    A("s_add_u32 %s, %s, 1" % (s(spin_sgpr), s(spin_sgpr)))
    A("s_sleep 1")
    A("s_cmp_lt_u32 %s, 400000" % s(spin_sgpr))
    A("s_cbranch_scc1 L_poll_%s" % tag)
    A.label("L_pollok_%s" % tag)
```

```python
from common import *

LDS_BYTES = 131072
S_ACT = 4; S_W = 8; S_WS = 12
S_WAVE = 16; S_SOA = 17; S_SOW = 18; S_WSTEP = 19; S_CNT = 20; S_M0C = 21; S_M0W = 22
S_OUT = 23; S_TN = 26; S_ROA = 27; S_ROW = 28; S_T = 29; S_OOB = 30; S_TILE = 31
S_ASTR = 56; S_WSTR = 57; S_BT = 58; S_ROW0 = 59; S_TYPE = 60; S_T0 = 61; S_T1 = 62; S_T2 = 63; S_EPI = 64
S_SCALE = 65; S_ESCALE = 66; S_HASN = 67; S_EOUT = 68; S_EEPI = 69
S_DREM = 70; S_DTILE = 71; S_ACT2 = 72; S_W2 = 76; S_WSTEP2 = 80; S_OUT2 = 81; S_EPI2 = 82; S_SCALE2 = 83; S_TYPE2 = 84

V_L16 = 1
V_AC = 2
V_AW = 4
V_VC = 12
V_VW = 20
V_T = 28
FC = [36, 100]; FW = [68, 132]
V_AW2 = 164
V_VC2 = 172
V_VW2 = 180
V_E = 188
V_TCH = 240
V_TD = 241
V_GA = 242
S_TCH = 85

def acc_idx(ktype, i, j):
    if ktype:
        return (i * 8 + j) * 4
    return (((i >> 1) * 8 + j) * 2 + (i & 1)) * 4

def frag_reads(sub, buf):
    def rc(i):
        return "ds_read_b128 %s, %s offset:%d" % (v(FC[buf] + 4 * i, 4), v(V_AC + sub), i * 2048)
    def rw(j, t):
        return "ds_read_b64_tr_b16 %s, %s offset:%d" % (v(FW[buf] + 4 * j + 2 * t, 2), v(V_AW + j), 16384 * sub + 2048 * t)
    r = [rc(0)]
    for j in range(8):
        r.append(rw(j, 0)); r.append(rw(j, 1))
    for i in range(1, 8):
        r.append(rc(i))
    return r

def dma_c(m):
    return "buffer_load_dwordx4 %s, %s, %s offen offset:%d lds" % (v(V_VC + m), s(S_ACT, 4), s(S_SOA), (m & 3) * 1024)
def dma_w(m):
    return "buffer_load_dwordx4 %s, %s, %s offen offset:%d lds" % (v(V_VW + m), s(S_W, 4), s(S_SOW), (m & 3) * 1024)

def touch_prep(wv, opts, td=None):
    td = opts.get("k1touch", 3) if td is None else td
    if wv == 0:
        return ["s_add_u32 %s, %s, %d" % (s(S_TCH), s(S_SOA), 128 * td)]
    if wv == 1:
        return ["s_mul_i32 %s, %s, %d" % (s(S_TCH), s(S_WSTEP), td), "s_add_u32 %s, %s, %s" % (s(S_TCH), s(S_TCH), s(S_SOW))]
    return []
def touch_issue(wv):
    if wv == 0:
        return ["buffer_load_dword %s, %s, %s, %s offen" % (v(V_TD), v(V_TCH), s(S_ACT, 4), s(S_TCH))]
    if wv == 1:
        return ["buffer_load_dword %s, %s, %s, %s offen" % (v(V_TD), v(V_TCH), s(S_W, 4), s(S_TCH))]
    return ["global_load_dword %s, %s, off" % (v(V_TD), v(V_GA, 2))]

def global_touch_setup(A, opts={}):
    ID = S_T0; OFF = S_T1; LO = S_T2; HI = S_TCH
    A("v_and_b32 %s, 63, v0" % v(V_T))
    A("v_lshlrev_b32 %s, 7, %s" % (v(V_T), v(V_T)))
    A("s_lshl_b32 %s, s2, 1" % s(ID))
    A("s_add_u32 %s, %s, %s" % (s(ID), s(ID), s(S_WAVE)))
    A("s_sub_u32 %s, %s, 2" % (s(ID), s(ID)))
    A("s_min_u32 %s, %s, 511" % (s(ID), s(ID)))
    rounds = [(P_WQ, 448, P_BWO, 49), (P_WO, 448, P_WO, 1), (P_AX, 224, P_BX, 224), (P_BWQKV, 147, P_BWQKV, 1)]
    for r, (p0, n0, p1, n1) in enumerate(rounds):
        A("s_sub_u32 %s, %s, %d" % (s(OFF), s(ID), n0))
        A("s_min_u32 %s, %s, %d" % (s(OFF), s(OFF), n1 - 1))
        A("s_cmp_lt_u32 %s, %d" % (s(ID), n0))
        A("s_cselect_b32 %s, %s, %s" % (s(OFF), s(ID), s(OFF)))
        A("s_cselect_b32 %s, %s, %s" % (s(LO), s(p0), s(p1)))
        A("s_cselect_b32 %s, %s, %s" % (s(HI), s(p0 + 1), s(p1 + 1)))
        A("s_lshl_b32 %s, %s, 13" % (s(OFF), s(OFF)))
        A("s_add_u32 %s, %s, %s" % (s(LO), s(LO), s(OFF)))
        A("s_addc_u32 %s, %s, 0" % (s(HI), s(HI)))
        A("v_add_co_u32 %s, vcc, %s, %s" % (v(V_GA + 2 * r), s(LO), v(V_T)))
        A("v_mov_b32 %s, %s" % (v(V_GA + 2 * r + 1), s(HI)))
        A("s_nop 0")
        A("v_addc_co_u32 %s, vcc, 0, %s, vcc" % (v(V_GA + 2 * r + 1), v(V_GA + 2 * r + 1)))

def body(first, ktype, opts, wv=0):
    out = []
    tag = "%d_%d_%d" % (ktype, wv, 1 if first else 0)
    for sub in range(2):
        cur = sub; nxt = cur ^ 1
        mfs = []
        for i in range(8):
            for j in range(8):
                acc = a(acc_idx(ktype, i, j), 4)
                C = "0" if (first and sub == 0) else acc
                cf = v(FC[cur] + 4 * i, 4); wf = v(FW[cur] + 4 * j, 4)
                mfs.append(mf16(acc, wf, cf, C) if ktype else mf16(acc, cf, wf, C))
        gaps = [[] for _ in range(64)]
        if sub == 0:
            rd = frag_reads(1, nxt)
            for n, x in enumerate(rd):
                gaps[2 * n].append(x)
            if not first:
                d = [dma_w(3), ["s_add_u32 m0, %s, 4096" % s(S_M0W)], dma_w(4), dma_w(5), dma_w(6), dma_w(7)]
                pos = opts.get("k1p2", [3, 5, 9, 15, 21, 27])
                for x, p in zip(d, pos):
                    gaps[p] += x if isinstance(x, list) else [x]
            tp = opts.get("k1tpos", 33)
            gaps[tp - 2] += touch_prep(wv, opts)
            gaps[tp] += touch_issue(wv)
            if wv >= 2:
                for k in range(6):
                    gaps[tp + 2 + 2 * k] += ["v_mov_b32 %s, %s" % (v(V_GA + k), v(V_GA + k + 2))]
            bp = opts.get("k1barpos", 57)
            fused = opts.get("fused")
            if first and fused:
                gaps[bp] += ["s_waitcnt vmcnt(10) lgkmcnt(0)"]
            elif first:
                gaps[bp] += ["s_cmp_eq_u32 %s, 0" % s(S_TILE),
                             "s_cbranch_scc1 L_k1_fw0_%s" % tag,
                             "s_waitcnt vmcnt(33) lgkmcnt(0)",
                             "s_branch L_k1_fw1_%s" % tag,
                             "L_k1_fw0_%s:" % tag,
                             "s_waitcnt vmcnt(3) lgkmcnt(0)",
                             "L_k1_fw1_%s:" % tag]
            else:
                gaps[bp] += ["s_waitcnt vmcnt(1) lgkmcnt(0)"]
            if not opts.get("nobar"):
                gaps[bp] += ["s_barrier"]
            dl = opts.get("k1delay", 2) * wv
            while dl > 0:
                gaps[bp] += ["s_nop %d" % (min(dl, 16) - 1)]
                dl -= 16
            if fused:
                gaps[bp + 1] += ["s_add_u32 s27, s27, 128",
                                 "s_add_u32 s28, s28, %s" % s(S_WSTEP)]
                gaps[bp + 2] += ["s_sub_u32 %s, %s, 1" % (s(S_DREM), s(S_DREM)),
                                 "s_cmp_gt_i32 %s, 0" % s(S_DREM)]
                gaps[bp + 3] += ["s_cselect_b32 %s, s27, %s" % (s(S_SOA), s(S_OOB)),
                                 "s_cselect_b32 %s, s28, %s" % (s(S_SOW), s(S_OOB))]
                gaps[bp + 4] += ["s_xor_b32 %s, %s, 0x8000" % (s(S_M0C), s(S_M0C)),
                                 "s_xor_b32 %s, %s, 0x8000" % (s(S_M0W), s(S_M0W))]
                gaps[bp + 5] += ["s_mov_b32 m0, %s" % s(S_M0C)]
            else:
              gaps[bp + 1] += ["s_sub_u32 %s, %s, 1" % (s(S_DREM), s(S_DREM)),
                             "s_cmp_eq_u32 %s, 0" % s(S_DREM)]
              gaps[bp + 2] += ["s_cbranch_scc1 L_k1_swd_%s" % tag, "L_k1_swdret_%s:" % tag,
                             "s_add_u32 %s, %s, 128" % (s(S_SOA), s(S_SOA))]
              gaps[bp + 3] += ["s_add_u32 %s, %s, %s" % (s(S_SOW), s(S_SOW), s(S_WSTEP)),
                             "s_xor_b32 %s, %s, 0x8000" % (s(S_M0C), s(S_M0C))]
              gaps[bp + 4] += ["s_xor_b32 %s, %s, 0x8000" % (s(S_M0W), s(S_M0W)),
                             "s_cmp_eq_u32 %s, 1" % s(S_CNT)]
              gaps[bp + 5] += ["s_cbranch_scc1 L_k1_swa_%s" % tag, "L_k1_swaret_%s:" % tag,
                             "s_mov_b32 m0, %s" % s(S_M0C)]
        else:
            gaps[0] += ["v_xor_b32 %s, 0x8000, %s" % (v(V_AC), v(V_AC))]
            for j in range(8):
                gaps[1 + 2 * j] += ["v_xor_b32 %s, 0x8000, %s" % (v(V_AW + j), v(V_AW + j))]
            rd = frag_reads(0, nxt)
            for n, x in enumerate(rd):
                gaps[2 + 2 * n].append(x)
            gaps[17] += ["v_xor_b32 %s, 0x8000, %s" % (v(V_AC + 1), v(V_AC + 1))]
            d = [dma_c(0), dma_c(1), dma_c(2), dma_c(3), "s_add_u32 m0, %s, 4096" % s(S_M0C), dma_c(4), dma_c(5), dma_c(6), dma_c(7),
                 "s_mov_b32 m0, %s" % s(S_M0W), dma_w(0), dma_w(1), dma_w(2)]
            pos = opts.get("k1p1", [0, 6, 12, 19, 21, 25, 31, 37, 43, 45, 49, 55, 61])
            for x, p in zip(d, pos):
                gaps[p].append(x)
            gaps[62] += ["s_sub_u32 %s, %s, 1" % (s(S_CNT), s(S_CNT))]
            gaps[63] += ["s_cmp_lg_u32 %s, 0" % s(S_CNT)]
        if opts.get("nodma"):
            gaps = [[x for x in g if " lds" not in x] for g in gaps]
        if opts.get("noreads"):
            gaps = [[x for x in g if not x.startswith("ds_read")] for g in gaps]
        out.append("s_waitcnt lgkmcnt(0)")
        out += weave(mfs, gaps)
    return out

def switch_blocks(A, tag):
    A.label("L_k1_swd_%s" % tag)
    A("s_cmp_eq_u32 %s, 0" % s(S_DTILE))
    A("s_cbranch_scc0 L_k1_swd0_%s" % tag)
    A("s_cmp_eq_u32 %s, 0" % s(S_HASN))
    A("s_cbranch_scc1 L_k1_swd0_%s" % tag)
    for m in range(8):
        A("v_mov_b32 %s, %s" % (v(V_VC + m), v(V_VC2 + m)))
        A("v_mov_b32 %s, %s" % (v(V_VW + m), v(V_VW2 + m)))
    for r in range(4):
        A("s_mov_b32 %s, %s" % (s(S_ACT + r), s(S_ACT2 + r)))
        A("s_mov_b32 %s, %s" % (s(S_W + r), s(S_W2 + r)))
    A("s_mov_b32 %s, %s" % (s(S_WSTEP), s(S_WSTEP2)))
    A("s_mov_b32 %s, -128" % s(S_SOA))
    A("s_sub_u32 %s, 0, %s" % (s(S_SOW), s(S_WSTEP)))
    A("s_mov_b32 %s, 7" % s(S_DREM))
    A("s_mov_b32 %s, 1" % s(S_DTILE))
    A("s_branch L_k1_swdret_%s" % tag)
    A.label("L_k1_swd0_%s" % tag)
    A("s_mov_b32 %s, %s" % (s(S_SOA), s(S_OOB)))
    A("s_mov_b32 %s, %s" % (s(S_SOW), s(S_OOB)))
    A("s_mov_b32 %s, 0" % s(S_WSTEP))
    A("s_mov_b32 %s, 1000" % s(S_DREM))
    A("s_branch L_k1_swdret_%s" % tag)
    A.label("L_k1_swa_%s" % tag)
    for j in range(8):
        A("v_xor_b32 %s, 0x8000, %s" % (v(V_AW + j), v(V_AW2 + j)))
    A("s_branch L_k1_swaret_%s" % tag)

def tile_setup(A, second=False):
    T = V_T
    V_AW = V_AW2 if second else globals()["V_AW"]
    V_VC = V_VC2 if second else globals()["V_VC"]
    V_VW = V_VW2 if second else globals()["V_VW"]
    A("v_and_b32 %s, 63, v0" % v(T))
    A("v_lshlrev_b32 %s, 4, %s" % (v(V_L16), v(T)))
    A("v_and_b32 %s, 15, %s" % (v(T + 1), v(T)))
    A("v_lshrrev_b32 %s, 4, %s" % (v(T + 2), v(T)))
    A("v_lshrrev_b32 %s, 1, %s" % (v(T + 3), v(T + 1)))
    A("v_xor_b32 %s, %s, %s" % (v(T + 3), v(T + 3), v(T + 2)))
    A("s_lshr_b32 %s, %s, 1" % (s(S_T0), s(S_WAVE)))
    A("s_lshl_b32 %s, %s, 14" % (s(S_T0), s(S_T0)))
    A("v_lshlrev_b32 %s, 7, %s" % (v(T + 4), v(T + 1)))
    A("v_add_u32 %s, %s, %s" % (v(T + 4), s(S_T0), v(T + 4)))
    for sub in range(2):
        A("v_xor_b32 %s, %d, %s" % (v(T + 5), 4 * sub, v(T + 3)))
        A("v_lshl_add_u32 %s, %s, 4, %s" % (v(V_AC + sub), v(T + 5), v(T + 4)))
    A("v_bfe_u32 %s, %s, 2, 2" % (v(T + 3), v(T)))
    A("v_and_b32 %s, 3, %s" % (v(T + 4), v(T)))
    A("v_lshlrev_b32 %s, 3, %s" % (v(T + 4), v(T + 4)))
    A("v_lshl_add_u32 %s, %s, 3, %s" % (v(T + 1), v(T + 2), v(T + 3)))
    A("v_lshlrev_b32 %s, 9, %s" % (v(T + 1), v(T + 1)))
    A("v_add_u32 %s, 0x10000, %s" % (v(T + 1), v(T + 1)))
    A("v_and_b32 %s, 1, %s" % (v(T + 2), v(T + 2)))
    A("v_lshl_add_u32 %s, %s, 2, %s" % (v(T + 3), v(T + 2), v(T + 3)))
    A("v_lshlrev_b32 %s, 5, %s" % (v(T + 3), v(T + 3)))
    A("s_and_b32 %s, %s, 1" % (s(S_T0), s(S_WAVE)))
    A("s_cmp_eq_u32 %s, 0" % s(S_BT))
    A("s_cselect_b32 %s, 64, 56" % s(S_T1))
    A("s_mul_i32 %s, %s, %s" % (s(S_T0), s(S_T0), s(S_T1)))
    A("s_lshl_b32 %s, %s, 2" % (s(S_T0), s(S_T0)))
    for j in range(8):
        A("v_add_u32 %s, %s, %s" % (v(T + 5), s(S_T0), v(T + 4)))
        if j & 1:
            A("v_add_u32 %s, 32, %s" % (v(T + 5), v(T + 5)))
        A("v_xor_b32 %s, %s, %s" % (v(T + 5), v(T + 5), v(T + 3)))
        A("v_add_u32 %s, %s, %s" % (v(V_AW + j), v(T + 5), v(T + 1)))
        if j & 1:
            A("s_add_u32 %s, %s, %s" % (s(S_T0), s(S_T0), s(S_T1)))
    A("v_lshrrev_b32 %s, 3, %s" % (v(T + 1), v(T)))
    A("s_lshl_b32 %s, %s, 6" % (s(S_T0), s(S_WAVE)))
    A("s_add_u32 %s, %s, %s" % (s(S_T0), s(S_T0), s(S_ROW0)))
    A("v_add_u32 %s, %s, %s" % (v(T + 1), s(S_T0), v(T + 1)))
    A("v_mul_lo_u32 %s, %s, %s" % (v(T + 1), v(T + 1), s(S_ASTR)))
    A("v_and_b32 %s, 7, %s" % (v(T + 2), v(T)))
    A("v_lshrrev_b32 %s, 4, %s" % (v(T + 3), v(T)))
    A("v_xor_b32 %s, %s, %s" % (v(T + 2), v(T + 2), v(T + 3)))
    A("v_xor_b32 %s, 4, %s" % (v(T + 3), v(T + 2)))
    A("v_lshlrev_b32 %s, 4, %s" % (v(T + 2), v(T + 2)))
    A("v_lshlrev_b32 %s, 4, %s" % (v(T + 3), v(T + 3)))
    A("s_lshl_b32 %s, %s, 3" % (s(S_T1), s(S_ASTR)))
    A("s_mov_b32 %s, 0" % s(S_T0))
    for m in range(8):
        A("v_add3_u32 %s, %s, %s, %s" % (v(V_VC + m), v(T + 1), v(T + 2 + (m & 1)), s(S_T0)))
        if m < 7:
            A("s_add_u32 %s, %s, %s" % (s(S_T0), s(S_T0), s(S_T1)))
            dl = (((m + 1) & 3) - (m & 3)) * 1024
            A(("s_sub_u32 %s, %s, %d" % (s(S_T0), s(S_T0), dl)) if dl > 0 else ("s_add_u32 %s, %s, %d" % (s(S_T0), s(S_T0), -dl)))
    A("v_lshrrev_b32 %s, 5, %s" % (v(T + 1), v(T)))
    A("v_and_b32 %s, 31, %s" % (v(T + 2), v(T)))
    A("v_lshlrev_b32 %s, 1, %s" % (v(T + 3), v(T + 1)))
    A("v_xor_b32 %s, %s, %s" % (v(T + 2), v(T + 2), v(T + 3)))
    A("s_lshl_b32 %s, %s, 4" % (s(S_T0), s(S_WAVE)))
    A("v_add_u32 %s, %s, %s" % (v(T + 1), s(S_T0), v(T + 1)))
    A("v_mul_lo_u32 %s, %s, %s" % (v(T + 1), v(T + 1), s(S_WSTR)))
    A("s_lshl_b32 %s, %s, 1" % (s(S_T1), s(S_WSTR)))
    A("s_mov_b32 %s, 0" % s(S_T0))
    for m in range(8):
        x = ((m & 1) << 2) ^ (((m >> 2) & 1) << 3)
        A("v_xor_b32 %s, %d, %s" % (v(T + 3), x, v(T + 2)))
        A("v_lshlrev_b32 %s, 4, %s" % (v(T + 3), v(T + 3)))
        A("v_add3_u32 %s, %s, %s, %s" % (v(V_VW + m), v(T + 1), v(T + 3), s(S_T0)))
        if m < 7:
            A("s_add_u32 %s, %s, %s" % (s(S_T0), s(S_T0), s(S_T1)))
            dl = (((m + 1) & 3) - (m & 3)) * 1024
            A(("s_sub_u32 %s, %s, %d" % (s(S_T0), s(S_T0), dl)) if dl > 0 else ("s_add_u32 %s, %s, %d" % (s(S_T0), s(S_T0), -dl)))
    A("s_lshl_b32 %s, %s, 6" % (s(S_WSTEP2 if second else S_WSTEP), s(S_WSTR)))
    A("s_lshl_b32 %s, %s, 13" % (s(S_T0), s(S_WAVE)))

S_PM = 86
def prologue_dma0(A):
    A("s_mov_b32 %s, 0" % s(S_SOA))
    A("s_mov_b32 %s, 0" % s(S_SOW))
    A("s_add_u32 %s, %s, 32768" % (s(S_M0C), s(S_T0)))
    A("s_add_u32 %s, %s, %d" % (s(S_M0W), s(S_T0), 65536 + 32768))
    A("s_add_u32 %s, %s, %d" % (s(S_PM), s(S_T0), 32768 + 4096))
    A("s_add_u32 %s, %s, %d" % (s(S_PM + 1), s(S_T0), 65536 + 32768 + 4096))
    for g in range(2):
        A("s_add_u32 m0, %s, %d" % (s(S_T0), g * 4096))
        A("s_nop 0")
        for m in range(4):
            A(dma_c(4 * g + m))
    for g in range(2):
        A("s_add_u32 m0, %s, %d" % (s(S_T0), 65536 + g * 4096))
        A("s_nop 0")
        for m in range(4):
            A(dma_w(4 * g + m))
    A("s_mov_b32 %s, 128" % s(S_SOA))
    A("s_mov_b32 %s, %s" % (s(S_SOW), s(S_WSTEP)))
    A("s_sub_u32 %s, %s, 1" % (s(S_DREM), s(S_T)))
    A("s_mov_b32 %s, 0" % s(S_DTILE))

def prologue_dma1_items():
    it = []
    for base, f in ((S_M0C, dma_c), (S_PM, dma_c), (S_M0W, dma_w), (S_PM + 1, dma_w)):
        g = 1 if base in (S_PM, S_PM + 1) else 0
        it.append(["s_mov_b32 m0, %s" % s(base), "s_nop 0", f(4 * g)])
        for m in range(1, 4):
            it.append([f(4 * g + m)])
    return it

def insert_items(lines, items):
    out = []
    n = len(items)
    step = max(1, len(lines) // (n + 1))
    k = 0
    for idx, x in enumerate(lines):
        out.append(x)
        if (idx + 1) % step == 0 and k < n:
            out += items[k]; k += 1
    while k < n:
        out += items[k]; k += 1
    return out

def epi_offsets(kind):
    if kind == 0 or kind == 4:
        return 8 * 8192, 4 * 1024, [(n >> 2) * 8192 + (n & 3) * 1024 for n in range(32)]
    if kind == 1:
        return 4 * 16384, 8 * 1024, [(n >> 3) * 16384 + (n & 7) * 1024 for n in range(32)]
    if kind == 2:
        return 8 * 1024, 4 * 131072, [(n >> 2) * 1024 + (n & 3) * 131072 for n in range(32)]
    return 4 * 2048, 4 * 131072, [(n >> 3) * 2048 + ((n & 7) >> 1) * 131072 + (n & 1) * 1024 for n in range(32)]

def epilogue(A, kind, opts={}):
    E = V_E
    wms, wns, offs = epi_offsets(kind)
    A("s_lshr_b32 %s, %s, 1" % (s(S_T0), s(S_WAVE)))
    A("s_mul_i32 %s, %s, %d" % (s(S_T0), s(S_T0), wms))
    A("s_and_b32 %s, %s, 1" % (s(S_T1), s(S_WAVE)))
    A("s_mul_i32 %s, %s, %d" % (s(S_T1), s(S_T1), wns))
    A("s_add_u32 %s, %s, %s" % (s(S_T0), s(S_T0), s(S_T1)))
    A("s_add_u32 %s, %s, %s" % (s(S_T0), s(S_T0), s(S_EOUT)))
    if kind == 2:
        A("v_cmp_gt_u32 vcc, 768, %s" % v(V_L16))
        A("s_nop 1")
        A("v_cndmask_b32 %s, 0, -1, vcc" % v(V_T + 1))
    if kind == 3:
        A("v_and_b32 %s, 0xf0, %s" % (v(V_T), v(V_L16)))
        A("v_cmp_gt_u32 vcc, 192, %s" % v(V_T))
        A("s_nop 1")
        A("v_cndmask_b32 %s, 0, -1, vcc" % v(V_T + 1))
        A("v_cmp_eq_u32 vcc, 192, %s" % v(V_T))
        A("v_mov_b32 %s, 0x3f803f80" % v(V_T + 3))
        A("s_nop 0")
        A("v_cndmask_b32 %s, 0, %s, vcc" % (v(V_T + 2), v(V_T + 3)))
    cur = None
    for n in range(32):
        R = E + (n & 3) * 8
        P = E + 32 + (n & 3) * 4
        for r in range(8):
            A("v_accvgpr_read_b32 %s, %s" % (v(R + r), a(8 * n + r)))
        if kind in (2, 4):
            for r in range(8):
                A("v_mul_f32 %s, %s, %s" % (v(R + r), s(S_ESCALE), v(R + r)))
        for r in range(4):
            A("v_cvt_pk_bf16_f32 %s, %s, %s" % (v(P + r), v(R + 2 * r), v(R + 2 * r + 1)))
        if kind == 2:
            A("v_and_b32 %s, %s, %s" % (v(P + 2), v(V_T + 1), v(P + 2)))
            A("v_and_b32 %s, %s, %s" % (v(P + 3), v(V_T + 1), v(P + 3)))
        if kind == 3 and (n & 1):
            for r in range(4):
                A("v_and_or_b32 %s, %s, %s, %s" % (v(P + r), v(P + r), v(V_T + 1), v(V_T + 2)))
        o = offs[n]
        if cur is None or not (0 <= o - cur < 4096):
            A("s_add_u32 %s, %s, %d" % (s(S_T1), s(S_T0), o))
            cur = o
        A("buffer_store_dwordx4 %s, %s, %s, %s offen offset:%d%s" % (v(P, 4), v(V_L16), s(S_WS, 4), s(S_T1), o - cur, opts.get("stflag", "")))

def wo_transform(A):
    A("s_sub_u32 %s, s2, 176" % s(S_T0))
    A("s_lshl_b32 %s, %s, 2" % (s(S_T0), s(S_T0)))
    A("s_add_u32 %s, %s, %s" % (s(S_T0), s(S_T0), s(S_WAVE)))
    A("s_cmp_ge_u32 %s, 144" % s(S_T0))
    A("s_cbranch_scc1 L_k1_wotdone")
    A("s_cmp_ge_u32 %s, 128" % s(S_T0))
    A("s_cbranch_scc1 L_k1_wotB")
    set_srd(A, S_W, P_WO, 4096 * 448 * 2)
    A("s_mul_i32 %s, %s, %d" % (s(S_SOW), s(S_T0), 32 * 896))
    A("s_lshl_b32 %s, %s, 10" % (s(S_OUT), s(S_T0)))
    A("s_add_u32 %s, %s, %d" % (s(S_OUT), s(S_OUT), WS_WOT))
    A("s_mov_b32 %s, %d" % (s(S_T2), 131072))
    A("s_branch L_k1_wotgo")
    A.label("L_k1_wotB")
    A("s_sub_u32 %s, %s, 128" % (s(S_T0), s(S_T0)))
    set_srd(A, S_W, P_BWO, 448 * 448 * 2)
    A("s_mul_i32 %s, %s, %d" % (s(S_SOW), s(S_T0), 28 * 896))
    A("s_lshl_b32 %s, %s, 10" % (s(S_OUT), s(S_T0)))
    A("s_add_u32 %s, %s, %d" % (s(S_OUT), s(S_OUT), WS_WOBT))
    A("s_mov_b32 %s, %d" % (s(S_T2), 16384))
    A.label("L_k1_wotgo")
    A("s_mul_i32 %s, %s, 28672" % (s(S_T1), s(S_WAVE)))
    for k in range(28):
        if k % 4 == 0:
            A("s_add_u32 m0, %s, %d" % (s(S_T1), k * 1024))
            A("s_add_u32 %s, %s, %d" % (s(S_ROW), s(S_SOW), k * 1024))
        A("buffer_load_dwordx4 %s, %s, %s offen offset:%d lds" % (v(V_L16), s(S_W, 4), s(S_ROW), (k % 4) * 1024))
    T = V_T
    A("v_lshrrev_b32 %s, 4, %s" % (v(T), v(V_L16)))
    A("v_lshrrev_b32 %s, 4, %s" % (v(T + 1), v(T)))
    A("v_bfe_u32 %s, %s, 2, 2" % (v(T + 2), v(T)))
    A("v_lshl_add_u32 %s, %s, 2, %s" % (v(T + 1), v(T + 1), v(T + 2)))
    A("v_mul_u32_u24 %s, 896, %s" % (v(T + 1), v(T + 1)))
    A("v_and_b32 %s, 3, %s" % (v(T + 2), v(T)))
    A("v_lshl_add_u32 %s, %s, 3, %s" % (v(T + 1), v(T + 2), v(T + 1)))
    A("v_add_u32 %s, %s, %s" % (v(T + 1), s(S_T1), v(T + 1)))
    A("s_waitcnt vmcnt(0)")
    R = 36
    for mt in range(28):
        for t in range(2):
            A("ds_read_b64_tr_b16 %s, %s offset:%d" % (v(R + 4 * mt + 2 * t, 2), v(T + 1), t * 16 * 896 + mt * 32))
        if mt % 7 == 6:
            A("s_waitcnt lgkmcnt(0)")
    for mt in range(28):
        A("buffer_store_dwordx4 %s, %s, %s, %s offen" % (v(R + 4 * mt, 4), v(V_L16), s(S_WS, 4), s(S_OUT)))
        A("s_add_u32 %s, %s, %s" % (s(S_OUT), s(S_OUT), s(S_T2)))
    A.label("L_k1_wotdone")

def gen_k1(name, opts):
    stamps = opts.get("stamps", False)
    STAMPV[0] = 255
    A = Asm()
    A(".globl %s" % name)
    A(".p2align 8")
    A(".type %s,@function" % name)
    A.label(name)
    A("s_cmp_ge_u32 s2, 256")
    A("s_cbranch_scc1 L_k1_end")
    load_ptrs(A)
    A("v_lshrrev_b32 v1, 6, v0")
    A("s_nop 0")
    A("v_readfirstlane_b32 %s, v1" % s(S_WAVE))
    A("s_mov_b32 %s, 0x7f000000" % s(S_OOB))
    A("s_waitcnt lgkmcnt(0)")
    if stamps:
        stamp_init(A); stamp(A)
    set_srd(A, S_WS, P_WS, WS_SIZE)
    A("s_and_b32 %s, s2, 7" % s(S_T0))
    A("s_lshr_b32 %s, s2, 3" % s(S_T1))
    A("s_lshl_b32 %s, %s, 2" % (s(S_T0), s(S_T0)))
    A("s_and_b32 %s, %s, 3" % (s(S_T2), s(S_T1)))
    A("s_add_u32 %s, %s, %s" % (s(S_T0), s(S_T0), s(S_T2)))
    A("s_lshr_b32 %s, %s, 2" % (s(S_T1), s(S_T1)))
    A("s_lshl_b32 %s, %s, 8" % (s(S_ROW0), s(S_T1)))
    A("s_lshr_b32 %s, %s, 4" % (s(S_TYPE), s(S_T0)))
    A("s_and_b32 %s, %s, 15" % (s(S_T0), s(S_T0)))
    A("s_lshl_b32 %s, %s, 20" % (s(S_OUT), s(S_T0)))
    A("s_lshl_b32 %s, %s, 17" % (s(S_T1), s(S_T1)))
    A("s_add_u32 %s, %s, %s" % (s(S_OUT), s(S_OUT), s(S_T1)))
    A("s_lshl_b32 %s, %s, 24" % (s(S_T1), s(S_TYPE)))
    A("s_add_u32 %s, %s, %s" % (s(S_OUT), s(S_OUT), s(S_T1)))
    A("s_lshl_b32 %s, %s, 9" % (s(S_T0), s(S_T0)))
    set_srd(A, S_ACT, P_CKV, 2048 * 1024 * 2)
    A("s_cmp_eq_u32 %s, 0" % s(S_TYPE))
    A("s_cselect_b32 %s, %s, %s" % (s(S_T1), s(P_WUK), s(P_WUV)))
    A("s_cselect_b32 %s, %s, %s" % (s(S_T2), s(P_WUK + 1), s(P_WUV + 1)))
    A("s_add_u32 %s, %s, %s" % (s(S_W), s(S_T1), s(S_T0)))
    A("s_addc_u32 %s, %s, 0" % (s(S_W + 1), s(S_T2)))
    A("s_sub_u32 %s, %d, %s" % (s(S_W + 2), 1024 * 4096 * 2, s(S_T0)))
    A("s_mov_b32 %s, 0x20000" % s(S_W + 3))
    A("s_mov_b32 %s, 2048" % s(S_ASTR))
    A("s_mov_b32 %s, 8192" % s(S_WSTR))
    A("s_mov_b32 %s, 0" % s(S_BT))
    A("s_mov_b32 %s, 16" % s(S_T))
    A("s_mov_b32 %s, %s" % (s(S_EPI), s(S_TYPE)))
    A("s_mov_b32 %s, 0" % s(S_TILE))
    A("s_mov_b32 %s, 1.0" % s(S_SCALE))
    A("s_cmp_ge_u32 s2, 128")
    A("s_cbranch_scc1 L_k1_noflag")
    A("s_lshl_b32 %s, s2, 7" % s(S_T0))
    A("s_add_u32 %s, %s, %d" % (s(S_T0), s(S_T0), WS_FLAG))
    A("v_mov_b32 v2, 0")
    A("v_lshlrev_b32 v3, 2, v0")
    A("v_cmp_gt_u32 vcc, 32, v0")
    A("s_and_saveexec_b64 s[70:71], vcc")
    A("s_cbranch_execz L_k1_noflag2")
    A("buffer_store_dword v2, v3, %s, %s offen" % (s(S_WS, 4), s(S_T0)))
    A.label("L_k1_noflag2")
    A("s_mov_b64 exec, s[70:71]")
    A.label("L_k1_noflag")
    tile_setup(A)
    prologue_dma0(A)
    if opts.get("k1prostamp"):
        stamp(A)
    for r in range(4):
        A("s_mov_b32 %s, %s" % (s(S_ACT2 + r), s(S_ACT + r)))
        A("s_mov_b32 %s, %s" % (s(S_W2 + r), s(S_W + r)))
    A("s_mov_b32 %s, 0" % s(S_HASN))
    A("s_mov_b32 %s, 0" % s(S_TYPE2))
    A("s_mov_b32 %s, 0" % s(S_BT))
    A("s_cmp_ge_u32 s2, 176")
    A("s_cbranch_scc1 L_k1_set2done")
    A("s_mov_b32 %s, 1" % s(S_HASN))
    A("s_cmp_ge_u32 s2, 128")
    A("s_cbranch_scc1 L_k1_setB")
    A("s_and_b32 %s, s2, 7" % s(S_T0))
    A("s_lshr_b32 %s, s2, 3" % s(S_T1))
    A("s_lshl_b32 %s, %s, 1" % (s(S_T0), s(S_T0)))
    A("s_and_b32 %s, %s, 1" % (s(S_T2), s(S_T1)))
    A("s_add_u32 %s, %s, %s" % (s(S_T0), s(S_T0), s(S_T2)))
    A("s_lshr_b32 %s, %s, 1" % (s(S_T1), s(S_T1)))
    A("s_lshl_b32 %s, %s, 8" % (s(S_ROW0), s(S_T1)))
    A("s_lshl_b32 %s, %s, 20" % (s(S_OUT2), s(S_T0)))
    A("s_lshl_b32 %s, %s, 17" % (s(S_T1), s(S_T1)))
    A("s_add_u32 %s, %s, %s" % (s(S_OUT2), s(S_OUT2), s(S_T1)))
    A("s_add_u32 %s, %s, %d" % (s(S_OUT2), s(S_OUT2), WS_Q))
    A("s_lshl_b32 %s, %s, 9" % (s(S_T0), s(S_T0)))
    set_srd(A, S_ACT2, P_AX, 2048 * 448 * 2)
    set_srd(A, S_W2, P_WQ, 448 * 4096 * 2, S_T0)
    A("s_mov_b32 %s, 8192" % s(S_WSTR))
    A("s_mov_b32 %s, 4" % s(S_EPI2))
    A("s_mov_b32 %s, 0x%08x" % (s(S_SCALE2), f32bits(1.4426950408889634 / 16.0)))
    A("s_branch L_k1_setdone")
    A.label("L_k1_setB")
    A("s_sub_u32 %s, s2, 128" % s(S_T0))
    A("s_and_b32 %s, %s, 7" % (s(S_T1), s(S_T0)))
    A("s_lshr_b32 %s, %s, 3" % (s(S_T0), s(S_T0)))
    A("s_lshl_b32 %s, %s, 8" % (s(S_ROW0), s(S_T1)))
    A("s_lshr_b32 %s, %s, 2" % (s(S_TYPE2), s(S_T0)))
    A("s_lshr_b32 %s, %s, 1" % (s(S_T2), s(S_T0)))
    A("s_lshl_b32 %s, %s, 21" % (s(S_OUT2), s(S_T2)))
    A("s_and_b32 %s, %s, 1" % (s(S_T2), s(S_T0)))
    A("s_lshl_b32 %s, %s, 20" % (s(S_T2), s(S_T2)))
    A("s_add_u32 %s, %s, %s" % (s(S_OUT2), s(S_OUT2), s(S_T2)))
    A("s_lshl_b32 %s, %s, 14" % (s(S_T1), s(S_T1)))
    A("s_add_u32 %s, %s, %s" % (s(S_OUT2), s(S_OUT2), s(S_T1)))
    A("s_add_u32 %s, %s, %d" % (s(S_OUT2), s(S_OUT2), WS_BQ))
    A("s_cmp_lt_u32 %s, 2" % s(S_T0))
    A("s_cselect_b32 %s, 0x%08x, 1.0" % (s(S_SCALE2), f32bits(1.4426950408889634 / 28.0 ** 0.5)))
    A("s_mul_i32 %s, %s, 448" % (s(S_T0), s(S_T0)))
    set_srd(A, S_ACT2, P_BX, 2048 * 448 * 2)
    set_srd(A, S_W2, P_BWQKV, 448 * 1344 * 2, S_T0)
    A("s_mov_b32 %s, 2688" % s(S_WSTR))
    A("s_mov_b32 %s, 1" % s(S_BT))
    A("s_add_u32 %s, %s, 2" % (s(S_EPI2), s(S_TYPE2)))
    A.label("L_k1_setdone")
    A("s_mov_b32 %s, 896" % s(S_ASTR))
    A.label("L_k1_set2done")
    X = Asm()
    tile_setup(X, True)
    X("s_lshr_b32 %s, s2, 3" % s(S_T0))
    X("v_and_b32 %s, 63, v0" % v(V_T))
    X("s_lshl_b32 %s, %s, 6" % (s(S_T1), s(S_T0)))
    X("v_add_u32 %s, %s, %s" % (v(V_TCH), s(S_T1), v(V_T)))
    X("v_lshlrev_b32 %s, 11, %s" % (v(V_TCH), v(V_TCH)))
    X("s_lshr_b32 %s, %s, 2" % (s(S_T1), s(S_T0)))
    X("s_lshl_b32 %s, %s, 3" % (s(S_T1), s(S_T1)))
    X("v_bfe_u32 %s, %s, 2, 3" % (v(V_T + 1), v(V_T)))
    X("v_add_u32 %s, %s, %s" % (v(V_T + 1), s(S_T1), v(V_T + 1)))
    X("v_lshlrev_b32 %s, 13, %s" % (v(V_T + 1), v(V_T + 1)))
    X("v_and_b32 %s, 3, %s" % (v(V_T + 2), v(V_T)))
    X("v_lshl_add_u32 %s, %s, 7, %s" % (v(V_T + 1), v(V_T + 2), v(V_T + 1)))
    X("s_cmp_eq_u32 %s, 1" % s(S_WAVE))
    X("s_cselect_b64 vcc, -1, 0")
    X("s_nop 1")
    X("v_cndmask_b32 %s, %s, %s, vcc" % (v(V_TCH), v(V_TCH), v(V_T + 1)))
    global_touch_setup(X, opts)
    A(insert_items(X.L, prologue_dma1_items()))
    A("s_cmp_ge_u32 %s, 2" % s(S_WAVE))
    A("s_cbranch_scc1 L_k1_tchg")
    for td in (1, 2):
        A("s_cmp_eq_u32 %s, 0" % s(S_WAVE))
        A("s_cbranch_scc0 L_k1_tch1_%d" % td)
        A(touch_prep(0, opts, td)); A(touch_issue(0))
        A("s_branch L_k1_tch2_%d" % td)
        A.label("L_k1_tch1_%d" % td)
        A(touch_prep(1, opts, td)); A(touch_issue(1))
        A.label("L_k1_tch2_%d" % td)
    A("s_branch L_k1_tchd")
    A.label("L_k1_tchg")
    for r in range(2):
        A("buffer_load_dword %s, %s, %s, %s offen" % (v(V_TD), v(V_L16), s(S_ACT, 4), "0"))
    A.label("L_k1_tchd")
    if opts.get("k1prostamp"):
        stamp(A)
    A("s_waitcnt vmcnt(18)")
    if opts.get("k1prostamp"):
        stamp(A)
    A("s_barrier")
    if stamps:
        stamp(A)
    A(frag_reads(0, 0))
    A.label("L_k1_tile_go")
    A("s_mov_b32 %s, %s" % (s(S_CNT), s(S_T)))
    ncopy = 4 if opts.get("k1copies", 4) == 4 else 1
    for ktype in (1, 0):
        for wv in range(ncopy):
            if ktype == 1 and wv == 0:
                continue
            A("s_cmp_eq_u32 %s, %d" % (s(S_TYPE), 0 if ktype == 1 else 1))
            A("s_cbranch_scc0 L_k1_nx_%d_%d" % (ktype, wv))
            if ncopy == 4:
                A("s_cmp_eq_u32 %s, %d" % (s(S_WAVE), wv))
                A("s_cbranch_scc1 L_k1_go_%d_%d" % (ktype, wv))
            else:
                A("s_branch L_k1_go_%d_%d" % (ktype, wv))
            A.label("L_k1_nx_%d_%d" % (ktype, wv))
    for ktype in (1, 0):
        for wv in range(ncopy):
            A.label("L_k1_go_%d_%d" % (ktype, wv))
            b0 = body(True, ktype, opts, wv)
            b1 = body(False, ktype, opts, wv)
            A(b0)
            A(".p2align 6")
            A.label("L_k1_loop_%d_%d" % (ktype, wv))
            if opts.get("k1iterstamp"):
                stamp(A)
                A("s_mov_b32 m0, %s" % s(S_M0W))
            A(b1)
            A("s_cbranch_scc1 L_k1_loop_%d_%d" % (ktype, wv))
            if wv == 0:
                check(frag_reads(0, 0) + b0 + b1 + b1, "k1 body %d" % ktype)
            A("s_branch L_k1_done")
    A.label("L_k1_done")
    if stamps:
        stamp(A)
    A("s_mov_b32 %s, %s" % (s(S_EOUT), s(S_OUT)))
    A("s_mov_b32 %s, %s" % (s(S_EEPI), s(S_EPI)))
    A("s_mov_b32 %s, %s" % (s(S_ESCALE), s(S_SCALE)))
    A("s_cmp_eq_u32 %s, 0" % s(S_TILE))
    A("s_cselect_b32 %s, %s, 0" % (s(S_HASN), s(S_HASN)))
    A("s_cmp_eq_u32 %s, 0" % s(S_HASN))
    A("s_cbranch_scc1 L_k1_epi")
    A("s_mov_b32 m0, %s" % s(S_M0W))
    A("s_nop 0")
    A(dma_w(3))
    A("s_add_u32 m0, %s, 4096" % s(S_M0W))
    A("s_nop 0")
    for m in range(4, 8):
        A(dma_w(m))
    A.label("L_k1_epi")
    for kind in (1, 2, 3, 4):
        A("s_cmp_eq_u32 %s, %d" % (s(S_EEPI), kind))
        A("s_cbranch_scc1 L_k1_epi%d" % kind)
    for kind in range(5):
        if kind:
            A.label("L_k1_epi%d" % kind)
        E = Asm()
        epilogue(E, kind, opts)
        check(E.L, "k1 epi %d" % kind)
        A(E.L)
        if kind < 4:
            A("s_branch L_k1_epidone")
    A.label("L_k1_epidone")
    if stamps:
        stamp(A)
    A("s_cmp_eq_u32 %s, 0" % s(S_HASN))
    A("s_cbranch_scc1 L_k1_fin")
    A("s_mov_b32 %s, 1" % s(S_TILE))
    A("s_mov_b32 %s, 7" % s(S_T))
    A("s_mov_b32 %s, %s" % (s(S_TYPE), s(S_TYPE2)))
    A("s_mov_b32 %s, %s" % (s(S_OUT), s(S_OUT2)))
    A("s_mov_b32 %s, %s" % (s(S_EPI), s(S_EPI2)))
    A("s_mov_b32 %s, %s" % (s(S_SCALE), s(S_SCALE2)))
    A("s_branch L_k1_tile_go")
    A.label("L_k1_fin")
    A("s_cmp_lt_u32 s2, 176")
    A("s_cbranch_scc1 L_k1_fin2")
    A("s_waitcnt vmcnt(0) lgkmcnt(0)")
    A("s_barrier")
    X = Asm(); wo_transform(X); check(X.L, "k1 wot"); A(X.L)
    A.label("L_k1_fin2")
    if stamps:
        A("s_waitcnt vmcnt(0)")
        stamp(A)
        stamp_flush(A, S_WS, S_WAVE, 0, "L_k1_stf")
    A.label("L_k1_end")
    A("s_endpgm")
    for ktype in (1, 0):
        for wv in range(ncopy):
            for first in (1, 0):
                switch_blocks(A, "%d_%d_%d" % (ktype, wv, first))
    return A
```

```python
from common import *
import k1 as K1
import k2 as K2

LDS_BYTES = 163840
S_WS = 12; S_WAVE = 16
DW_KV = 0; DW_B1 = 16; DW_QP = 32

S_SRDX = 72; S_SRDW = 76; S_SRDB = 80; S_SRDY = 96
S_T0 = 61; S_T1 = 62; S_T2 = 63; S_T3 = 64
S_BH = 24; S_RB = 25; S_AH = 26; S_AROLE = 31; S_APAIR = 65; S_QBLK = 66; S_WB = 67; S_SO = 69
S_KVO = 71; S_XW = 84; S_SO2 = 88; S_PAR = 89; S_WOO = 90; S_WOS = 100; S_HEADKV = 101
V_L16 = 1
V_T = 28
V_XA = 176
V_WA = 4
V_XOA = 164
V_XOB = 168
V_WB = 172
V_WA2 = 48
V_XF = 56
V_WR = 96
V_ACCB = 180
V_PK = 100
V_WOA = 178
V_BQ = 244
PB_BASE = 32768
XA_BASE = 131072

class Seq:
    def __init__(self):
        self.L = []
    def __call__(self, *x):
        for e in x:
            if isinstance(e, (list, tuple)):
                self(*e)
            else:
                self.L.append((e, None))
    def vm(self, tag, ins):
        self.L.append((ins, tag))
    def wait(self, tags, extra=""):
        self.L.append(("WAIT", (tags, extra)))
    def lines(self):
        out = []; vm = []
        for ins, tag in self.L:
            if ins == "WAIT":
                tags, extra = tag
                last = -1
                for k, tg in enumerate(vm):
                    if tg in tags:
                        last = k
                n = len(vm) - 1 - last
                assert last >= 0, tags
                out.append("s_waitcnt vmcnt(%d)%s" % (min(n, 63), extra))
            else:
                out.append(ins)
                if ins.startswith("buffer_"):
                    vm.append(tag)
        return out

def lane_regs(A):
    T = V_T
    A("v_and_b32 %s, 63, v0" % v(T))
    A("v_and_b32 %s, 15, %s" % (v(T + 1), v(T)))
    A("v_lshrrev_b32 %s, 4, %s" % (v(T + 2), v(T)))
    A("v_bfe_u32 %s, %s, 2, 2" % (v(T + 3), v(T)))
    A("v_and_b32 %s, 3, %s" % (v(T + 4), v(T)))

def x_dma_offsets(A, dst, row0_sgpr):
    T = V_T
    A("s_lshl_b32 %s, %s, 5" % (s(S_T0), s(S_WAVE)))
    A("s_add_u32 %s, %s, %s" % (s(S_T0), s(S_T0), s(row0_sgpr)))
    A("v_lshrrev_b32 %s, 3, %s" % (v(T + 5), v(T)))
    A("v_add_u32 %s, %s, %s" % (v(T + 5), s(S_T0), v(T + 5)))
    A("v_mul_u32_u24 %s, 896, %s" % (v(T + 5), v(T + 5)))
    A("v_and_b32 %s, 7, %s" % (v(T + 6), v(T)))
    A("v_xor_b32 %s, %s, %s" % (v(T + 6), v(T + 6), v(T + 2)))
    for m in range(4):
        A("v_xor_b32 %s, %d, %s" % (v(T + 7), 4 * (m & 1), v(T + 6)))
        A("v_lshl_add_u32 %s, %s, 4, %s" % (v(T + 7), v(T + 7), v(T + 5)))
        A("v_add_u32 %s, %d, %s" % (v(dst + m), m * (8 * 896 - 1024), v(T + 7)))

def setup_bc(A):
    T = V_T
    A("s_and_b32 %s, s2, 15" % s(S_BH))
    A("s_lshr_b32 %s, s2, 4" % s(S_RB))
    pc_ids(A)
    set_srd(A, S_SRDY, P_BX, 2048 * 448 * 2)
    set_srd(A, S_SRDX, P_AX, 2048 * 448 * 2)
    A("s_lshl_b32 %s, %s, 9" % (s(S_T0), s(S_AH)))
    set_srd(A, S_SRDW, P_WQ, 448 * 4096 * 2, S_T0)
    A("s_lshl_b32 %s, %s, 13" % (s(S_WB), s(S_WAVE)))
    A("s_lshl_b32 %s, %s, 12" % (s(S_XW), s(S_WAVE)))
    lane_regs(A)
    A("s_lshl_b32 %s, %s, 7" % (s(S_T1), s(S_RB)))
    x_dma_offsets(A, V_XOB, S_T1)
    A("s_lshl_b32 %s, %s, 7" % (s(S_T1), s(S_QBLK)))
    x_dma_offsets(A, V_XOA, S_T1)
    A("v_lshrrev_b32 %s, 1, %s" % (v(T + 5), v(T + 1)))
    A("v_xor_b32 %s, %s, %s" % (v(T + 5), v(T + 5), v(T + 2)))
    A("v_lshlrev_b32 %s, 7, %s" % (v(T + 6), v(T + 1)))
    A("v_add_u32 %s, %s, %s" % (v(T + 6), s(S_XW), v(T + 6)))
    for s_ in range(2):
        A("v_xor_b32 %s, %d, %s" % (v(T + 7), 4 * s_, v(T + 5)))
        A("v_lshl_add_u32 %s, %s, 4, %s" % (v(V_XA + s_), v(T + 7), v(T + 6)))
    A("s_mul_i32 %s, %s, 56" % (s(S_T1), s(S_BH)))
    A("s_and_b32 %s, %s, 8" % (s(S_PAR), s(S_T1)))
    A("s_and_b32 %s, %s, -16" % (s(S_T1), s(S_T1)))
    A("s_lshl_b32 %s, %s, 4" % (s(S_T2), s(S_WAVE)))
    for m in range(4):
        A("v_lshlrev_b32 %s, 1, %s" % (v(T + 5), v(T + 2)))
        if (m >> 1) & 1:
            A("v_xor_b32 %s, 8, %s" % (v(T + 5), v(T + 5)))
        A("v_xor_b32 %s, %s, %s" % (v(T + 5), v(T + 5), v(T + 1)))
        A("v_mul_u32_u24 %s, 52, %s" % (v(T + 6), v(T + 5)))
        A("v_lshrrev_b32 %s, 8, %s" % (v(T + 6), v(T + 6)))
        A("v_mul_u32_u24 %s, 5, %s" % (v(T + 7), v(T + 6)))
        A("v_sub_u32 %s, %s, %s" % (v(T + 7), v(T + 5), v(T + 7)))
        A("v_cmp_eq_u32 vcc, 15, %s" % v(T + 5))
        A("v_mul_u32_u24 %s, 896, %s" % (v(T + 6), v(T + 6)))
        A("v_lshl_add_u32 %s, %s, 4, %s" % (v(T + 6), v(T + 7), v(T + 6)))
        A("v_add_u32 %s, %s, %s" % (v(T + 7), s(S_T2), v(T + 2)))
        A("v_add_u32 %s, %d, %s" % (v(T + 7), 4 * m, v(T + 7)))
        A("v_mul_u32_u24 %s, 2688, %s" % (v(T + 7), v(T + 7)))
        A("v_add3_u32 %s, %s, %s, %s" % (v(T + 6), v(T + 6), v(T + 7), s(S_T1)))
        if m:
            A("v_subrev_u32 %s, %d, %s" % (v(T + 6), m * 1024, v(T + 6)))
        A("v_mov_b32 %s, 0x7f000000" % v(T + 7))
        A("v_cndmask_b32 %s, %s, %s, vcc" % (v(V_WB + m), v(T + 6), v(T + 7)))

def g_xa(Q, u):
    Q("s_add_u32 m0, %s, %d" % (s(S_XW), XA_BASE + (u % 2) * 16384), "s_mov_b32 %s, %d" % (s(S_SO2), u * 128))
    for m in range(4):
        Q.vm(("xa", u), "buffer_load_dwordx4 %s, %s, %s offen offset:%d lds" % (v(V_XOA + m), s(S_SRDX, 4), s(S_SO2), m * 1024))
def g_wq(Q, u):
    for g in range(2):
        Q("s_add_u32 m0, %s, %d" % (s(S_WB), (u % 4) * 32768 + g * 4096), "s_mov_b32 %s, %d" % (s(S_SO), u * 64 * 8192))
        for m in range(4):
            mm = 4 * g + m
            Q.vm(("wq", u), "buffer_load_dwordx4 %s, %s, %s offen offset:%d lds" % (v(K1.V_VW + mm), s(S_SRDW, 4), s(S_SO), m * 1024))
def pb_region(u):
    return (1 + (u + 2) % 3) * 32768
def g_pb(Q, u):
    st = pb_region(u)
    Q("s_add_u32 m0, %s, %d" % (s(S_XW), st), "s_mov_b32 %s, %d" % (s(S_SO2), u * 128))
    for m in range(4):
        Q.vm(("pb", u), "buffer_load_dwordx4 %s, %s, %s offen offset:%d lds" % (v(V_XOB + m), s(S_SRDY, 4), s(S_SO2), m * 1024))
    Q("s_add_u32 m0, %s, %d" % (s(S_XW), st + 16384), "s_mov_b32 %s, %d" % (s(S_SO2), u * 64 * 2688))
    for m in range(4):
        Q.vm(("pb", u), "buffer_load_dwordx4 %s, %s, %s offen offset:%d lds" % (v(V_WB + m), s(S_SRDB, 4), s(S_SO2), m * 1024))

def kv_drain(Q):
    for n in range(32):
        R = V_PK + (n & 1) * 12
        for r in range(8):
            Q("v_accvgpr_read_b32 %s, %s" % (v(R + r), a(8 * n + r)))
        for r in range(4):
            Q("v_cvt_pk_bf16_f32 %s, %s, %s" % (v(R + 8 + r), v(R + 2 * r), v(R + 2 * r + 1)))
        for r in range(4):
            Q("v_accvgpr_write_b32 %s, %s" % (a(4 * n + r), v(R + 8 + r)))

def kv_store(Q, n, flag):
    ok = (n >> 2) * 8192 + (n & 3) * 1024
    ov = (n >> 3) * 16384 + (n & 7) * 1024
    if ok == ov:
        Q("s_add_u32 %s, %s, %d" % (s(S_T3), s(S_KVO), ok))
    else:
        Q("s_mul_i32 %s, s60, %d" % (s(S_T3), ov - ok), "s_add_u32 %s, %s, %d" % (s(S_T3), s(S_T3), ok) if ok else "s_nop 0",
          "s_add_u32 %s, %s, %s" % (s(S_T3), s(S_T3), s(S_KVO)))
    Q.vm(("kv", 0), "buffer_store_dwordx4 %s, %s, %s, %s offen%s" % (a(4 * n, 4), v(V_L16), s(S_WS, 4), s(S_T3), flag))

def kv_base(A):
    A("s_lshr_b32 %s, %s, 1" % (s(S_T0), s(S_WAVE)))
    A("s_lshl_b32 %s, %s, 16" % (s(S_T0), s(S_T0)))
    A("s_and_b32 %s, %s, 1" % (s(S_T1), s(S_WAVE)))
    A("s_cmp_eq_u32 s60, 0")
    A("s_cselect_b32 %s, 12, 13" % s(S_T2))
    A("s_lshl_b32 %s, %s, %s" % (s(S_T1), s(S_T1), s(S_T2)))
    A("s_add_u32 %s, %s, %s" % (s(S_KVO), s(S_T0), s(S_T1)))
    A("s_add_u32 %s, %s, %s" % (s(S_KVO), s(S_KVO), s(K1.S_EOUT)))

def accb(e, qt):
    return V_ACCB + (e * 2 + qt) * 4

def pb_addr(A):
    T = V_T
    lane_regs(A)
    A("v_lshl_add_u32 %s, %s, 3, %s" % (v(T + 5), v(T + 2), v(T + 3)))
    A("v_lshlrev_b32 %s, 8, %s" % (v(T + 5), v(T + 5)))
    A("v_and_b32 %s, 1, %s" % (v(T + 6), v(T + 2)))
    A("v_lshl_add_u32 %s, %s, 2, %s" % (v(T + 6), v(T + 6), v(T + 3)))
    A("v_lshlrev_b32 %s, 5, %s" % (v(T + 6), v(T + 6)))
    A("v_lshlrev_b32 %s, 3, %s" % (v(T + 4), v(T + 4)))
    A("v_add_u32 %s, %s, %s" % (v(T + 4), s(S_PAR), v(T + 4)))
    for e in range(6):
        A("v_add_u32 %s, %d, %s" % (v(T + 7), (e >> 1) * 80 + (e & 1) * 32, v(T + 4)))
        A("v_xor_b32 %s, %s, %s" % (v(T + 7), v(T + 7), v(T + 6)))
        A("v_add_u32 %s, %s, %s" % (v(V_WA + e), v(T + 7), v(T + 5)))

def pb_compute(Q, stores, flag):
    for u in range(7):
        st = pb_region(u)
        Q.wait([("pb", u)])
        Q("s_barrier")
        if u >= 1 and u + 2 <= 6:
            g_pb(Q, u + 2)
        if u >= 5:
            g_wq(Q, u - 4)
        L = []
        hi = st >= 65536
        xo = st; wo = st + 16384
        def lds(reg, off):
            return reg, off
        if u == 0:
            cur = 0
        rds = []
        for s_ in range(2):
            for qt in range(2):
                rds.append(("x", s_, qt))
            for e in range(6):
                rds.append(("w", s_, e))
        delta = st - pb_compute.base
        if delta:
            for r in list(range(V_XA, V_XA + 2)) + list(range(V_WA, V_WA + 6)):
                L.append("v_add_u32 %s, %d, %s" % (v(r), delta & 0xffffffff, v(r)))
            pb_compute.base = st
        for s_ in range(2):
            for qt in range(2):
                L.append("ds_read_b128 %s, %s offset:%d" % (v(V_XF + (s_ * 2 + qt) * 4, 4), v(V_XA + s_), qt * 2048))
            for e in range(6):
                b = V_WR + (s_ * 6 + e) * 4
                for t in range(2):
                    L.append("ds_read_b64_tr_b16 %s, %s offset:%d" % (v(b + 2 * t, 2), v(V_WA + e), 16384 + s_ * 8192 + t * 1024))
        for s_ in range(2):
            for e in range(6):
                wf = v(V_WR + (s_ * 6 + e) * 4, 4)
                for qt in range(2):
                    acc = v(accb(e, qt), 4)
                    xf = v(V_XF + (s_ * 2 + qt) * 4, 4)
                    C = "0" if (u == 0 and s_ == 0) else acc
                    L.append(mf16(acc, wf, xf, C) if e < 4 else mf16(acc, xf, wf, C))
        L, _ = auto_lgkm(L)
        Q(L)
        for _ in range(2):
            if stores and u < 6:
                kv_store(Q, stores.pop(0), flag)

def pb_out(Q):
    T = V_T
    P = V_PK
    Q("s_nop 7")
    Q("v_cmp_gt_u32 vcc, 768, %s" % v(V_L16))
    Q("s_mov_b32 %s, 0x%08x" % (s(S_T0), f32bits(1.4426950408889634 / 28.0 ** 0.5)))
    Q("v_mov_b32 %s, %s" % (v(T), s(S_T0)))
    Q("v_cndmask_b32 %s, 0, %s, vcc" % (v(T + 1), v(T)))
    for qt in range(2):
        for dt in range(2):
            for r in range(4):
                Q("v_mul_f32 %s, %s, %s" % (v(P + dt * 4 + r), v(accb(dt, qt) + r), v(T + dt)))
        for h in range(4):
            Q("v_cvt_pk_bf16_f32 %s, %s, %s" % (v(V_BQ + qt * 4 + h), v(P + 2 * h), v(P + 2 * h + 1)))
    Q("s_lshl_b32 %s, %s, 17" % (s(S_T0), s(S_BH)))
    Q("s_lshl_b32 %s, %s, 2" % (s(S_T1), s(S_RB)))
    Q("s_add_u32 %s, %s, %s" % (s(S_T1), s(S_T1), s(S_WAVE)))
    Q("s_lshl_b32 %s, %s, 11" % (s(S_T1), s(S_T1)))
    Q("s_add_u32 %s, %s, %s" % (s(S_T0), s(S_T0), s(S_T1)))
    Q("s_add_u32 %s, %s, %d" % (s(S_T1), s(S_T0), WS_BK))
    Q("s_add_u32 %s, %s, %d" % (s(S_T2), s(S_T0), WS_BV))
    R = P + 8
    for qt in range(2):
        for h in range(4):
            src = accb(2 + (h >> 1), qt) + 2 * (h & 1)
            Q("v_cvt_pk_bf16_f32 %s, %s, %s" % (v(R + qt * 4 + h), v(src), v(src + 1)))
        Q.vm(("bst", 0), "buffer_store_dwordx4 %s, %s, %s, %s offen offset:%d sc1" % (v(R + qt * 4, 4), v(V_L16), s(S_WS, 4), s(S_T1), qt * 1024))
    for dt in range(2):
        for h in range(4):
            src = accb(4 + dt, h >> 1) + 2 * (h & 1)
            Q("v_cvt_pk_bf16_f32 %s, %s, %s" % (v(R + 8 + dt * 4 + h), v(src), v(src + 1)))
        Q.vm(("bst", 0), "buffer_store_dwordx4 %s, %s, %s, %s offen offset:%d sc1" % (v(R + 8 + dt * 4, 4), v(V_L16), s(S_WS, 4), s(S_T2), dt * 1024))

def pc_ids(A):
    A("s_and_b32 %s, s2, 7" % s(S_T0))
    A("s_lshr_b32 %s, s2, 3" % s(S_T1))
    A("s_lshl_b32 %s, %s, 1" % (s(S_AH), s(S_T0)))
    A("s_and_b32 %s, %s, 1" % (s(S_T2), s(S_T1)))
    A("s_add_u32 %s, %s, %s" % (s(S_AH), s(S_AH), s(S_T2)))
    A("s_lshr_b32 %s, %s, 1" % (s(S_T1), s(S_T1)))
    A("s_and_b32 %s, %s, 1" % (s(S_AROLE), s(S_T1)))
    A("s_lshr_b32 %s, %s, 1" % (s(S_APAIR), s(S_T1)))
    A("s_sub_u32 %s, 15, %s" % (s(S_T0), s(S_APAIR)))
    A("s_cmp_eq_u32 %s, 0" % s(S_AROLE))
    A("s_cselect_b32 %s, %s, %s" % (s(S_QBLK), s(S_T0), s(S_APAIR)))

def pc_addr(A):
    T = V_T
    lane_regs(A)
    A("v_lshl_add_u32 %s, %s, 3, %s" % (v(T + 5), v(T + 2), v(T + 3)))
    A("v_lshlrev_b32 %s, 9, %s" % (v(T + 5), v(T + 5)))
    A("v_lshl_add_u32 %s, %s, 3, %s" % (v(T + 5), v(T + 4), v(T + 5)))
    A("v_and_b32 %s, 1, %s" % (v(T + 6), v(T + 2)))
    A("v_lshl_add_u32 %s, %s, 2, %s" % (v(T + 6), v(T + 6), v(T + 3)))
    for j in range(8):
        A("v_xor_b32 %s, %d, %s" % (v(T + 7), j, v(T + 6)))
        A("v_lshl_add_u32 %s, %s, 5, %s" % (v(V_WA + j), v(T + 7), v(T + 5)))
        A("v_add_u32 %s, 0x10000, %s" % (v(V_WA2 + j), v(V_WA + j)))
    for s_ in range(2):
        A("v_add_u32 %s, %d, %s" % (v(V_XA + s_), (XA_BASE - pb_compute.base) & 0xffffffff, v(V_XA + s_)))

def accq(dt, qt):
    return 128 + ((dt >> 1) * 2 + qt) * 8 + (dt & 1) * 4

def pc_compute(Q, stores, flag, sig_b1):
    RING = 16; D = 10
    NF = 7 * 32
    def rd(n):
        u, r_ = divmod(n, 32); s_, dt = divmod(r_, 16)
        b = V_WR + (n % RING) * 4
        areg = (V_WA2 if (u % 4) >= 2 else V_WA) + (dt & 7)
        off = (u % 2) * 32768 + s_ * 16384 + (dt >> 3) * 256
        return ["ds_read_b64_tr_b16 %s, %s offset:%d" % (v(b + 2 * t, 2), v(areg), off + t * 2048) for t in range(2)]
    def xrd(u):
        return ["ds_read_b128 %s, %s offset:%d" % (v(V_XF + ((u & 1) * 4 + s_ * 2 + qt) * 4, 4), v(V_XA + s_), (u % 2) * 16384 + qt * 2048)
                for s_ in range(2) for qt in range(2)]
    S = Seq()
    S.L = Q.L
    mark = []
    start = len(Q.L)
    Q.wait([("wq", 0), ("xa", 0)])
    Q("s_barrier")
    Q(xrd(0))
    for n in range(D):
        Q(rd(n))
    pend = []
    for n in range(NF):
        u, r_ = divmod(n, 32); s_, dt = divmod(r_, 16)
        wf = v(V_WR + (n % RING) * 4, 4)
        m = []
        for qt in range(2):
            acc = a(accq(dt, qt), 4)
            xf = v(V_XF + ((u & 1) * 4 + s_ * 2 + qt) * 4, 4)
            m.append(mf16(acc, wf, xf, "0" if (u == 0 and s_ == 0) else acc))
        nx = rd(n + D) if n + D < NF else []
        if (n + D) % 32 == 0 and n + D < NF:
            un = (n + D) // 32
            Q.wait([("wq", un), ("xa", un)])
            Q("s_barrier")
            if un == 2:
                sig_b1(Q)
            Q(xrd(un))
            P = Seq()
            if 4 <= un + 2 <= 6:
                g_wq(P, un + 2)
            pend += P.L
        if r_ == 2 and u + 2 <= 6 and u >= 0:
            P = Seq(); g_xa(P, u + 2); pend += P.L
            if stores:
                for _ in range(4 if u < 5 else 0):
                    if stores:
                        P = Seq(); kv_store(P, stores.pop(0), flag); pend += P.L
        Q(m[0]); Q(nx[0:1])
        if pend and (n % 2 == 0):
            take = 1
            while take < len(pend) and pend[take - 1][1] is None:
                take += 1
            Q.L += pend[:take]; pend = pend[take:]
        Q(m[1]); Q(nx[1:2])
    assert not pend, pend

def seq_finalize(Q):
    lines = [x[1:] if x.startswith("Xbuffer_") else x for x in Q.lines()]
    lines, _ = auto_lgkm(lines)
    return lines

def pc_out(Q):
    P = V_PK
    Q("s_nop 7")
    Q("s_mov_b32 %s, 0x%08x" % (s(S_T3), f32bits(1.4426950408889634 / 16.0)))
    Q("s_lshl_b32 %s, %s, 3" % (s(S_T0), s(S_QBLK)))
    Q("s_lshl_b32 %s, %s, 1" % (s(S_T1), s(S_WAVE)))
    Q("s_add_u32 %s, %s, %s" % (s(S_T0), s(S_T0), s(S_T1)))
    Q("s_lshl_b32 %s, %s, 13" % (s(S_T0), s(S_T0)))
    Q("s_lshl_b32 %s, %s, 20" % (s(S_T1), s(S_AH)))
    Q("s_add_u32 %s, %s, %s" % (s(S_T0), s(S_T0), s(S_T1)))
    Q("s_add_u32 %s, %s, %d" % (s(S_T0), s(S_T0), WS_Q))
    Q("s_cmp_eq_u32 %s, 0" % s(S_AROLE))
    Q("s_cselect_b32 %s, %s, 0x7f000000" % (s(S_T0), s(S_T0)))
    k = 0
    for qt in range(2):
        for f in range(8):
            R = P + (k & 1) * 12
            for r in range(8):
                Q("v_accvgpr_read_b32 %s, %s" % (v(R + r), a(128 + (f * 2 + qt) * 8 + r)))
            for r in range(8):
                Q("v_mul_f32 %s, %s, %s" % (v(R + r), s(S_T3), v(R + r)))
            for h in range(4):
                Q("v_cvt_pk_bf16_f32 %s, %s, %s" % (v(R + 8 + h), v(R + 2 * h), v(R + 2 * h + 1)))
            for h in range(4):
                Q("v_accvgpr_write_b32 %s, %s" % (a((qt * 8 + f) * 4 + h), v(R + 8 + h)))
            if f % 4 == 0:
                Q("s_add_u32 %s, %s, %d" % (s(S_T1), s(S_T0), qt * 8192 + f * 1024))
            Q.vm(("qst", 0), "buffer_store_dwordx4 %s, %s, %s, %s offen offset:%d sc1" % (v(R + 8, 4), v(V_L16), s(S_WS, 4), s(S_T1), (f % 4) * 1024))
            k += 1

def dbg_atomic(A, op, word_sgpr_or_imm, data_sgpr_or_imm, lbl, vt=28):
    A("s_cmp_lg_u32 %s, 0" % s(S_WAVE))
    A("s_cbranch_scc1 %s" % lbl)
    A("v_mov_b32 %s, %s" % (v(vt), word_sgpr_or_imm))
    A("v_mov_b32 %s, %s" % (v(vt + 1), data_sgpr_or_imm))
    A("s_mov_b64 exec, 1")
    A("global_atomic_%s %s, %s, %s sc1" % (op, v(vt), v(vt + 1), s(P_DBG, 2)))
    A("s_mov_b64 exec, -1")
    A.label(lbl)

WO_LDS = 131072
def wo_issue(A):
    T = V_T
    SRD = S_SRDB
    A("s_cmp_ge_u32 s2, 128")
    A("s_cselect_b32 %s, %s, %s" % (s(SRD), s(P_BWO), s(P_WO)))
    A("s_cselect_b32 %s, %s, %s" % (s(SRD + 1), s(P_BWO + 1), s(P_WO + 1)))
    A("s_mov_b32 %s, %d" % (s(S_T1), 448 * 448 * 2))
    A("s_cselect_b32 %s, %s, %d" % (s(SRD + 2), s(S_T1), 4096 * 448 * 2))
    A("s_mov_b32 %s, 0x20000" % s(SRD + 3))
    A("s_sub_u32 %s, s2, 128" % s(S_T0))
    A("s_cselect_b32 %s, %s, %s" % (s(S_T0), s(S_T0), s(S_T0)))
    A("s_cmp_ge_u32 s2, 128")
    A("s_cselect_b32 %s, %s, s2" % (s(S_T0), s(S_T0)))
    A("s_cselect_b32 %s, %d, %d" % (s(S_T1), 28, 32))
    A("s_mul_i32 %s, %s, %s" % (s(S_T1), s(S_T1), s(S_T0)))
    A("s_mul_i32 %s, %s, 896" % (s(S_T1), s(S_T1)))
    A("s_lshl_b32 %s, %s, 10" % (s(S_WOO), s(S_T0)))
    A("s_cmp_ge_u32 s2, 128")
    A("s_mov_b32 %s, %d" % (s(S_T2), WS_WOBT))
    A("s_cselect_b32 %s, %s, %d" % (s(S_T2), s(S_T2), WS_WOT))
    A("s_add_u32 %s, %s, %s" % (s(S_WOO), s(S_WOO), s(S_T2)))
    A("s_cmp_ge_u32 s2, 128")
    A("s_mov_b32 %s, 16384" % s(S_T2))
    A("s_cselect_b32 %s, %s, 131072" % (s(S_WOS), s(S_T2)))
    A("s_cmp_ge_u32 s2, 144")
    A("s_cselect_b32 %s, %s, %s" % (s(S_T1), s(K1.S_OOB), s(S_T1)))
    A("s_cselect_b32 %s, %s, %s" % (s(S_WOO), s(K1.S_OOB), s(S_WOO)))
    A("s_cselect_b32 %s, 0, %s" % (s(S_WOS), s(S_WOS)))
    A("s_mul_i32 %s, %s, 7168" % (s(S_T2), s(S_WAVE)))
    A("s_add_u32 %s, %s, %s" % (s(S_T1), s(S_T1), s(S_T2)))
    A("s_add_u32 %s, %s, %d" % (s(S_T2), s(S_T2), WO_LDS))
    for k in range(7):
        A("s_add_u32 m0, %s, %d" % (s(S_T2), k * 1024))
        A("s_add_u32 %s, %s, %d" % (s(S_T0), s(S_T1), k * 1024))
        A("buffer_load_dwordx4 %s, %s, %s offen lds" % (v(V_L16), s(SRD, 4), s(S_T0)))
    lane_regs(A)
    A("v_lshl_add_u32 %s, %s, 2, %s" % (v(T + 5), v(T + 2), v(T + 3)))
    A("v_mul_u32_u24 %s, 896, %s" % (v(T + 5), v(T + 5)))
    A("v_lshl_add_u32 %s, %s, 3, %s" % (v(T + 5), v(T + 4), v(T + 5)))
    A("s_mul_i32 %s, %s, %d" % (s(S_T1), s(S_WAVE), 7 * 32))
    A("s_add_u32 %s, %s, %d" % (s(S_T1), s(S_T1), WO_LDS))
    A("v_add_u32 %s, %s, %s" % (v(V_WOA), s(S_T1), v(T + 5)))

def wo_reads():
    R = 36
    return ["ds_read_b64_tr_b16 %s, %s offset:%d" % (v(R + 4 * mt + 2 * t, 2), v(V_WOA), t * 16 * 896 + mt * 32) for mt in range(7) for t in range(2)]
def wo_stores(Q):
    R = 36
    Q("s_mul_i32 %s, %s, 7" % (s(S_T1), s(S_WAVE)), "s_mul_i32 %s, %s, %s" % (s(S_T1), s(S_T1), s(S_WOS)),
      "s_add_u32 %s, %s, %s" % (s(S_T0), s(S_WOO), s(S_T1)))
    for mt in range(7):
        Q.vm(("wo", 0), "buffer_store_dwordx4 %s, %s, %s, %s offen" % (v(R + 4 * mt, 4), v(V_L16), s(S_WS, 4), s(S_T0)))
        Q("s_add_u32 %s, %s, %s" % (s(S_T0), s(S_T0), s(S_WOS)))

def gen_k12(name, opts):
    opts = dict(opts); opts["fused"] = 1
    stamps = opts.get("stamps", False)
    STAMPV[0] = 255
    A = Asm()
    k = K1
    A(".globl %s" % name); A(".p2align 8"); A(".type %s,@function" % name); A.label(name)
    A("s_cmp_ge_u32 s2, 256")
    A("s_cbranch_scc1 L_f_end")
    load_ptrs(A)
    A("v_lshrrev_b32 v1, 6, v0")
    A("s_nop 0")
    A("v_readfirstlane_b32 %s, v1" % s(S_WAVE))
    A("s_mov_b32 %s, 0x7f000000" % s(k.S_OOB))
    A("s_waitcnt lgkmcnt(0)")
    if stamps:
        stamp_init(A); stamp(A)
    set_srd(A, S_WS, P_WS, WS_SIZE)
    S = k
    A("s_and_b32 %s, s2, 7" % s(S.S_T0))
    A("s_lshr_b32 %s, s2, 3" % s(S.S_T1))
    A("s_lshl_b32 %s, %s, 2" % (s(S.S_T0), s(S.S_T0)))
    A("s_and_b32 %s, %s, 3" % (s(S.S_T2), s(S.S_T1)))
    A("s_add_u32 %s, %s, %s" % (s(S.S_T0), s(S.S_T0), s(S.S_T2)))
    A("s_lshr_b32 %s, %s, 2" % (s(S.S_T1), s(S.S_T1)))
    A("s_lshl_b32 %s, %s, 8" % (s(S.S_ROW0), s(S.S_T1)))
    A("s_lshr_b32 %s, %s, 4" % (s(S.S_TYPE), s(S.S_T0)))
    A("s_and_b32 %s, %s, 15" % (s(S.S_T0), s(S.S_T0)))
    A("s_mov_b32 %s, %s" % (s(S_HEADKV), s(S.S_T0)))
    A("s_lshl_b32 %s, %s, 20" % (s(S.S_EOUT), s(S.S_T0)))
    A("s_lshl_b32 %s, %s, 17" % (s(S.S_T1), s(S.S_T1)))
    A("s_add_u32 %s, %s, %s" % (s(S.S_EOUT), s(S.S_EOUT), s(S.S_T1)))
    A("s_lshl_b32 %s, %s, 24" % (s(S.S_T1), s(S.S_TYPE)))
    A("s_add_u32 %s, %s, %s" % (s(S.S_EOUT), s(S.S_EOUT), s(S.S_T1)))
    A("s_lshl_b32 %s, %s, 9" % (s(S.S_T0), s(S.S_T0)))
    set_srd(A, S.S_ACT, P_CKV, 2048 * 1024 * 2)
    A("s_cmp_eq_u32 %s, 0" % s(S.S_TYPE))
    A("s_cselect_b32 %s, %s, %s" % (s(S.S_T1), s(P_WUK), s(P_WUV)))
    A("s_cselect_b32 %s, %s, %s" % (s(S.S_T2), s(P_WUK + 1), s(P_WUV + 1)))
    A("s_add_u32 %s, %s, %s" % (s(S.S_W), s(S.S_T1), s(S.S_T0)))
    A("s_addc_u32 %s, %s, 0" % (s(S.S_W + 1), s(S.S_T2)))
    A("s_sub_u32 %s, %d, %s" % (s(S.S_W + 2), 1024 * 4096 * 2, s(S.S_T0)))
    A("s_mov_b32 %s, 0x20000" % s(S.S_W + 3))
    A("s_mov_b32 %s, 2048" % s(S.S_ASTR))
    A("s_mov_b32 %s, 8192" % s(S.S_WSTR))
    A("s_mov_b32 %s, 0" % s(S.S_BT))
    A("s_mov_b32 %s, 16" % s(S.S_T))
    k.tile_setup(A)
    k.prologue_dma0(A)
    A("s_mov_b32 s27, 128")
    A("s_mov_b32 s28, %s" % s(S.S_WSTEP))
    X = Asm()
    X("s_lshr_b32 %s, s2, 3" % s(S.S_T0))
    X("v_and_b32 %s, 63, v0" % v(k.V_T))
    X("s_lshl_b32 %s, %s, 6" % (s(S.S_T1), s(S.S_T0)))
    X("v_add_u32 %s, %s, %s" % (v(k.V_TCH), s(S.S_T1), v(k.V_T)))
    X("v_lshlrev_b32 %s, 11, %s" % (v(k.V_TCH), v(k.V_TCH)))
    X("s_lshr_b32 %s, %s, 2" % (s(S.S_T1), s(S.S_T0)))
    X("s_lshl_b32 %s, %s, 3" % (s(S.S_T1), s(S.S_T1)))
    X("v_bfe_u32 %s, %s, 2, 3" % (v(k.V_T + 1), v(k.V_T)))
    X("v_add_u32 %s, %s, %s" % (v(k.V_T + 1), s(S.S_T1), v(k.V_T + 1)))
    X("v_lshlrev_b32 %s, 13, %s" % (v(k.V_T + 1), v(k.V_T + 1)))
    X("v_and_b32 %s, 3, %s" % (v(k.V_T + 2), v(k.V_T)))
    X("v_lshl_add_u32 %s, %s, 7, %s" % (v(k.V_T + 1), v(k.V_T + 2), v(k.V_T + 1)))
    X("s_cmp_eq_u32 %s, 1" % s(S_WAVE))
    X("s_cselect_b64 vcc, -1, 0")
    X("s_nop 1")
    X("v_cndmask_b32 %s, %s, %s, vcc" % (v(k.V_TCH), v(k.V_TCH), v(k.V_T + 1)))
    k.global_touch_setup(X, opts)
    setup_bc(X)
    check(X.L, "setup bc")
    A(k.insert_items(X.L, k.prologue_dma1_items()))
    X = Asm(); wo_issue(X); check(X.L, "wo issue"); A(X.L)
    set_srd(A, S_SRDB, P_BWQKV, 448 * 1344 * 2)
    A("s_cmp_ge_u32 %s, 2" % s(S_WAVE))
    A("s_cbranch_scc1 L_f_tchg")
    for td in (1, 2):
        A("s_cmp_eq_u32 %s, 0" % s(S_WAVE))
        A("s_cbranch_scc0 L_f_tch1_%d" % td)
        A(k.touch_prep(0, opts, td)); A(k.touch_issue(0))
        A("s_branch L_f_tch2_%d" % td)
        A.label("L_f_tch1_%d" % td)
        A(k.touch_prep(1, opts, td)); A(k.touch_issue(1))
        A.label("L_f_tch2_%d" % td)
    A("s_branch L_f_tchd")
    A.label("L_f_tchg")
    for r in range(2):
        A("buffer_load_dword %s, %s, %s, 0 offen" % (v(k.V_TD), v(V_L16), s(S.S_ACT, 4)))
    A.label("L_f_tchd")
    A("s_cmp_lg_u32 %s, 0" % s(S_WAVE))
    A("s_cbranch_scc1 L_f_tok0")
    A("s_memrealtime s[62:63]")
    A("s_waitcnt lgkmcnt(0)")
    A("s_or_b32 s62, s62, 1")
    A("v_mov_b32 v252, s62")
    A("v_mov_b32 v253, 0")
    A("v_mov_b32 v254, 0")
    A("s_mov_b64 exec, 1")
    A("global_atomic_cmpswap v251, v254, v[252:253], %s sc0 sc1" % s(P_DBG, 2))
    A("s_mov_b64 exec, -1")
    A.label("L_f_tok0")
    A("s_waitcnt vmcnt(25)")
    A("s_barrier")
    if stamps: stamp(A)
    A(k.frag_reads(0, 0))
    A("s_mov_b32 %s, %s" % (s(S.S_CNT), s(S.S_T)))
    for ktype in (1, 0):
        for wv in range(4):
            if ktype == 1 and wv == 0:
                continue
            A("s_cmp_eq_u32 %s, %d" % (s(S.S_TYPE), 0 if ktype == 1 else 1))
            A("s_cbranch_scc0 L_f_nx_%d_%d" % (ktype, wv))
            A("s_cmp_eq_u32 %s, %d" % (s(S_WAVE), wv))
            A("s_cbranch_scc1 L_f_go_%d_%d" % (ktype, wv))
            A.label("L_f_nx_%d_%d" % (ktype, wv))
    for ktype in (1, 0):
        for wv in range(4):
            A.label("L_f_go_%d_%d" % (ktype, wv))
            b0 = k.body(True, ktype, opts, wv); b1 = k.body(False, ktype, opts, wv)
            A(b0)
            A(".p2align 6")
            A.label("L_f_loop_%d_%d" % (ktype, wv))
            A(b1)
            A("s_cbranch_scc1 L_f_loop_%d_%d" % (ktype, wv))
            A("s_branch L_f_kvdone")
    A.label("L_f_kvdone")
    if stamps: stamp(A)
    A("s_waitcnt vmcnt(0) lgkmcnt(0)")
    A("s_cmp_lg_u32 %s, 0" % s(S_WAVE))
    A("s_cbranch_scc1 L_f_tok1")
    A("v_cmp_eq_u32 vcc, 0, v251")
    A("v_mov_b32 v254, %d" % (LDS_BYTES - 4))
    A("s_nop 0")
    A("v_cndmask_b32 v251, v251, v252, vcc")
    A("s_mov_b64 exec, 1")
    A("ds_write_b32 v254, v251")
    A("s_mov_b64 exec, -1")
    A("s_waitcnt lgkmcnt(0)")
    A.label("L_f_tok1")
    A("s_barrier")
    A("v_mov_b32 v254, %d" % (LDS_BYTES - 4))
    A("ds_read_b32 v251, v254")
    A("s_waitcnt lgkmcnt(0)")
    A("v_readfirstlane_b32 %s, v251" % s(S_TOKEN))
    flag = opts.get("kvst", " sc1")
    X = Asm(); kv_base(X); A(X.L)
    Q = Seq()
    Q(wo_reads())
    Q("s_waitcnt lgkmcnt(0)")
    Q("s_barrier")
    D = Seq()
    for u in range(3):
        g_pb(D, u)
    g_wq(D, 0); g_xa(D, 0); g_xa(D, 1)
    wo_stores(D)
    R_ = Seq(); kv_drain(R_)
    items = []; cur = []
    for e in D.L:
        cur.append(e)
        if e[1] is not None:
            items.append(cur); cur = []
    step = len(R_.L) // (len(items) + 1)
    for kx, it in enumerate(items):
        Q.L += R_.L[kx * step:(kx + 1) * step] + it
    Q.L += R_.L[len(items) * step:]
    if stamps:
        T_ = Asm(); stamp(T_); Q(T_.L)
    X = Asm(); pb_addr(X); Q(X.L)
    pb_compute.base = 0
    stores = list(range(32))
    pb_compute(Q, stores, flag)
    pb_out(Q)
    if stamps:
        T_ = Asm(); stamp(T_); Q(T_.L)
    Q("s_barrier")
    g_wq(Q, 3)
    X = Asm(); pc_addr(X); Q(X.L)
    def sig_b1(Q):
        Q.wait([("bst", 0)])
        Q("s_barrier")
        X = Asm()
        X("s_lshl_b32 %s, %s, 4" % (s(S_T0), s(S_BH)))
        X("s_add_u32 %s, %s, %s" % (s(S_T0), s(S_T0), s(S_RB)))
        X("s_lshl_b32 %s, %s, 7" % (s(S_T0), s(S_T0)))
        X("s_add_u32 %s, %s, %d" % (s(S_T0), s(S_T0), FL_B1))
        flag_set(X, S_T0, S_WAVE, S_WS, "L_f_sig2", V_T)
        Q([("X" + x) if x.startswith("buffer_") else x for x in X.L])
    pc_compute(Q, stores, flag, sig_b1)
    assert not stores, stores
    if stamps and opts.get("fine"):
        T_ = Asm(); stamp(T_); Q(T_.L)
    pc_out(Q)
    Q.wait([("kv", 0)])
    Q("s_barrier")
    X = Asm()
    X("s_lshl_b32 %s, %s, 4" % (s(S_T0), s(S_HEADKV)))
    X("s_lshl_b32 %s, s60, 3" % s(S_T1))
    X("s_add_u32 %s, %s, %s" % (s(S_T0), s(S_T0), s(S_T1)))
    X("s_lshr_b32 %s, s2, 5" % s(S_T1))
    X("s_add_u32 %s, %s, %s" % (s(S_T0), s(S_T0), s(S_T1)))
    X("s_lshl_b32 %s, %s, 7" % (s(S_T0), s(S_T0)))
    X("s_add_u32 %s, %s, %d" % (s(S_T0), s(S_T0), FL_KV))
    flag_set(X, S_T0, S_WAVE, S_WS, "L_f_sig1", V_T)
    Q([("X" + x) if x.startswith("buffer_") else x for x in X.L])
    lines = seq_finalize(Q)
    check(lines, "phase B/C")
    A(lines)
    if stamps: stamp(A)
    if stamps:
        A("v_mov_b32 v127, v255")
        STAMPV[0] = 127
    K2.k2_main(A, opts, True)
    A.label("L_f_end")
    A("s_endpgm")
    K2.k2_outofline(A, opts)
    return A
```

```python
from common import *

LDS_BYTES = 163840
B2_LDS = 114688
S_K = 4; S_V = 8; S_WS = 12
S_WAVE = 16; S_HEAD = 17; S_ROLE = 18; S_PAIR = 19
S_SRC = [20, 21]
S_E1 = 22; S_S2 = 23; S_E2 = 24
S_DM0 = [25, 26]
S_TABS = 27
S_DIAG = 28
S_TEND = 29
S_QB = 30; S_SEG = 31
S_T0 = 56; S_T1 = 57; S_T2 = 58; S_T3 = 59
S_QB2 = 60; S_N2 = 61; S_OOB = 62; S_D = 63; S_PART = 64; S_ENDACT = 65; S_QROW = 66; S_SPIN = 67
S_RET = 68
S_PUBF = 88; S_PREF = 89; S_TLAST = 90; S_QBASE = 96; S_FLAG = 97; S_PBIT = 98; S_QBIT = 99

V_L16 = 1
V_KA = [2, 3]; V_VA = 4; V_B = 5; V_DMA = 6; V_U = [7, 8]
V_T = 9
V_S = [16, 32]
V_P = 48
V_CI = 56
V_L = 64
V_ONE = 72
V_X = 76
V_O = 128
A_Q = [0, 64]
A_R = 128

def Sreg(p, kt, qt, r=None):
    b = V_S[p] + (kt * 2 + qt) * 4
    return v(b, 4) if r is None else v(b + r)
def Oreg(dt, qt):
    return V_O + (dt * 2 + qt) * 4
def Qf(qt, f, qset=0):
    return a(A_Q[qset] + (qt * 8 + f) * 4, 4)
def ring(n):
    return a(A_R + (n % 16) * 4, 4)

def kread(n, areg):
    f, kt = n >> 1, n & 1
    return "ds_read_b128 %s, %s offset:%d" % (ring(n), v(areg), (kt * 8 + f) * 1024)
def vread(n, areg):
    return "ds_read_b128 %s, %s offset:%d" % (ring(n), v(areg), n * 1024)

KVF = " sc1"
def dma_k(p, m):
    return "buffer_load_dwordx4 %s, %s, %s offen offset:%d%s lds" % (v(V_DMA), s(S_K, 4), s(S_SRC[p]), m * 1024, KVF)
def dma_v(p, m):
    return "buffer_load_dwordx4 %s, %s, %s offen offset:%d%s lds" % (v(V_DMA), s(S_V, 4), s(S_SRC[p]), m * 1024, KVF)

def next_src(dst, src):
    return ["s_add_u32 %s, %s, 16384" % (s(dst), s(src)),
            "s_sub_u32 %s, %s, 1" % (s(S_E1), s(S_E1)),
            "s_cmp_eq_u32 %s, 0" % s(S_E1),
            "s_cselect_b32 %s, %s, %s" % (s(dst), s(S_S2), s(dst)),
            "s_cselect_b32 %s, %s, %s" % (s(S_E1), s(S_E2), s(S_E1)),
            "s_cselect_b32 %s, %s, %s" % (s(S_S2), s(S_OOB), s(S_S2))]

def qk_mfmas(p, first):
    out = []
    for n in range(16):
        f, kt = n >> 1, n & 1
        for qt in range(2):
            C = ("0" if first else v(V_CI + qt * 4, 4)) if f == 0 else Sreg(p, kt, qt)
            out.append(mf16(Sreg(p, kt, qt), ring(n), Qf(qt, f), C))
    return out

def exp_list(p):
    ex = []; cv = []
    for qt in range(2):
        for kt in range(2):
            for r in range(4):
                ex.append("v_exp_f32 %s, %s" % (Sreg(p, kt, qt, r), Sreg(p, kt, qt, r)))
            for h in range(2):
                cv.append("v_cvt_pk_bf16_f32 %s, %s, %s" % (v(V_P + qt * 4 + kt * 2 + h), Sreg(p, kt, qt, 2 * h), Sreg(p, kt, qt, 2 * h + 1)))
    return ex, cv

def max_tree(p):
    x = [Sreg(p, kt, qt, r) for qt in range(2) for kt in range(2) for r in range(4)]
    T = V_T
    o = ["v_max3_f32 %s, %s, %s, %s" % (v(T), x[0], x[1], x[2]),
         "v_max3_f32 %s, %s, %s, %s" % (v(T + 1), x[3], x[4], x[5]),
         "v_max3_f32 %s, %s, %s, %s" % (v(T + 2), x[6], x[7], x[8]),
         "v_max3_f32 %s, %s, %s, %s" % (v(T), v(T), x[9], x[10]),
         "v_max3_f32 %s, %s, %s, %s" % (v(T + 1), v(T + 1), x[11], x[12]),
         "v_max3_f32 %s, %s, %s, %s" % (v(T + 2), v(T + 2), x[13], x[14]),
         "v_max3_f32 %s, %s, %s, %s" % (v(T), v(T), v(T + 1), x[15]),
         "v_max_f32 %s, %s, %s" % (v(T), v(T), v(T + 2)),
         "v_cmp_lt_f32 vcc, 0x41c00000, %s" % v(T)]
    return o

def body(p, final, opts, wv=0):
    q = p ^ 1
    out = []
    barpos = opts.get("k2barpos", 30)
    if barpos < 0:
        out += ["s_waitcnt vmcnt(12)", "s_barrier"]
    pre = ["s_add_u32 %s, %s, 16384" % (s(S_DM0[p]), s(S_DM0[q])),
           "s_and_b32 %s, %s, 0xffff" % (s(S_DM0[p]), s(S_DM0[p])),
           "v_add_u32 %s, %s, %s" % (v(V_VA), s(S_DM0[p]), v(V_B)),
           "v_xor_b32 %s, 0x18000, %s" % (v(V_KA[p]), v(V_VA))]
    ex, cv = exp_list(p)
    def rd(n):
        if n < 16:
            return None if final else kread(n, V_KA[q])
        if n < 32:
            return vread(n - 16, V_VA)
        return None if final else kread(n - 32, V_KA[p])
    m0k = "s_mov_b32 m0, %s" % s(S_DM0[p])
    m0v = "s_add_u32 m0, %s, 0x10000" % s(S_DM0[q])
    ns = next_src(S_SRC[q], S_SRC[p])
    if not final:
        mA = qk_mfmas(q, False)
        gA = [[] for _ in range(32)]
        out += pre[0:2]
        gA[0] += [pre[2]]
        for n in range(16):
            gA[2 * n].append(rd(n + 12))
        gA[1] += [pre[3]]
        for k in range(16):
            gA[2 * k + 1].append(ex[k])
        for k in range(7):
            gA[4 * k + 4].append(cv[k])
        shift = opts.get("k2shift", 0)
        kpos = [6, 14, 22, 30]; vpos = [9, 15, 21, 27]
        if shift and wv >= 2:
            kpos = [2, 10, 18, 26]
            out.append(m0k)
        else:
            gA[2] += [m0k]
        for m, g in enumerate(kpos):
            gA[g].append(dma_k(p, m))
        for m in range(32):
            if m % 8 == 0:
                out.append("s_waitcnt lgkmcnt(8)")
            out.append(mA[m]); out += gA[m]
    else:
        out += ["s_waitcnt lgkmcnt(0)"]
        out += pre[0:3]
        out += [m0k]
        for n in range(4, 16):
            out.append(rd(n + 12))
        for k in range(16):
            out.append(ex[k])
            if k % 4 == 0:
                out.append(dma_k(p, k // 4))
            if (k & 1) and k >= 3:
                out.append(cv[(k >> 1) - 1])
        out.append("s_nop 0")
    mB = []
    fr = []
    for dt in range(16):
        for qt in range(2):
            mB.append(mf16(v(Oreg(dt, qt), 4), ring(dt), v(V_P + qt * 4, 4), v(Oreg(dt, qt), 4))); fr.append((dt, qt))
            if dt == 0:
                mB.append(mf16(v(V_L + qt * 4, 4), v(V_ONE, 4), v(V_P + qt * 4, 4), v(V_L + qt * 4, 4))); fr.append(None)
    nB = len(mB)
    gB = [[] for _ in range(nB)]
    gB[0] += [cv[7]]
    first_of = {}
    for m, x in enumerate(fr):
        if x is not None and x[1] == 0:
            first_of[x[0]] = m
    for dt in range(16):
        x = rd(16 + dt + 12)
        if x is not None:
            gB[first_of[dt]].append(x)
    if not final:
        mt = max_tree(q)
        gB[3] += ["s_cmp_ge_u32 %s, %s" % (s(S_TABS), s(S_DIAG))]
        gB[5] += ["s_cbranch_scc1 L_k2_mask%d_%d" % (p, wv), "L_k2_maskret%d_%d:" % (p, wv)]
        pos = [7, 7, 11, 11, 13, 13, 17, 17, 19]
        for x, g in zip(mt, pos):
            gB[g].append(x)
    gB[6] += [m0v]
    vpos = [9, 15, 21, 27]
    if opts.get("k2shift", 0) and wv >= 2:
        vpos = [7, 13, 19, 25] if False else [11, 17, 23, 27]
        vpos = [8 + 1, 15, 21, 27]
        vpos = [12, 18, 24, 27] if opts.get("k2shift") == 2 else vpos
    for m, g in enumerate(vpos):
        gB[g].append(dma_v(q, m))
    gB[23] += ["s_add_u32 %s, %s, 1" % (s(S_TABS), s(S_TABS))]
    if barpos < 0:
        gB[29] += ns[0:2]
        gB[31] += ns[2:4]
        gB[33] += ns[4:5]
    else:
        gB[28] += ns[0:1]
        gB[29] += ns[1:3]
        gB[31] += ns[3:5]
        gB[33] += ns[5:6]
        assert barpos > 27
        gB[barpos] += ["s_waitcnt vmcnt(12)", "s_barrier"]
        dl = opts.get("k2delay", 2) * wv
        while dl > 0:
            gB[barpos] += ["s_nop %d" % (min(dl, 16) - 1)]
            dl -= 16
    for m in range(nB):
        if fr[m] is not None and fr[m][1] == 0 and fr[m][0] % 4 == 0:
            k = {0: 8, 4: 8, 8: 4, 12: 0}[fr[m][0]] if final else 8
            out.append("s_waitcnt lgkmcnt(%d)" % k)
        out.append(mB[m]); out += gB[m]
    if not final:
        out += ["s_cbranch_vccnz L_k2_resc%d_%d" % (p, wv), "L_k2_rescret%d_%d:" % (p, wv)]
        def drop(pred):
            return [x for x in out if not pred(x)]
        if opts.get("k2noexp"): out = drop(lambda x: x.startswith("v_exp"))
        if opts.get("k2nocvt"): out = drop(lambda x: x.startswith("v_cvt"))
        if opts.get("k2nodma"): out = drop(lambda x: " lds" in x)
        if opts.get("k2nobar"): out = drop(lambda x: x.startswith("s_barrier"))
        if opts.get("k2noreads"): out = drop(lambda x: x.startswith("ds_read") or "lgkmcnt" in x)
        if opts.get("k2nomax"): out = drop(lambda x: x.startswith("v_max") or x.startswith("v_cmp") or x.startswith("s_cbranch_vccnz"))
    return out

def mask_block(p_s, ret, lbl):
    o = [lbl + ":"]
    o += ["s_lshl_b32 %s, %s, 5" % (s(S_D), s(S_TABS)),
          "s_sub_u32 %s, %s, %s" % (s(S_D), s(S_QROW), s(S_D)),
          "v_add_u32 %s, %s, %s" % (v(V_X), s(S_D), v(V_U[0])),
          "v_add_u32 %s, %s, %s" % (v(V_X + 1), s(S_D), v(V_U[1])),
          "v_mov_b32 %s, 0xff800000" % v(V_X + 2),
          "s_nop 4"]
    for qt in range(2):
        for kt in range(2):
            for r in range(4):
                o += ["v_cmp_gt_i32 vcc, %d, %s" % (16 * kt + r, v(V_X + qt)),
                      "s_nop 1",
                      "v_cndmask_b32 %s, %s, %s, vcc" % (Sreg(p_s, kt, qt, r), Sreg(p_s, kt, qt, r), v(V_X + 2))]
    o += ["s_nop 0", "s_branch %s" % ret]
    return o

def rowmax(qt, p_s, dst, tmp):
    x = [Sreg(p_s, kt, qt, r) for kt in range(2) for r in range(4)]
    return ["v_max3_f32 %s, %s, %s, %s" % (v(dst), x[0], x[1], x[2]),
            "v_max3_f32 %s, %s, %s, %s" % (v(tmp), x[3], x[4], x[5]),
            "v_max3_f32 %s, %s, %s, %s" % (v(dst), v(dst), x[6], x[7]),
            "v_max_f32 %s, %s, %s" % (v(dst), v(dst), v(tmp)),
            "v_mov_b32 %s, %s" % (v(tmp), v(dst)),
            "s_nop 1",
            "v_permlane32_swap_b32 %s, %s" % (v(dst), v(tmp)),
            "s_nop 1",
            "v_max_f32 %s, %s, %s" % (v(dst), v(dst), v(tmp)),
            "v_mov_b32 %s, %s" % (v(tmp), v(dst)),
            "s_nop 1",
            "v_permlane16_swap_b32 %s, %s" % (v(dst), v(tmp)),
            "s_nop 1",
            "v_max_f32 %s, %s, %s" % (v(dst), v(dst), v(tmp))]

def resc_block(p_s, ret, lbl):
    o = [lbl + ":", "s_nop 7", "s_nop 1"]
    X = V_X
    for qt in range(2):
        o += rowmax(qt, p_s, X, X + 1)
        o += ["v_max_f32 %s, 0, %s" % (v(X), v(X)),
              "v_exp_f32 %s, -%s" % (v(X + 2), v(X))]
        for kt in range(2):
            for r in range(4):
                o += ["v_sub_f32 %s, %s, %s" % (Sreg(p_s, kt, qt, r), Sreg(p_s, kt, qt, r), v(X))]
        for r in range(4):
            o += ["v_sub_f32 %s, %s, %s" % (v(V_CI + qt * 4 + r), v(V_CI + qt * 4 + r), v(X))]
        for r in range(4):
            o += ["v_mul_f32 %s, %s, %s" % (v(V_L + qt * 4 + r), v(V_L + qt * 4 + r), v(X + 2))]
        for dt in range(16):
            for r in range(4):
                o += ["v_mul_f32 %s, %s, %s" % (v(Oreg(dt, qt) + r), v(Oreg(dt, qt) + r), v(X + 2))]
    o += ["s_nop 1", "s_branch %s" % ret]
    return o

def seg_prologue(A):
    for n in range(16):
        A(kread(n, V_KA[0]))
    for r in range(128):
        A("v_mov_b32 %s, 0" % v(V_O + r))
    for r in range(8):
        A("v_mov_b32 %s, 0" % v(V_L + r))
    A("s_waitcnt lgkmcnt(0)")
    A(qk_mfmas(0, True))
    for n in range(12):
        A(kread(n, V_KA[1]))
    A("s_nop 7")
    A("s_cmp_ge_u32 %s, %s" % (s(S_TABS), s(S_DIAG)))
    A("s_cbranch_scc1 L_k2_maskP")
    A.label("L_k2_maskPret")
    X = V_X
    for qt in range(2):
        A(rowmax(qt, 0, X, X + 1))
        for kt in range(2):
            for r in range(4):
                A("v_sub_f32 %s, %s, %s" % (Sreg(0, kt, qt, r), Sreg(0, kt, qt, r), v(X)))
        for r in range(4):
            A("v_sub_f32 %s, 0, %s" % (v(V_CI + qt * 4 + r), v(X)))
    A("s_add_u32 %s, %s, 1" % (s(S_TABS), s(S_TABS)))
    pub_flag(A)
    A("s_waitcnt vmcnt(12)")
    A("s_barrier")

def q_base(A, dst, qb_sgpr):
    A("s_lshl_b32 %s, %s, 3" % (s(dst), s(qb_sgpr)))
    A("s_lshl_b32 %s, %s, 1" % (s(S_T0), s(S_WAVE)))
    A("s_add_u32 %s, %s, %s" % (s(dst), s(dst), s(S_T0)))
    A("s_lshl_b32 %s, %s, 13" % (s(dst), s(dst)))
    A("s_lshl_b32 %s, %s, 20" % (s(S_T0), s(S_HEAD)))
    A("s_add_u32 %s, %s, %s" % (s(dst), s(dst), s(S_T0)))
    A("s_add_u32 %s, %s, %d" % (s(dst), s(dst), WS_Q))

def load_q(A, qset, qb_sgpr, fl=""):
    A("s_lshl_b32 %s, %s, 3" % (s(S_T0), s(qb_sgpr)))
    A("s_lshl_b32 %s, %s, 1" % (s(S_T1), s(S_WAVE)))
    A("s_add_u32 %s, %s, %s" % (s(S_T0), s(S_T0), s(S_T1)))
    A("s_lshl_b32 %s, %s, 13" % (s(S_T0), s(S_T0)))
    A("s_lshl_b32 %s, %s, 20" % (s(S_T1), s(S_HEAD)))
    A("s_add_u32 %s, %s, %s" % (s(S_T0), s(S_T0), s(S_T1)))
    A("s_add_u32 %s, %s, %d" % (s(S_T0), s(S_T0), WS_Q))
    for k in range(16):
        if k % 4 == 0 and k:
            A("s_add_u32 %s, %s, 4096" % (s(S_T0), s(S_T0)))
        A("buffer_load_dwordx4 %s, %s, %s, %s offen offset:%d%s" % (a(A_Q[qset] + 4 * k, 4), v(V_L16), s(S_WS, 4), s(S_T0), (k % 4) * 1024, fl))

def ctx_base(A, dst):
    A("s_lshl_b32 %s, %s, 3" % (s(dst), s(S_QB)))
    A("s_lshl_b32 %s, %s, 1" % (s(S_T1), s(S_WAVE)))
    A("s_add_u32 %s, %s, %s" % (s(dst), s(dst), s(S_T1)))
    A("s_lshl_b32 %s, %s, 4" % (s(dst), s(dst)))
    A("s_add_u32 %s, %s, %s" % (s(dst), s(dst), s(S_HEAD)))
    A("s_lshl_b32 %s, %s, 13" % (s(dst), s(dst)))
    A("s_add_u32 %s, %s, %d" % (s(dst), s(dst), WS_CTX))

def epi_final(A, merge):
    X = V_X
    AP = [64, 192]
    def areg(unit, r):
        return a((64 + unit * 4 + r) if unit < 16 else (192 + (unit - 16) * 4 + r))
    ctx_base(A, S_T0)
    sc = [X + 4, X + 5]; sc2 = [X + 6, X + 7]
    for qt in range(2):
        if not merge:
            A("v_rcp_f32 %s, %s" % (v(sc[qt]), v(V_L + qt * 4)))
        else:
            m2 = X + 8 + qt; l2 = X + 10 + qt
            A("v_sub_f32 %s, 0, %s" % (v(X), v(V_CI + qt * 4)))
            A("v_max_f32 %s, %s, %s" % (v(X + 1), v(X), v(m2)))
            A("v_sub_f32 %s, %s, %s" % (v(X), v(X), v(X + 1)))
            A("v_sub_f32 %s, %s, %s" % (v(X + 2), v(m2), v(X + 1)))
            A("v_exp_f32 %s, %s" % (v(X), v(X)))
            A("v_exp_f32 %s, %s" % (v(X + 2), v(X + 2)))
            A("s_nop 0")
            A("v_mul_f32 %s, %s, %s" % (v(X + 1), v(X), v(V_L + qt * 4)))
            A("v_fmac_f32 %s, %s, %s" % (v(X + 1), v(X + 2), v(l2)))
            A("v_rcp_f32 %s, %s" % (v(X + 1), v(X + 1)))
            A("s_nop 0")
            A("v_mul_f32 %s, %s, %s" % (v(sc[qt]), v(X), v(X + 1)))
            A("v_mul_f32 %s, %s, %s" % (v(sc2[qt]), v(X + 2), v(X + 1)))
    A("s_nop 0")
    R = X + 12
    k = 0
    for qt in range(2):
        for f in range(8):
            t = R + (k & 1) * 12
            for h in range(2):
                dt = 2 * f + h
                for r in range(4):
                    o = Oreg(dt, qt) + r
                    if not merge:
                        A("v_mul_f32 %s, %s, %s" % (v(t + h * 4 + r), v(o), v(sc[qt])))
                    else:
                        A("v_accvgpr_read_b32 %s, %s" % (v(t + h * 4 + r), areg(dt * 2 + qt, r)))
                        A("v_mul_f32 %s, %s, %s" % (v(o), v(o), v(sc[qt])))
                        A("v_fma_f32 %s, %s, %s, %s" % (v(t + h * 4 + r), v(t + h * 4 + r), v(sc2[qt]), v(o)))
            for r in range(4):
                A("v_cvt_pk_bf16_f32 %s, %s, %s" % (v(t + 8 + r), v(t + 2 * r), v(t + 2 * r + 1)))
            if f % 4 == 0:
                A("s_add_u32 %s, %s, %d" % (s(S_T1), s(S_T0), qt * 131072 + f * 1024))
            A("buffer_store_dwordx4 %s, %s, %s, %s offen offset:%d" % (v(t + 8, 4), v(V_L16), s(S_WS, 4), s(S_T1), (f % 4) * 1024))
            k += 1

def part_base(A, dst):
    A("s_lshl_b32 %s, %s, 3" % (s(dst), s(S_HEAD)))
    A("s_add_u32 %s, %s, %s" % (s(dst), s(dst), s(S_PAIR)))
    A("s_mul_i32 %s, %s, %d" % (s(dst), s(dst), 135168))
    A("s_mul_i32 %s, %s, %d" % (s(S_T1), s(S_WAVE), 33792))
    A("s_add_u32 %s, %s, %s" % (s(dst), s(dst), s(S_T1)))
    A("s_add_u32 %s, %s, %d" % (s(dst), s(dst), WS_PART))

def epi_publish(A):
    X = V_X
    part_base(A, S_T0)
    for qt in range(2):
        A("v_sub_f32 %s, 0, %s" % (v(X + qt), v(V_CI + qt * 4)))
        A("v_mov_b32 %s, %s" % (v(X + 2 + qt), v(V_L + qt * 4)))
    for u in range(32):
        if u % 4 == 0:
            A("s_add_u32 %s, %s, %d" % (s(S_T1), s(S_T0), u * 1024))
        A("buffer_store_dwordx4 %s, %s, %s, %s offen offset:%d sc1" % (v(V_O + 4 * u, 4), v(V_L16), s(S_WS, 4), s(S_T1), (u % 4) * 1024))
    A("s_add_u32 %s, %s, %d" % (s(S_T1), s(S_T0), 32768))
    A("buffer_store_dwordx4 %s, %s, %s, %s offen sc1" % (v(X, 4), v(V_L16), s(S_WS, 4), s(S_T1)))
    A("s_mov_b32 %s, 1" % s(S_PUBF))

def pub_flag(A):
    X = V_X
    A("s_cmp_eq_u32 %s, 0" % s(S_PUBF))
    A("s_cbranch_scc1 L_k2_nopub")
    A("s_waitcnt vmcnt(0)")
    A("s_barrier")
    A("s_mov_b32 %s, 0" % s(S_PUBF))
    flag_set(A, S_FLAG, S_WAVE, S_WS, "L_k2_nopub2", X)
    A.label("L_k2_nopub")

def partial_loads(A):
    X = V_X
    part_base(A, S_T0)
    A("s_add_u32 %s, %s, %d" % (s(S_T1), s(S_T0), 32768))
    A("buffer_load_dwordx4 %s, %s, %s, %s offen sc1" % (v(X + 8, 4), v(V_L16), s(S_WS, 4), s(S_T1)))
    for u in range(32):
        if u % 4 == 0:
            A("s_add_u32 %s, %s, %d" % (s(S_T1), s(S_T0), u * 1024))
        dst = (64 + u * 4) if u < 16 else (192 + (u - 16) * 4)
        A("buffer_load_dwordx4 %s, %s, %s, %s offen offset:%d sc1" % (a(dst, 4), v(V_L16), s(S_WS, 4), s(S_T1), (u % 4) * 1024))

V_FL = 113
def flag_load():
    return "buffer_load_dword %s, %s, %s, %s offen sc1" % (v(V_FL), v(V_FL + 1), s(S_WS, 4), s(S_FLAG))

def epi_merge_load(A):
    A("s_cmp_eq_u32 %s, 1" % s(S_PREF))
    A("s_cbranch_scc1 L_k2_polled")
    A("s_mov_b32 %s, 0" % s(S_SPIN))
    A.label("L_k2_poll")
    A(flag_load())
    A("s_waitcnt vmcnt(0)")
    A("v_readfirstlane_b32 %s, %s" % (s(S_T1), v(V_FL)))
    A("s_add_u32 %s, %s, 1" % (s(S_SPIN), s(S_SPIN)))
    A("s_cmp_eq_u32 %s, %s" % (s(S_T1), s(S_TOKEN)))
    A("s_cbranch_scc1 L_k2_pollok")
    A("s_sleep 2")
    A("s_cmp_lt_u32 %s, 200000" % s(S_SPIN))
    A("s_cbranch_scc1 L_k2_poll")
    A.label("L_k2_pollok")
    partial_loads(A)
    A.label("L_k2_polled")
    A("s_waitcnt vmcnt(0)")

def early_check_block(lbl, ret):
    A = Asm()
    A.label(lbl)
    A("s_waitcnt vmcnt(8)")
    A("v_readfirstlane_b32 %s, %s" % (s(S_T1), v(V_FL)))
    A("s_cmp_eq_u32 %s, %s" % (s(S_T1), s(S_TOKEN)))
    A("s_cbranch_scc0 %s" % ret)
    partial_loads(A)
    A("s_mov_b32 %s, 1" % s(S_PREF))
    A("s_branch %s" % ret)
    return A.L

S_BH = 69; S_BTQ = 70; S_BTB = 71; S_BM = 72
BQ = 200; BK = 128; BV = 128

def b2_ids(A):
    A("s_and_b32 %s, s2, 15" % s(S_BH))
    A("s_lshr_b32 %s, s2, 4" % s(S_BTQ))
    A("s_lshl_b32 %s, %s, 2" % (s(S_BTQ), s(S_BTQ)))
    A("s_add_u32 %s, %s, %s" % (s(S_BTQ), s(S_BTQ), s(S_WAVE)))
    A("s_lshl_b32 %s, %s, 17" % (s(S_BTB), s(S_BH)))
    A("s_lshl_b32 %s, %s, 11" % (s(S_T0), s(S_BTQ)))
    A("s_add_u32 %s, %s, %s" % (s(S_BTB), s(S_BTB), s(S_T0)))

def b2_loads(A):
    TC = S_T3
    A("s_lshr_b32 %s, s2, 4" % s(S_T0))
    A("s_lshl_b32 %s, %s, 3" % (s(S_T0), s(S_T0)))
    A("s_mul_i32 %s, %s, 6" % (s(S_T1), s(S_WAVE)))
    A("s_add_i32 %s, %s, %s" % (s(S_T0), s(S_T0), s(S_T1)))
    A("s_sub_i32 %s, %s, 16" % (s(S_T0), s(S_T0)))
    A("s_lshl_b32 %s, %s, 17" % (s(S_T2), s(S_BH)))
    A("s_mul_i32 %s, %s, 6144" % (s(S_D), s(S_WAVE)))
    for k in range(6):
        A("s_add_i32 %s, %s, %d" % (s(S_T1), s(S_T0), k))
        A("s_cmp_ge_i32 %s, 0" % s(S_T1))
        A("s_cselect_b32 %s, %s, 0" % (s(TC), s(S_T1)))
        A("s_lshl_b32 %s, %s, 10" % (s(TC), s(TC)))
        A("s_add_u32 %s, %s, %s" % (s(TC), s(TC), s(S_T2)))
        A("s_cmp_ge_i32 %s, 0" % s(S_T1))
        A("s_cselect_b32 %s, %s, %s" % (s(TC), s(TC), s(S_OOB)))
        A("s_add_u32 m0, %s, %d" % (s(S_D), B2_LDS + k * 1024))
        A("s_add_u32 %s, %s, %d" % (s(S_T1), s(TC), WS_BK))
        A("buffer_load_dwordx4 %s, %s, %s offen sc1 lds" % (v(V_L16), s(S_WS, 4), s(S_T1)))
        A("s_add_u32 m0, %s, %d" % (s(S_D), B2_LDS + 24576 + k * 1024))
        A("s_add_u32 %s, %s, %d" % (s(S_T1), s(TC), WS_BV))
        A("buffer_load_dwordx4 %s, %s, %s offen sc1 lds" % (v(V_L16), s(S_WS, 4), s(S_T1)))

def b2_reads(A, which):
    T = V_T + 5
    A("s_lshl_b32 %s, %s, 11" % (s(S_T0), s(S_WAVE)))
    A("s_add_u32 %s, %s, %d" % (s(S_T0), s(S_T0), B2_LDS + (0 if which == "k" else 24576)))
    A("v_add_u32 %s, %s, %s" % (v(T), s(S_T0), v(V_L16)))
    for tt in range(9):
        for k in range(2):
            A("ds_read_b128 %s, %s offset:%d" % (a((BK if which == "k" else BV) + (tt * 2 + k) * 4, 4), v(T), tt * 2048 + k * 1024))

def b2_S(tt, kt, qt, r=None):
    idx = (tt * 4 + kt * 2 + qt) * 4
    b = 128 + idx if idx < 128 else 84 + (idx - 128)
    return v(b, 4) if r is None else v(b + r)

B2_C8 = 16; B2_C0 = 32
def B2_CM(tt):
    return 48 + 4 * (tt - 1) if tt < 7 else 100

def b2_cinit(A):
    X = V_X
    A("v_mov_b32 %s, 0xff800000" % v(X))
    A("v_mov_b32 %s, 0" % v(X + 1))
    for tt in range(8):
        A("s_cmp_ge_u32 %s, %d" % (s(S_BTQ), 8 - tt))
        A("s_cselect_b32 %s, 0, 0xff800000" % s(S_BM + tt))
    k = 0
    pend = []
    for kt in range(2):
        for qt in range(2):
            for r in range(4):
                sp = S_BM + 8 + 2 * (k % 4)
                A("v_cmp_gt_i32 %s, %d, %s" % (s(sp, 2), 16 * kt + r, v(V_U[qt])))
                pend.append((sp, kt, qt, r))
                if len(pend) == 4:
                    A("s_nop 0")
                    for (sp2, kt2, qt2, r2) in pend:
                        o = (kt2 * 2 + qt2) * 4 + r2
                        A("v_cndmask_b32 %s, %s, %s, %s" % (v(B2_C8 + o), v(X + 1), v(X), s(sp2, 2)))
                        A("v_cndmask_b32 %s, %s, %s, %s" % (v(B2_C0 + o), v(X), v(X + 1), s(sp2, 2)))
                    pend = []
                k += 1
    for o in range(16):
        A("v_add_f32 %s, %s, %s" % (v(B2_C0 + o), s(S_BM), v(B2_C0 + o)))
    for tt in range(1, 8):
        for r in range(4):
            A("v_mov_b32 %s, %s" % (v(B2_CM(tt) + r), s(S_BM + tt)))

def b2_qk(A):
    for tt in range(9):
        for kt in range(2):
            for qt in range(2):
                if tt == 8: C = v(B2_C8 + (kt * 2 + qt) * 4, 4)
                elif tt == 0: C = v(B2_C0 + (kt * 2 + qt) * 4, 4)
                else: C = v(B2_CM(tt), 4)
                A(mf16(b2_S(tt, kt, qt), a(BK + (tt * 2 + kt) * 4, 4), a(BQ + 4 * qt, 4), C))

def b2_max(A):
    X = V_X
    M = [X + 2, X + 6]
    chains = []
    for qt in range(2):
        xs = [b2_S(tt, kt, qt, r) for tt in range(9) for kt in range(2) for r in range(4)]
        t0, t1 = V_T + 2 * qt, V_T + 2 * qt + 1
        c = ["v_max3_f32 %s, %s, %s, %s" % (v(t0), xs[0], xs[1], xs[2]), "v_max3_f32 %s, %s, %s, %s" % (v(t1), xs[3], xs[4], xs[5])]
        k = 6; alt = 0
        while k + 1 < len(xs):
            c.append("v_max3_f32 %s, %s, %s, %s" % (v((t0, t1)[alt]), v((t0, t1)[alt]), xs[k], xs[k + 1]))
            k += 2; alt ^= 1
        c.append("v_max_f32 %s, %s, %s" % (v(t0), v(t0), v(t1)))
        chains.append(c)
    for x, y in zip(*chains):
        A(x); A(y)
    for sw in ("v_permlane32_swap_b32", "v_permlane16_swap_b32"):
        for qt in range(2):
            A("v_mov_b32 %s, %s" % (v(V_T + 2 * qt + 1), v(V_T + 2 * qt)))
        A("s_nop 0")
        for qt in range(2):
            A("%s %s, %s" % (sw, v(V_T + 2 * qt), v(V_T + 2 * qt + 1)))
        A("s_nop 0")
        for qt in range(2):
            A("v_max_f32 %s, %s, %s" % (v(V_T + 2 * qt), v(V_T + 2 * qt), v(V_T + 2 * qt + 1)))
    for qt in range(2):
        A("v_mov_b32 %s, %s" % (v(M[qt]), v(V_T + 2 * qt)))
        A("v_mov_b32 %s, %s" % (v(M[qt] + 1), v(V_T + 2 * qt)))

def b2_pv(A):
    X = V_X
    M = [X + 2, X + 6]
    P = [48, 56]; O = 16; L = 32
    def soft(tt):
        o = []
        pb = P[tt & 1]
        for qt in range(2):
            for kt in range(2):
                b = int(b2_S(tt, kt, qt)[2:].split(":")[0])
                for h in range(2):
                    o.append("v_pk_add_f32 %s, %s, %s neg_lo:[0,1] neg_hi:[0,1]" % (v(b + 2 * h, 2), v(b + 2 * h, 2), v(M[qt], 2)))
        for qt in range(2):
            for kt in range(2):
                for r in range(4):
                    o.append("v_exp_f32 %s, %s" % (b2_S(tt, kt, qt, r), b2_S(tt, kt, qt, r)))
        for qt in range(2):
            for kt in range(2):
                for h in range(2):
                    o.append("v_cvt_pk_bf16_f32 %s, %s, %s" % (v(pb + qt * 4 + kt * 2 + h), b2_S(tt, kt, qt, 2 * h), b2_S(tt, kt, qt, 2 * h + 1)))
        return o
    def mm(tt):
        o = []
        pb = P[tt & 1]
        for qt in range(2):
            for dt in range(2):
                oo = v(O + (dt * 2 + qt) * 4, 4)
                o.append(mf16(oo, a(BV + (tt * 2 + dt) * 4, 4), v(pb + qt * 4, 4), "0" if tt == 0 else oo))
            l = v(L + qt * 4, 4)
            o.append(mf16(l, v(V_ONE, 4), v(pb + qt * 4, 4), "0" if tt == 0 else l))
        return o
    A(soft(0))
    for tt in range(9):
        m = mm(tt)
        if tt < 8:
            sf = soft(tt + 1)
            out = []
            step = len(sf) // 6
            for k in range(6):
                out += sf[k * step:k * step + 2]; out.append(m[k]); out += sf[k * step + 2:(k + 1) * step]
            out += sf[6 * step:]
            A(out)
        else:
            A("s_nop 1"); A(m)

def b2_out(A):
    X = V_X; P = 48; O = 16; L = 32; TC = S_T3
    A("s_nop 7")
    A("v_cmp_gt_u32 vcc, 768, %s" % v(V_L16))
    A("s_lshl_b32 %s, %s, 5" % (s(TC), s(S_BTQ)))
    A("s_add_u32 %s, %s, %s" % (s(TC), s(TC), s(S_BH)))
    A("s_lshl_b32 %s, %s, 10" % (s(TC), s(TC)))
    A("s_add_u32 %s, %s, %d" % (s(TC), s(TC), WS_CTXB))
    for qt in range(2):
        A("v_rcp_f32 %s, %s" % (v(X + 4), v(L + qt * 4)))
        A("s_nop 0")
        A("v_cndmask_b32 %s, 0, %s, vcc" % (v(X + 5), v(X + 4)))
        for dt in range(2):
            for r in range(4):
                A("v_mul_f32 %s, %s, %s" % (v(100 + dt * 4 + r), v(O + (dt * 2 + qt) * 4 + r), v(X + 4 + dt)))
        for h in range(4):
            A("v_cvt_pk_bf16_f32 %s, %s, %s" % (v(P + qt * 4 + h), v(100 + 2 * h), v(100 + 2 * h + 1)))
        A("s_add_u32 %s, %s, %d" % (s(S_D), s(TC), qt * 16384))
        A("buffer_store_dwordx4 %s, %s, %s, %s offen" % (v(P + qt * 4, 4), v(V_L16), s(S_WS, 4), s(S_D)))

def k2_main(A, opts, fused):
    stamps = opts.get("stamps", False)
    split = opts.get("split", 34)
    A("s_mov_b32 %s, 0x7f000000" % s(S_OOB))
    for r in range(8):
        A("v_accvgpr_write_b32 %s, %s" % (a(BQ + r), v(244 + r)))
    set_srd(A, S_K, P_WS, 16 * MB)
    A("s_add_u32 %s, %s, %d" % (s(S_V), s(P_WS), WS_V))
    A("s_addc_u32 %s, %s, 0" % (s(S_V + 1), s(P_WS + 1)))
    A("s_mov_b32 %s, %d" % (s(S_V + 2), 16 * MB))
    A("s_mov_b32 %s, 0x20000" % s(S_V + 3))
    A("s_and_b32 %s, s2, 7" % s(S_T0))
    A("s_lshr_b32 %s, s2, 3" % s(S_T1))
    A("s_lshl_b32 %s, %s, 1" % (s(S_HEAD), s(S_T0)))
    A("s_and_b32 %s, %s, 1" % (s(S_T2), s(S_T1)))
    A("s_add_u32 %s, %s, %s" % (s(S_HEAD), s(S_HEAD), s(S_T2)))
    A("s_lshr_b32 %s, %s, 1" % (s(S_T1), s(S_T1)))
    A("s_and_b32 %s, %s, 1" % (s(S_ROLE), s(S_T1)))
    A("s_lshr_b32 %s, %s, 1" % (s(S_PAIR), s(S_T1)))
    A("v_and_b32 %s, 63, v0" % v(V_T))
    A("v_lshlrev_b32 %s, 4, %s" % (v(V_L16), v(V_T)))
    A("s_lshl_b32 %s, %s, 12" % (s(S_T0), s(S_WAVE)))
    A("v_add_u32 %s, %s, %s" % (v(V_DMA), s(S_T0), v(V_L16)))
    A("v_subrev_u32 %s, %s, %s" % (v(V_B), s(S_T0), v(V_L16)))
    A("v_add_u32 %s, 0x10000, %s" % (v(V_B), v(V_B)))
    A("v_and_b32 %s, 15, %s" % (v(V_T + 1), v(V_T)))
    A("v_lshrrev_b32 %s, 4, %s" % (v(V_T + 2), v(V_T)))
    A("v_lshlrev_b32 %s, 2, %s" % (v(V_T + 2), v(V_T + 2)))
    A("v_sub_u32 %s, %s, %s" % (v(V_U[0]), v(V_T + 1), v(V_T + 2)))
    A("v_add_u32 %s, 16, %s" % (v(V_U[1]), v(V_U[0])))
    for r in range(4):
        A("v_mov_b32 %s, 0x3f803f80" % v(V_ONE + r))
    A("s_sub_u32 %s, 15, %s" % (s(S_QB), s(S_PAIR)))
    A("s_add_u32 %s, %s, 1" % (s(S_T1), s(S_QB)))
    A("s_lshl_b32 %s, %s, 2" % (s(S_T1), s(S_T1)))
    A("s_sub_u32 %s, %s, %d" % (s(S_T3), s(S_T1), split))
    A("s_lshl_b32 %s, %s, 20" % (s(S_T2), s(S_HEAD)))
    A("s_cmp_eq_u32 %s, 0" % s(S_ROLE))
    A("s_cbranch_scc0 L_k2_roleS")
    A("s_mov_b32 %s, %s" % (s(S_TABS), s(S_T3)))
    A("s_mov_b32 %s, %s" % (s(S_TEND), s(S_T1)))
    A("s_lshl_b32 %s, %s, 14" % (s(S_SRC[0]), s(S_T3)))
    A("s_add_u32 %s, %s, %s" % (s(S_SRC[0]), s(S_SRC[0]), s(S_T2)))
    A("s_mov_b32 %s, %d" % (s(S_E1), split))
    A("s_mov_b32 %s, %s" % (s(S_S2), s(S_OOB)))
    A("s_mov_b32 %s, 1000" % s(S_E2))
    A("s_mov_b32 %s, 2" % s(S_ENDACT))
    A("s_branch L_k2_roledone")
    A.label("L_k2_roleS")
    A("s_mov_b32 %s, 0" % s(S_TABS))
    A("s_mov_b32 %s, %s" % (s(S_TEND), s(S_T3)))
    A("s_mov_b32 %s, %s" % (s(S_SRC[0]), s(S_T2)))
    A("s_mov_b32 %s, %s" % (s(S_E1), s(S_T3)))
    A("s_mov_b32 %s, %s" % (s(S_S2), s(S_T2)))
    A("s_add_u32 %s, %s, 1" % (s(S_N2), s(S_PAIR)))
    A("s_lshl_b32 %s, %s, 2" % (s(S_N2), s(S_N2)))
    A("s_mov_b32 %s, %s" % (s(S_E2), s(S_N2)))
    A("s_mov_b32 %s, 1" % s(S_ENDACT))
    A.label("L_k2_roledone")
    A("s_mov_b32 %s, 0" % s(S_PUBF))
    A("s_mov_b32 %s, 0" % s(S_PREF))
    A("s_sub_u32 %s, %s, 1" % (s(S_TLAST), s(S_TEND)))
    A("s_cmp_eq_u32 %s, 2" % s(S_ENDACT))
    A("s_cselect_b32 %s, %s, -1" % (s(S_TLAST), s(S_TLAST)))
    A("s_lshl_b32 %s, %s, 3" % (s(S_PBIT), s(S_HEAD)))
    A("s_add_u32 %s, %s, %s" % (s(S_PBIT), s(S_PBIT), s(S_PAIR)))
    A("s_lshl_b32 %s, %s, 7" % (s(S_PBIT), s(S_PBIT)))
    A("s_add_u32 %s, %s, %d" % (s(S_FLAG), s(S_PBIT), FL_P))
    A("s_add_u32 %s, %s, %d" % (s(S_QBIT), s(S_PBIT), FL_Q))
    A("v_mov_b32 %s, 0" % v(V_FL + 1))
    A("s_cmp_eq_u32 %s, 0" % s(S_ROLE))
    A("s_cbranch_scc1 L_k2_nocopy")
    for r in range(64):
        A("v_accvgpr_mov_b32 %s, %s" % (a(A_Q[1] + r), a(A_Q[0] + r)))
    A.label("L_k2_nocopy")
    A("s_mov_b32 %s, 0" % s(S_SEG))
    A("s_lshl_b32 %s, %s, 12" % (s(S_RET), s(S_WAVE)))
    def issue(srd, soff, slot, isv):
        A("s_add_u32 m0, %s, %d" % (s(S_RET), slot * 16384 + (65536 if isv else 0)))
        A("s_nop 0")
        for m in range(4):
            A("buffer_load_dwordx4 %s, %s, %s offen offset:%d lds" % (v(V_DMA), s(srd, 4), s(soff), m * 1024))
    b2_ids(A)
    A("v_and_b32 %s, 3, v0" % v(115))
    A("v_min_u32 %s, 2, %s" % (v(115), v(115)))
    A("s_lshr_b32 %s, s2, 4" % s(S_T0))
    A("s_sub_i32 %s, %s, 2" % (s(S_T0), s(S_T0)))
    A("v_add_u32 %s, %s, %s" % (v(115), s(S_T0), v(115)))
    A("v_max_i32 %s, 0, %s" % (v(115), v(115)))
    A("v_lshlrev_b32 %s, 7, %s" % (v(115), v(115)))
    A("s_lshl_b32 %s, %s, 11" % (s(S_T3), s(S_BH)))
    A("s_add_u32 %s, %s, %d" % (s(S_T3), s(S_T3), FL_B1))
    flag_poll(A, 115, S_T3, S_WS, "b1", 116, S_SPIN)
    b2_loads(A)
    A("v_and_b32 %s, 15, v0" % v(115))
    A("v_lshlrev_b32 %s, 7, %s" % (v(115), v(115)))
    A("s_lshl_b32 %s, %s, 11" % (s(S_T3), s(S_HEAD)))
    A("s_add_u32 %s, %s, %d" % (s(S_T3), s(S_T3), FL_KV))
    flag_poll(A, 115, S_T3, S_WS, "kv", 116, S_SPIN)
    X = Asm(); b2_cinit(X); check(X.L, "b2 cinit"); A(X.L)
    A("s_mov_b32 %s, %s" % (s(S_BM), s(S_SRC[0])))
    A(next_src(S_T1, S_SRC[0])); A(next_src(S_T2, S_T1)); A(next_src(S_T3, S_T2))
    A("s_mov_b32 %s, %s" % (s(S_SRC[1]), s(S_T3)))
    A("s_mov_b32 %s, %s" % (s(S_BM + 1), s(S_T1)))
    A("s_mov_b32 %s, %s" % (s(S_BM + 2), s(S_T2)))
    A(next_src(S_SRC[0], S_SRC[1]))
    q_base(A, S_QBASE, S_QB)
    if opts.get("b2stamp"): stamp(A)
    A("s_waitcnt vmcnt(0)")
    if opts.get("b2stamp"): stamp(A)
    A("s_barrier")
    A("s_cmp_eq_u32 %s, 0" % s(S_ROLE))
    A("s_cbranch_scc0 L_k2_noqsig")
    flag_set(A, S_QBIT, S_WAVE, S_WS, "L_k2_qsig", 115)
    A.label("L_k2_noqsig")
    def issue_l(srd, soff, slot, isv):
        o = ["s_add_u32 m0, %s, %d" % (s(S_RET), slot * 16384 + (65536 if isv else 0))]
        o2 = []
        for m in range(4):
            o2.append("buffer_load_dwordx4 %s, %s, %s offen offset:%d%s lds" % (v(V_DMA), s(srd, 4), s(soff), m * 1024, KVF))
        return [o] + [[x] for x in o2]
    def weave_items(L, items):
        step = max(1, len(L) // (len(items) + 1))
        out = []
        for k, d in enumerate(items):
            out += L[k * step:(k + 1) * step] + d
        out += L[len(items) * step:]
        return out
    X = Asm(); b2_reads(X, "k"); X("s_waitcnt lgkmcnt(0)")
    A(X.L)
    X = Asm(); b2_qk(X); b2_reads(X, "v"); X("s_nop 7"); b2_max(X); X("s_waitcnt lgkmcnt(0)")
    items = issue_l(S_K, S_BM, 0, False)
    L = weave_items(X.L, items)
    check(L, "b2 qk/max")
    A(L)
    if opts.get("b2stamp"): stamp(A)
    dm = []
    dm += issue_l(S_K, S_BM + 1, 1, False) + issue_l(S_V, S_BM, 0, True)
    late = issue_l(S_K, S_BM + 2, 2, False) + issue_l(S_V, S_BM + 1, 1, True) + issue_l(S_K, S_SRC[1], 3, False) + issue_l(S_V, S_BM + 2, 2, True)
    X = Asm(); b2_pv(X)
    L = X.L
    step = len(L) // (len(dm) + 1)
    out = []
    for k, d in enumerate(dm):
        out += L[k * step:(k + 1) * step] + d
    out += L[len(dm) * step:]
    X = Asm(); X(out); b2_out(X); check(X.L, "b2 pv"); A(X.L)
    if opts.get("b2stamp"): stamp(A)
    for it in late:
        A(it)
        if it[0].startswith("s_add_u32 m0"):
            A("s_nop 0")
    A("s_mov_b32 %s, %s" % (s(S_T0), s(S_RET)))
    A("s_add_u32 %s, %s, %d" % (s(S_DM0[1]), s(S_T0), 3 * 16384))
    A("v_mov_b32 %s, %s" % (v(V_KA[0]), v(V_L16)))
    A("v_add_u32 %s, 16384, %s" % (v(V_KA[1]), v(V_L16)))
    A("s_cmp_eq_u32 %s, 0" % s(S_ROLE))
    A("s_cbranch_scc1 L_k2_noq2")
    A("v_mov_b32 %s, 0" % v(115))
    flag_poll(A, 115, S_QBIT, S_WS, "q", 116, S_SPIN)
    load_q(A, 0, S_QB, " sc1")
    A("s_waitcnt vmcnt(0)")
    A.label("L_k2_noq2")
    A("s_waitcnt vmcnt(22)")
    A("s_barrier")
    if stamps:
        stamp(A)
    A.label("L_k2_seg")
    A("s_lshl_b32 %s, %s, 2" % (s(S_DIAG), s(S_QB)))
    A("s_add_u32 %s, %s, %s" % (s(S_DIAG), s(S_DIAG), s(S_WAVE)))
    A("s_lshl_b32 %s, %s, 5" % (s(S_QROW), s(S_DIAG)))
    P = Asm(); seg_prologue(P); check(P.L, "k2 segpro"); A(P.L)
    ncopy = 4 if opts.get("k2copies", 4) == 4 else 1
    if ncopy == 4:
        for wv in range(1, 4):
            A("s_cmp_eq_u32 %s, %d" % (s(S_WAVE), wv))
            A("s_cbranch_scc1 L_k2_loop_%d" % wv)
    for wv in range(ncopy):
        b0 = body(0, False, opts, wv); b1 = body(1, False, opts, wv); bf = body(1, True, opts, wv)
        if not any(k.startswith("k2no") for k in opts):
            check(P.L[-60:] + b0 + b1 + b0 + bf, "k2 bodies")
        A(".p2align 6")
        A.label("L_k2_loop_%d" % wv)
        A("s_cmp_eq_u32 %s, %s" % (s(S_TABS), s(S_TLAST)))
        A("s_cbranch_scc1 L_k2_fl_%d" % wv)
        A.label("L_k2_flret_%d" % wv)
        if opts.get("k2bodystamp"):
            stamp(A)
        A(b0)
        A("s_cmp_eq_u32 %s, %s" % (s(S_TABS), s(S_TEND)))
        A("s_cbranch_scc1 L_k2_final_%d" % wv)
        A(b1)
        A("s_branch L_k2_loop_%d" % wv)
        A.label("L_k2_final_%d" % wv)
        A("s_cmp_eq_u32 %s, 2" % s(S_ENDACT))
        A("s_cbranch_scc1 L_k2_ec_%d" % wv)
        A.label("L_k2_ecret_%d" % wv)
        A(bf)
        if wv < ncopy - 1:
            A("s_branch L_k2_segend")
    A.label("L_k2_segend")
    if stamps:
        stamp(A)
    A("s_nop 7")
    A("s_nop 1")
    A("s_cmp_eq_u32 %s, 1" % s(S_ENDACT))
    A("s_cbranch_scc1 L_k2_pub")
    A("s_cmp_eq_u32 %s, 2" % s(S_ENDACT))
    A("s_cbranch_scc0 L_k2_fin0")
    M = Asm(); epi_merge_load(M); epi_final(M, True); check(M.L, "k2 merge"); A(M.L)
    A("s_branch L_k2_done")
    A.label("L_k2_fin0")
    M = Asm(); epi_final(M, False); check(M.L, "k2 fin"); A(M.L)
    A("s_branch L_k2_done")
    A.label("L_k2_pub")
    M = Asm(); epi_publish(M); check(M.L, "k2 pub"); A(M.L)
    if stamps:
        stamp(A)
    A("s_mov_b32 %s, %s" % (s(S_QB), s(S_PAIR)))
    A("s_mov_b32 %s, 0" % s(S_TABS))
    A("s_mov_b32 %s, %s" % (s(S_TEND), s(S_N2)))
    A("s_mov_b32 %s, 0" % s(S_ENDACT))
    for r in range(64):
        A("v_accvgpr_mov_b32 %s, %s" % (a(A_Q[0] + r), a(A_Q[1] + r)))
    A("s_add_u32 %s, %s, 16384" % (s(S_T0), s(S_DM0[1])))
    A("s_and_b32 %s, %s, 0xffff" % (s(S_T0), s(S_T0)))
    A("v_add_u32 %s, %s, %s" % (v(V_KA[0]), s(S_T0), v(V_B)))
    A("v_subrev_u32 %s, 0x10000, %s" % (v(V_KA[0]), v(V_KA[0])))
    A("s_add_u32 %s, %s, 16384" % (s(S_T0), s(S_T0)))
    A("s_and_b32 %s, %s, 0xffff" % (s(S_T0), s(S_T0)))
    A("v_add_u32 %s, %s, %s" % (v(V_KA[1]), s(S_T0), v(V_B)))
    A("v_subrev_u32 %s, 0x10000, %s" % (v(V_KA[1]), v(V_KA[1])))
    A("s_branch L_k2_seg")
    A.label("L_k2_done")
    if stamps:
        A("s_waitcnt vmcnt(0)")
        stamp(A)
        stamp_flush(A, S_WS, S_WAVE, 0, "L_k2_stf")

def k2_outofline(A, opts):
    ncopy = 4 if opts.get("k2copies", 4) == 4 else 1

    for wv in range(ncopy):
        for p in range(2):
            mb = mask_block(p ^ 1, "L_k2_maskret%d_%d" % (p, wv), "L_k2_mask%d_%d" % (p, wv)); check(mb, "mask"); A(mb)
            rb = resc_block(p ^ 1, "L_k2_rescret%d_%d" % (p, wv), "L_k2_resc%d_%d" % (p, wv)); check(rb, "resc"); A(rb)
    for wv in range(ncopy):
        A.label("L_k2_fl_%d" % wv)
        A(flag_load())
        A("s_branch L_k2_flret_%d" % wv)
        A(early_check_block("L_k2_ec_%d" % wv, "L_k2_ecret_%d" % wv))
    mb = mask_block(0, "L_k2_maskPret", "L_k2_maskP"); A(mb)
```

```python
import sys, os
sys.path.insert(0, os.path.dirname(os.path.abspath(__file__)))
from asmgen import *
import k1 as K1
from common import descriptor

NAME = "concat_heads__compressed_kv_cla__sliding_block__prompt"
HEADER = """; Kernarg layout for this problem (96 bytes, ptrs only, base s[0:1]):
"""

def build(opts):
    stamps = opts.get("stamps", False)
    launches = []
    bodies = []
    descs = []
    which = opts.get("kernels", ["k1"])
    if "k1" in which:
        launches.append("; @launch kernel=proj_kernel grid=(256,1,1) block=(256,1,1) lds=%d" % K1.LDS_BYTES)
        bodies.append(K1.gen_k1("proj_kernel", opts).text())
        descs.append(descriptor("proj_kernel"))
    if "k12" in which:
        import k12 as K12
        launches.append("; @launch kernel=main_kernel grid=(256,1,1) block=(256,1,1) lds=%d" % K12.LDS_BYTES)
        bodies.append(K12.gen_k12("main_kernel", opts).text())
        descs.append(descriptor("main_kernel"))
    if "k2" in which:
        import k2 as K2
        launches.append("; @launch kernel=attn_kernel grid=(256,1,1) block=(256,1,1) lds=%d" % K2.LDS_BYTES)
        bodies.append(K2.gen_k2("attn_kernel", opts).text())
        descs.append(descriptor("attn_kernel"))
    if "k3" in which:
        import k3 as K3
        launches.append("; @launch kernel=oproj_kernel grid=(256,1,1) block=(256,1,1) lds=%d" % K3.LDS_BYTES)
        bodies.append(K3.gen_k3("oproj_kernel", opts).text())
        descs.append(descriptor("oproj_kernel"))
    txt = HEADER + "\n".join(launches) + "\n"
    txt += '.amdgcn_target "amdgcn-amd-amdhsa--gfx950"\n.text\n'
    txt += "\n".join(bodies)
    txt += "\n".join(descs)
    return txt

if __name__ == "__main__":
    out = sys.argv[1]
    opts = {}
    for x in sys.argv[2:]:
        k, _, val = x.partition("=")
        if k == "kernels":
            opts[k] = val.split(",")
        else:
            opts[k] = int(val) if val.lstrip("-").isdigit() else (val or True)
    open(out, "w").write(build(opts))
    print("wrote", out)
```

```python
import re

def v(n, c=1):
    return "v%d" % n if c == 1 else "v[%d:%d]" % (n, n + c - 1)
def a(n, c=1):
    return "a%d" % n if c == 1 else "a[%d:%d]" % (n, n + c - 1)
def s(n, c=1):
    return "s%d" % n if c == 1 else "s[%d:%d]" % (n, n + c - 1)

class Asm:
    def __init__(self):
        self.L = []
    def __call__(self, *lines):
        for x in lines:
            if isinstance(x, (list, tuple)):
                self(*x)
            else:
                self.L.append(x)
    def label(self, n):
        self.L.append(n + ":")
    def c(self, text):
        self.L.append("; " + text)
    def text(self):
        out = []
        for x in self.L:
            if x.endswith(":") or x.startswith(";") or x.startswith("."):
                out.append(x)
            else:
                out.append(x)
        return "\n".join(out) + "\n"

def weave(mfmas, gaps):
    out = []
    for i, m in enumerate(mfmas):
        out.append(m)
        out.extend(gaps[i])
    return out

def spread(items, ngaps, start=0, end=None, gaps=None):
    if gaps is None:
        gaps = [[] for _ in range(ngaps)]
    if end is None:
        end = ngaps
    n = len(items)
    span = end - start
    for i, it in enumerate(items):
        g = start + (i * span) // n
        if isinstance(it, (list, tuple)):
            gaps[g].extend(it)
        else:
            gaps[g].append(it)
    return gaps

_REG = re.compile(r"^(v|a|s)(\d+)$")
_RNG = re.compile(r"^(v|a|s)\[(\d+):(\d+)\]$")

def regs_of(tok):
    tok = tok.strip()
    neg = tok.lstrip("-")
    if neg.startswith("abs(") or neg.startswith("|"):
        neg = neg.replace("abs(", "").replace(")", "").replace("|", "")
    m = _REG.match(neg)
    if m:
        return [(m.group(1), int(m.group(2)))]
    m = _RNG.match(neg)
    if m:
        return [(m.group(1), i) for i in range(int(m.group(2)), int(m.group(3)) + 1)]
    if neg == "vcc":
        return [("x", "vcc")]
    if neg == "exec":
        return [("x", "exec")]
    if neg == "m0":
        return [("x", "m0")]
    return []

def split_ops(rest):
    ops = []
    depth = 0
    cur = ""
    for ch in rest:
        if ch in "[(":
            depth += 1
        if ch in "])":
            depth -= 1
        if ch == "," and depth == 0:
            ops.append(cur.strip())
            cur = ""
        else:
            cur += ch
    if cur.strip():
        ops.append(cur.strip())
    return ops

TRANS = ("v_exp_f32", "v_log_f32", "v_rcp_f32", "v_rsq_f32", "v_sqrt_f32", "v_sin_f32", "v_cos_f32")

class Ins:
    def __init__(self, text):
        self.text = text
        t = text.split(";")[0].strip()
        parts = t.split(None, 1)
        self.op = parts[0]
        rest = parts[1] if len(parts) > 1 else ""
        ops = split_ops(rest)
        self.mods = ""
        if ops:
            last = ops[-1].split(None, 1)
            if len(last) > 1:
                ops[-1] = last[0]
                self.mods = last[1]
        self.ops = ops
        op = self.op
        self.cls = ("mfma" if op.startswith("v_mfma") else
                    "valu" if op.startswith("v_") else
                    "ds" if op.startswith("ds_") else
                    "vmem" if op.startswith("buffer_") or op.startswith("global_") else
                    "smem" if op.startswith("s_load") or op.startswith("s_mem") else
                    "salu")
        R, W = [], []
        o = ops
        if self.cls == "mfma":
            W = regs_of(o[0]); R = regs_of(o[1]) + regs_of(o[2]) + regs_of(o[3])
            self.D = regs_of(o[0]); self.A = regs_of(o[1]); self.B = regs_of(o[2]); self.C = regs_of(o[3])
            self.passes = 8 if "32x32" in op else 4
        elif self.cls == "valu":
            if op.startswith("v_cmp"):
                W = regs_of(o[0]); R = sum([regs_of(x) for x in o[1:]], [])
                if op.startswith("v_cmpx"):
                    W += [("x", "exec")]
            elif op.startswith("v_permlane32_swap") or op.startswith("v_permlane16_swap"):
                W = regs_of(o[0]) + regs_of(o[1]); R = list(W)
            elif op.startswith("v_add_co") or op.startswith("v_sub_co") or op.startswith("v_addc_co") or op.startswith("v_subb_co"):
                W = regs_of(o[0]) + regs_of(o[1]); R = sum([regs_of(x) for x in o[2:]], [])
            else:
                W = regs_of(o[0]); R = sum([regs_of(x) for x in o[1:]], [])
                if op.startswith("v_fmac") or op.startswith("v_pk_fmac") or op.startswith("v_writelane") or "_dpp" in op:
                    R += regs_of(o[0])
                if op.startswith("v_cndmask") and len(o) == 3:
                    R += [("x", "vcc")]
        elif self.cls == "ds":
            if op.startswith("ds_read") or op.startswith("ds_bpermute") or op.startswith("ds_swizzle"):
                W = regs_of(o[0]); R = sum([regs_of(x) for x in o[1:]], [])
            else:
                R = sum([regs_of(x) for x in o], [])
        elif self.cls == "vmem":
            self.lds = " lds" in (" " + self.mods) or self.mods.endswith("lds")
            if op.startswith("buffer_inv") or op.startswith("buffer_wbl2"):
                pass
            elif "load" in op and not self.lds:
                W = regs_of(o[0]); R = sum([regs_of(x) for x in o[1:]], [])
            elif "load" in op and self.lds:
                R = sum([regs_of(x) for x in o], []) + [("x", "m0")]
            elif "atomic" in op:
                R = sum([regs_of(x) for x in o], [])
                if "sc0" in self.mods:
                    W = regs_of(o[0]) if op.startswith("buffer") else regs_of(o[0])
            else:
                R = sum([regs_of(x) for x in o], [])
                if op.startswith("buffer_store"):
                    self.sdata = regs_of(o[0])
                else:
                    self.sdata = regs_of(o[1])
        elif self.cls == "smem":
            W = regs_of(o[0]); R = sum([regs_of(x) for x in o[1:]], [])
        else:
            nodst = ("s_cmp", "s_waitcnt", "s_barrier", "s_branch", "s_cbranch", "s_nop", "s_setprio", "s_bitcmp",
                     "s_endpgm", "s_sleep", "s_setreg", "s_sethalt")
            if op.startswith(nodst):
                R = sum([regs_of(x) for x in o], [])
            else:
                W = regs_of(o[0]) if o else []
                R = sum([regs_of(x) for x in o[1:]], [])
                if "saveexec" in op:
                    W += [("x", "exec")]; R += [("x", "exec")]
                if op.startswith("s_addk") or op.startswith("s_mulk") or op.startswith("s_cmov"):
                    R += regs_of(o[0])
        self.R = set(R); self.W = set(W)
        self.states = 1
        if op == "s_nop":
            self.states = int(o[0], 0) + 1

def check(lines, name="", verbose=True):
    ins = [Ins(x) for x in lines if not (x.endswith(":") or x.startswith(";") or x.startswith("."))]
    probs = []
    n = len(ins)
    def dist(i, j):
        return sum(ins[k].states for k in range(i + 1, j))
    WIN = 24
    for j, c in enumerate(ins):
        acc = 0
        for i in range(j - 1, max(-1, j - WIN - 1), -1):
            p = ins[i]
            d = acc
            need = 0; why = ""
            def req(nn, w):
                nonlocal need, why
                if nn > need:
                    need = nn; why = w
            if p.cls == "valu":
                wv = {r for r in p.W if r[0] in "va"}
                ws = {r for r in p.W if r[0] == "s" or r == ("x", "vcc")}
                if c.cls == "mfma" and (wv & c.R):
                    req(2, "VALU->MFMA operand")
                if c.cls == "valu" and c.op.startswith("v_permlane") and (wv & c.R):
                    req(2, "VALU->permlane")
                if c.cls == "valu" and (c.op.startswith("v_readfirstlane") or c.op.startswith("v_readlane")) and (wv & c.R):
                    req(1, "VALU->readlane")
                if c.cls == "valu" and "_dpp" in c.op and (wv & c.R):
                    req(2, "VALU->DPP")
                if p.op.split("_e")[0] in TRANS or p.op in TRANS:
                    if c.cls in ("valu",) and (wv & c.R) and not (c.op in TRANS):
                        req(1, "trans->VALU")
                    if c.cls == "mfma" and (wv & c.R):
                        req(2, "trans->MFMA")
                if ws:
                    if c.cls == "valu" and (ws & c.R):
                        req(2, "VALU sgpr->VALU read")
                    if c.cls == "vmem" and (ws & c.R):
                        req(5, "VALU sgpr->VMEM")
                    if c.cls == "valu" and (c.op.startswith("v_readlane") or c.op.startswith("v_writelane")) and (ws & c.R):
                        req(4, "VALU sgpr->lane select")
                if ("x", "exec") in p.W:
                    if c.cls == "mfma":
                        req(4, "VALU exec->MFMA")
            if p.cls == "mfma":
                D = set(p.D)
                tab_rd = {4: 8, 8: 12}[p.passes]
                tab_c = {4: 6, 8: 10}[p.passes]
                if c.cls == "mfma":
                    if D & (set(c.A) | set(c.B)):
                        req(tab_rd, "MFMA D->MFMA A/B")
                    if D & set(c.C):
                        if not (set(c.C) == D and c.passes == p.passes):
                            req(tab_c, "MFMA D->MFMA C overlap")
                    if (D & set(c.D)) and not (set(c.C) == D):
                        req(tab_c, "MFMA D->MFMA D WAW")
                elif c.cls in ("valu", "vmem", "ds"):
                    if D & (c.R | c.W):
                        req(tab_rd, "MFMA D->VALU/VMEM/DS")
                if c.cls == "valu" and (set(p.C) & c.W):
                    req({4: 3, 8: 7}[p.passes], "MFMA C WAR VALU write")
            if p.cls == "salu" and ("x", "m0") in p.W:
                if c.cls == "vmem" and getattr(c, "lds", False):
                    req(1, "M0->LDS DMA")
            if p.cls == "vmem" and hasattr(p, "sdata") and len(p.sdata) >= 3:
                if set(p.sdata) & c.W:
                    req(2 if c.cls == "valu" else 1, "store data WAR")
            if need > d:
                probs.append("%s HAZARD %s: need %d have %d\n    P: %s\n    C: %s" % (name, why, need, d, p.text, c.text))
            acc += p.states
            if acc > 20:
                break
    vmq = []
    lgq = []
    for j, c in enumerate(ins):
        if c.op == "s_waitcnt":
            t = c.text
            m = re.search(r"vmcnt\((\d+)\)", t)
            if m:
                k = int(m.group(1))
                while len(vmq) > k:
                    vmq.pop(0)
            m = re.search(r"lgkmcnt\((\d+)\)", t)
            if m:
                k = int(m.group(1))
                if any(x[2] for x in lgq) and k != 0:
                    probs.append("%s counted lgkmcnt with SMEM outstanding: %s" % (name, t))
                while len(lgq) > k:
                    lgq.pop(0)
            continue
        touched = c.R | c.W
        for q, nm in ((vmq, "vmcnt"), (lgq, "lgkmcnt")):
            for e in q:
                if e[0] & touched:
                    probs.append("%s WAIT missing (%s): pending %s\n    C: %s" % (name, nm, e[1], c.text))
        if c.cls == "vmem" and not c.op.startswith("buffer_inv") and not c.op.startswith("buffer_wbl2"):
            vmq.append((set(c.W), c.text))
            if len(vmq) > 63:
                probs.append("%s vmcnt overflow at %s" % (name, c.text))
        elif c.cls == "ds":
            lgq.append((set(c.W), c.text, False))
            if len(lgq) > 15:
                pass
        elif c.cls == "smem":
            lgq.append((set(c.W), c.text, True))
    if verbose:
        for p in probs[:40]:
            print(p)
        if len(probs) > 40:
            print("... %d more" % (len(probs) - 40))
    return probs


def auto_lgkm(lines, pending=None):
    q = list(pending or [])
    out = []
    for x in lines:
        if x.endswith(":") or x.startswith(";") or x.startswith("."):
            out.append(x); continue
        c = Ins(x)
        if c.op == "s_waitcnt":
            m = re.search(r"lgkmcnt\((\d+)\)", x)
            if m:
                k = int(m.group(1))
                while len(q) > k:
                    q.pop(0)
            out.append(x); continue
        touched = c.R | c.W
        need = -1
        for i, e in enumerate(q):
            if e & touched:
                need = i
        if need >= 0:
            n = len(q) - 1 - need
            n = min(n, 15)
            out.append("s_waitcnt lgkmcnt(%d)" % n)
            while len(q) > n:
                q.pop(0)
        out.append(x)
        if c.cls == "ds":
            q.append(set(c.W))
    return out, q


SCC_READ = ("s_cselect", "s_addc", "s_subb", "s_cbranch_scc", "s_cmov")
def bundles(lines):
    n = len(lines)
    glue = [False] * n
    last_scc_writer = None
    for i, x in enumerate(lines):
        op = x.split()[0]
        if op.startswith(SCC_READ):
            if last_scc_writer is not None:
                for k in range(last_scc_writer + 1, i + 1):
                    glue[k] = True
        writes_scc = op.startswith("s_") and not op.startswith(("s_mov", "s_mul_i32", "s_nop", "s_waitcnt", "s_cselect", "s_barrier"))
        if writes_scc:
            last_scc_writer = i
        if " lds" in x:
            k = i
            while k > 0 and " m0," not in lines[k - 1] and not lines[k - 1].startswith("s_mov_b32 m0"):
                k -= 1
            for q in range(k, i + 1):
                glue[q] = True
    out = []
    for i, x in enumerate(lines):
        if glue[i] and out:
            out[-1].append(x)
        else:
            out.append([x])
    return out
```

```python
from common import *

LDS_BYTES = 131072
S_ACT = 4; S_W = 8; S_WS = 12
S_WAVE = 16; S_SOA = 17; S_SOW = 18; S_WSTEP = 19; S_CNT = 20; S_M0C = 21; S_M0W = 22
S_OUT = 23; S_TN = 26; S_ROA = 27; S_ROW = 28; S_T = 29; S_OOB = 30; S_TILE = 31
S_ASTR = 56; S_WSTR = 57; S_BT = 58; S_ROW0 = 59; S_TYPE = 60; S_T0 = 61; S_T1 = 62; S_T2 = 63; S_EPI = 64
S_SCALE = 65; S_ESCALE = 66; S_HASN = 67; S_EOUT = 68; S_EEPI = 69
S_DREM = 70; S_DTILE = 71; S_ACT2 = 72; S_W2 = 76; S_WSTEP2 = 80; S_OUT2 = 81; S_EPI2 = 82; S_SCALE2 = 83; S_TYPE2 = 84

V_L16 = 1
V_AC = 2
V_AW = 4
V_VC = 12
V_VW = 20
V_T = 28
FC = [36, 100]; FW = [68, 132]
V_AW2 = 164
V_VC2 = 172
V_VW2 = 180
V_E = 188
V_TCH = 240
V_TD = 241
V_GA = 242
S_TCH = 85

def acc_idx(ktype, i, j):
    if ktype:
        return (i * 8 + j) * 4
    return (((i >> 1) * 8 + j) * 2 + (i & 1)) * 4

def frag_reads(sub, buf):
    def rc(i):
        return "ds_read_b128 %s, %s offset:%d" % (v(FC[buf] + 4 * i, 4), v(V_AC + sub), i * 2048)
    def rw(j, t):
        return "ds_read_b64_tr_b16 %s, %s offset:%d" % (v(FW[buf] + 4 * j + 2 * t, 2), v(V_AW + j), 16384 * sub + 2048 * t)
    r = [rc(0)]
    for j in range(8):
        r.append(rw(j, 0)); r.append(rw(j, 1))
    for i in range(1, 8):
        r.append(rc(i))
    return r

def dma_c(m):
    return "buffer_load_dwordx4 %s, %s, %s offen offset:%d lds" % (v(V_VC + m), s(S_ACT, 4), s(S_SOA), (m & 3) * 1024)
def dma_w(m):
    return "buffer_load_dwordx4 %s, %s, %s offen offset:%d lds" % (v(V_VW + m), s(S_W, 4), s(S_SOW), (m & 3) * 1024)

def touch_prep(wv, opts, td=None):
    td = opts.get("k1touch", 3) if td is None else td
    if wv == 0:
        return ["s_add_u32 %s, %s, %d" % (s(S_TCH), s(S_SOA), 128 * td)]
    if wv == 1:
        return ["s_mul_i32 %s, %s, %d" % (s(S_TCH), s(S_WSTEP), td), "s_add_u32 %s, %s, %s" % (s(S_TCH), s(S_TCH), s(S_SOW))]
    return []
def touch_issue(wv):
    if wv == 0:
        return ["buffer_load_dword %s, %s, %s, %s offen" % (v(V_TD), v(V_TCH), s(S_ACT, 4), s(S_TCH))]
    if wv == 1:
        return ["buffer_load_dword %s, %s, %s, %s offen" % (v(V_TD), v(V_TCH), s(S_W, 4), s(S_TCH))]
    return ["global_load_dword %s, %s, off" % (v(V_TD), v(V_GA, 2))]

def global_touch_setup(A, opts={}):
    ID = S_T0; OFF = S_T1; LO = S_T2; HI = S_TCH
    A("v_and_b32 %s, 63, v0" % v(V_T))
    A("v_lshlrev_b32 %s, 7, %s" % (v(V_T), v(V_T)))
    A("s_lshl_b32 %s, s2, 1" % s(ID))
    A("s_add_u32 %s, %s, %s" % (s(ID), s(ID), s(S_WAVE)))
    A("s_sub_u32 %s, %s, 2" % (s(ID), s(ID)))
    A("s_min_u32 %s, %s, 511" % (s(ID), s(ID)))
    rounds = [(P_WQ, 448, P_BWO, 49), (P_WO, 448, P_WO, 1), (P_AX, 224, P_BX, 224), (P_BWQKV, 147, P_BWQKV, 1)]
    for r, (p0, n0, p1, n1) in enumerate(rounds):
        A("s_sub_u32 %s, %s, %d" % (s(OFF), s(ID), n0))
        A("s_min_u32 %s, %s, %d" % (s(OFF), s(OFF), n1 - 1))
        A("s_cmp_lt_u32 %s, %d" % (s(ID), n0))
        A("s_cselect_b32 %s, %s, %s" % (s(OFF), s(ID), s(OFF)))
        A("s_cselect_b32 %s, %s, %s" % (s(LO), s(p0), s(p1)))
        A("s_cselect_b32 %s, %s, %s" % (s(HI), s(p0 + 1), s(p1 + 1)))
        A("s_lshl_b32 %s, %s, 13" % (s(OFF), s(OFF)))
        A("s_add_u32 %s, %s, %s" % (s(LO), s(LO), s(OFF)))
        A("s_addc_u32 %s, %s, 0" % (s(HI), s(HI)))
        A("v_add_co_u32 %s, vcc, %s, %s" % (v(V_GA + 2 * r), s(LO), v(V_T)))
        A("v_mov_b32 %s, %s" % (v(V_GA + 2 * r + 1), s(HI)))
        A("s_nop 0")
        A("v_addc_co_u32 %s, vcc, 0, %s, vcc" % (v(V_GA + 2 * r + 1), v(V_GA + 2 * r + 1)))

def body(first, ktype, opts, wv=0, extras=None):
    out = []
    tag = "%d_%d_%d" % (ktype, wv, 1 if first else 0)
    for sub in range(2):
        cur = sub; nxt = cur ^ 1
        mfs = []
        for i in range(8):
            for j in range(8):
                acc = a(acc_idx(ktype, i, j), 4)
                C = "0" if (first and sub == 0) else acc
                cf = v(FC[cur] + 4 * i, 4); wf = v(FW[cur] + 4 * j, 4)
                mfs.append(mf16(acc, wf, cf, C) if ktype else mf16(acc, cf, wf, C))
        gaps = [[] for _ in range(64)]
        if sub == 0:
            rd = frag_reads(1, nxt)
            for n, x in enumerate(rd):
                gaps[2 * n].append(x)
            if not first:
                d = [dma_w(3), ["s_add_u32 m0, %s, 4096" % s(S_M0W)], dma_w(4), dma_w(5), dma_w(6), dma_w(7)]
                pos = opts.get("k1p2", [3, 5, 9, 15, 21, 27])
                for x, p in zip(d, pos):
                    gaps[p] += x if isinstance(x, list) else [x]
            tp = opts.get("k1tpos", 33)
            gaps[tp - 2] += touch_prep(wv, opts)
            gaps[tp] += touch_issue(wv)
            if wv >= 2:
                for k in range(6):
                    gaps[tp + 2 + 2 * k] += ["v_mov_b32 %s, %s" % (v(V_GA + k), v(V_GA + k + 2))]
            bp = opts.get("k1barpos", 57)
            fused = opts.get("fused")
            if first and fused:
                gaps[bp] += ["s_waitcnt vmcnt(10) lgkmcnt(0)"]
            elif first:
                gaps[bp] += ["s_cmp_eq_u32 %s, 0" % s(S_TILE),
                             "s_cbranch_scc1 L_k1_fw0_%s" % tag,
                             "s_waitcnt vmcnt(33) lgkmcnt(0)",
                             "s_branch L_k1_fw1_%s" % tag,
                             "L_k1_fw0_%s:" % tag,
                             "s_waitcnt vmcnt(3) lgkmcnt(0)",
                             "L_k1_fw1_%s:" % tag]
            else:
                gaps[bp] += ["s_waitcnt vmcnt(1) lgkmcnt(0)"]
            if not opts.get("nobar"):
                gaps[bp] += ["s_barrier"]
            dl = opts.get("k1delay", 2) * wv
            while dl > 0:
                gaps[bp] += ["s_nop %d" % (min(dl, 16) - 1)]
                dl -= 16
            if fused:
                gaps[bp + 1] += ["s_add_u32 s27, s27, 128",
                                 "s_add_u32 s28, s28, %s" % s(S_WSTEP)]
                gaps[bp + 2] += ["s_sub_u32 %s, %s, 1" % (s(S_DREM), s(S_DREM)),
                                 "s_cmp_gt_i32 %s, 0" % s(S_DREM)]
                gaps[bp + 3] += ["s_cselect_b32 %s, s27, %s" % (s(S_SOA), s(S_OOB)),
                                 "s_cselect_b32 %s, s28, %s" % (s(S_SOW), s(S_OOB))]
                gaps[bp + 4] += ["s_xor_b32 %s, %s, 0x8000" % (s(S_M0C), s(S_M0C)),
                                 "s_xor_b32 %s, %s, 0x8000" % (s(S_M0W), s(S_M0W))]
                gaps[bp + 5] += ["s_mov_b32 m0, %s" % s(S_M0C)]
            else:
              gaps[bp + 1] += ["s_sub_u32 %s, %s, 1" % (s(S_DREM), s(S_DREM)),
                             "s_cmp_eq_u32 %s, 0" % s(S_DREM)]
              gaps[bp + 2] += ["s_cbranch_scc1 L_k1_swd_%s" % tag, "L_k1_swdret_%s:" % tag,
                             "s_add_u32 %s, %s, 128" % (s(S_SOA), s(S_SOA))]
              gaps[bp + 3] += ["s_add_u32 %s, %s, %s" % (s(S_SOW), s(S_SOW), s(S_WSTEP)),
                             "s_xor_b32 %s, %s, 0x8000" % (s(S_M0C), s(S_M0C))]
              gaps[bp + 4] += ["s_xor_b32 %s, %s, 0x8000" % (s(S_M0W), s(S_M0W)),
                             "s_cmp_eq_u32 %s, 1" % s(S_CNT)]
              gaps[bp + 5] += ["s_cbranch_scc1 L_k1_swa_%s" % tag, "L_k1_swaret_%s:" % tag,
                             "s_mov_b32 m0, %s" % s(S_M0C)]
        else:
            gaps[0] += ["v_xor_b32 %s, 0x8000, %s" % (v(V_AC), v(V_AC))]
            for j in range(8):
                gaps[1 + 2 * j] += ["v_xor_b32 %s, 0x8000, %s" % (v(V_AW + j), v(V_AW + j))]
            rd = frag_reads(0, nxt)
            for n, x in enumerate(rd):
                gaps[2 + 2 * n].append(x)
            gaps[17] += ["v_xor_b32 %s, 0x8000, %s" % (v(V_AC + 1), v(V_AC + 1))]
            d = [dma_c(0), dma_c(1), dma_c(2), dma_c(3), "s_add_u32 m0, %s, 4096" % s(S_M0C), dma_c(4), dma_c(5), dma_c(6), dma_c(7),
                 "s_mov_b32 m0, %s" % s(S_M0W), dma_w(0), dma_w(1), dma_w(2)]
            pos = opts.get("k1p1", [0, 6, 12, 19, 21, 25, 31, 37, 43, 45, 49, 55, 61])
            for x, p in zip(d, pos):
                gaps[p].append(x)
            gaps[62] += ["s_sub_u32 %s, %s, 1" % (s(S_CNT), s(S_CNT))]
            gaps[63] += ["s_cmp_lg_u32 %s, 0" % s(S_CNT)]
        if extras:
            if sub == 0:
                slots = [g for g in range(1, 56, 2) if g not in (31, 33)]
                mine = extras[0]
            else:
                slots = [g for g in range(3, 61, 2) if len(gaps[g]) == 0]
                mine = extras[1]
            per = -(-len(mine) // len(slots))
            k = 0
            for g in slots:
                for _ in range(per):
                    if k < len(mine):
                        gaps[g] += mine[k]; k += 1
            assert k == len(mine)
        if opts.get("nodma"):
            gaps = [[x for x in g if " lds" not in x] for g in gaps]
        if opts.get("noreads"):
            gaps = [[x for x in g if not x.startswith("ds_read")] for g in gaps]
        out.append("s_waitcnt lgkmcnt(0)")
        out += weave(mfs, gaps)
    return out

def switch_blocks(A, tag):
    A.label("L_k1_swd_%s" % tag)
    A("s_cmp_eq_u32 %s, 0" % s(S_DTILE))
    A("s_cbranch_scc0 L_k1_swd0_%s" % tag)
    A("s_cmp_eq_u32 %s, 0" % s(S_HASN))
    A("s_cbranch_scc1 L_k1_swd0_%s" % tag)
    for m in range(8):
        A("v_mov_b32 %s, %s" % (v(V_VC + m), v(V_VC2 + m)))
        A("v_mov_b32 %s, %s" % (v(V_VW + m), v(V_VW2 + m)))
    for r in range(4):
        A("s_mov_b32 %s, %s" % (s(S_ACT + r), s(S_ACT2 + r)))
        A("s_mov_b32 %s, %s" % (s(S_W + r), s(S_W2 + r)))
    A("s_mov_b32 %s, %s" % (s(S_WSTEP), s(S_WSTEP2)))
    A("s_mov_b32 %s, -128" % s(S_SOA))
    A("s_sub_u32 %s, 0, %s" % (s(S_SOW), s(S_WSTEP)))
    A("s_mov_b32 %s, 7" % s(S_DREM))
    A("s_mov_b32 %s, 1" % s(S_DTILE))
    A("s_branch L_k1_swdret_%s" % tag)
    A.label("L_k1_swd0_%s" % tag)
    A("s_mov_b32 %s, %s" % (s(S_SOA), s(S_OOB)))
    A("s_mov_b32 %s, %s" % (s(S_SOW), s(S_OOB)))
    A("s_mov_b32 %s, 0" % s(S_WSTEP))
    A("s_mov_b32 %s, 1000" % s(S_DREM))
    A("s_branch L_k1_swdret_%s" % tag)
    A.label("L_k1_swa_%s" % tag)
    for j in range(8):
        A("v_xor_b32 %s, 0x8000, %s" % (v(V_AW + j), v(V_AW2 + j)))
    A("s_branch L_k1_swaret_%s" % tag)

def tile_setup(A, second=False):
    T = V_T
    V_AW = V_AW2 if second else globals()["V_AW"]
    V_VC = V_VC2 if second else globals()["V_VC"]
    V_VW = V_VW2 if second else globals()["V_VW"]
    A("v_and_b32 %s, 63, v0" % v(T))
    A("v_lshlrev_b32 %s, 4, %s" % (v(V_L16), v(T)))
    A("v_and_b32 %s, 15, %s" % (v(T + 1), v(T)))
    A("v_lshrrev_b32 %s, 4, %s" % (v(T + 2), v(T)))
    A("v_lshrrev_b32 %s, 1, %s" % (v(T + 3), v(T + 1)))
    A("v_xor_b32 %s, %s, %s" % (v(T + 3), v(T + 3), v(T + 2)))
    A("s_lshr_b32 %s, %s, 1" % (s(S_T0), s(S_WAVE)))
    A("s_lshl_b32 %s, %s, 14" % (s(S_T0), s(S_T0)))
    A("v_lshlrev_b32 %s, 7, %s" % (v(T + 4), v(T + 1)))
    A("v_add_u32 %s, %s, %s" % (v(T + 4), s(S_T0), v(T + 4)))
    for sub in range(2):
        A("v_xor_b32 %s, %d, %s" % (v(T + 5), 4 * sub, v(T + 3)))
        A("v_lshl_add_u32 %s, %s, 4, %s" % (v(V_AC + sub), v(T + 5), v(T + 4)))
    A("v_bfe_u32 %s, %s, 2, 2" % (v(T + 3), v(T)))
    A("v_and_b32 %s, 3, %s" % (v(T + 4), v(T)))
    A("v_lshlrev_b32 %s, 3, %s" % (v(T + 4), v(T + 4)))
    A("v_lshl_add_u32 %s, %s, 3, %s" % (v(T + 1), v(T + 2), v(T + 3)))
    A("v_lshlrev_b32 %s, 9, %s" % (v(T + 1), v(T + 1)))
    A("v_add_u32 %s, 0x10000, %s" % (v(T + 1), v(T + 1)))
    A("v_and_b32 %s, 1, %s" % (v(T + 2), v(T + 2)))
    A("v_lshl_add_u32 %s, %s, 2, %s" % (v(T + 3), v(T + 2), v(T + 3)))
    A("v_lshlrev_b32 %s, 5, %s" % (v(T + 3), v(T + 3)))
    A("s_and_b32 %s, %s, 1" % (s(S_T0), s(S_WAVE)))
    A("s_cmp_eq_u32 %s, 0" % s(S_BT))
    A("s_cselect_b32 %s, 64, 56" % s(S_T1))
    A("s_mul_i32 %s, %s, %s" % (s(S_T0), s(S_T0), s(S_T1)))
    A("s_lshl_b32 %s, %s, 2" % (s(S_T0), s(S_T0)))
    for j in range(8):
        A("v_add_u32 %s, %s, %s" % (v(T + 5), s(S_T0), v(T + 4)))
        if j & 1:
            A("v_add_u32 %s, 32, %s" % (v(T + 5), v(T + 5)))
        A("v_xor_b32 %s, %s, %s" % (v(T + 5), v(T + 5), v(T + 3)))
        A("v_add_u32 %s, %s, %s" % (v(V_AW + j), v(T + 5), v(T + 1)))
        if j & 1:
            A("s_add_u32 %s, %s, %s" % (s(S_T0), s(S_T0), s(S_T1)))
    A("v_lshrrev_b32 %s, 3, %s" % (v(T + 1), v(T)))
    A("s_lshl_b32 %s, %s, 6" % (s(S_T0), s(S_WAVE)))
    A("s_add_u32 %s, %s, %s" % (s(S_T0), s(S_T0), s(S_ROW0)))
    A("v_add_u32 %s, %s, %s" % (v(T + 1), s(S_T0), v(T + 1)))
    A("v_mul_lo_u32 %s, %s, %s" % (v(T + 1), v(T + 1), s(S_ASTR)))
    A("v_and_b32 %s, 7, %s" % (v(T + 2), v(T)))
    A("v_lshrrev_b32 %s, 4, %s" % (v(T + 3), v(T)))
    A("v_xor_b32 %s, %s, %s" % (v(T + 2), v(T + 2), v(T + 3)))
    A("v_xor_b32 %s, 4, %s" % (v(T + 3), v(T + 2)))
    A("v_lshlrev_b32 %s, 4, %s" % (v(T + 2), v(T + 2)))
    A("v_lshlrev_b32 %s, 4, %s" % (v(T + 3), v(T + 3)))
    A("s_lshl_b32 %s, %s, 3" % (s(S_T1), s(S_ASTR)))
    A("s_mov_b32 %s, 0" % s(S_T0))
    for m in range(8):
        A("v_add3_u32 %s, %s, %s, %s" % (v(V_VC + m), v(T + 1), v(T + 2 + (m & 1)), s(S_T0)))
        if m < 7:
            A("s_add_u32 %s, %s, %s" % (s(S_T0), s(S_T0), s(S_T1)))
            dl = (((m + 1) & 3) - (m & 3)) * 1024
            A(("s_sub_u32 %s, %s, %d" % (s(S_T0), s(S_T0), dl)) if dl > 0 else ("s_add_u32 %s, %s, %d" % (s(S_T0), s(S_T0), -dl)))
    A("v_lshrrev_b32 %s, 5, %s" % (v(T + 1), v(T)))
    A("v_and_b32 %s, 31, %s" % (v(T + 2), v(T)))
    A("v_lshlrev_b32 %s, 1, %s" % (v(T + 3), v(T + 1)))
    A("v_xor_b32 %s, %s, %s" % (v(T + 2), v(T + 2), v(T + 3)))
    A("s_lshl_b32 %s, %s, 4" % (s(S_T0), s(S_WAVE)))
    A("v_add_u32 %s, %s, %s" % (v(T + 1), s(S_T0), v(T + 1)))
    A("v_mul_lo_u32 %s, %s, %s" % (v(T + 1), v(T + 1), s(S_WSTR)))
    A("s_lshl_b32 %s, %s, 1" % (s(S_T1), s(S_WSTR)))
    A("s_mov_b32 %s, 0" % s(S_T0))
    for m in range(8):
        x = ((m & 1) << 2) ^ (((m >> 2) & 1) << 3)
        A("v_xor_b32 %s, %d, %s" % (v(T + 3), x, v(T + 2)))
        A("v_lshlrev_b32 %s, 4, %s" % (v(T + 3), v(T + 3)))
        A("v_add3_u32 %s, %s, %s, %s" % (v(V_VW + m), v(T + 1), v(T + 3), s(S_T0)))
        if m < 7:
            A("s_add_u32 %s, %s, %s" % (s(S_T0), s(S_T0), s(S_T1)))
            dl = (((m + 1) & 3) - (m & 3)) * 1024
            A(("s_sub_u32 %s, %s, %d" % (s(S_T0), s(S_T0), dl)) if dl > 0 else ("s_add_u32 %s, %s, %d" % (s(S_T0), s(S_T0), -dl)))
    A("s_lshl_b32 %s, %s, 6" % (s(S_WSTEP2 if second else S_WSTEP), s(S_WSTR)))
    A("s_lshl_b32 %s, %s, 13" % (s(S_T0), s(S_WAVE)))

S_PM = 86
def prologue_dma0(A):
    A("s_mov_b32 %s, 0" % s(S_SOA))
    A("s_mov_b32 %s, 0" % s(S_SOW))
    A("s_add_u32 %s, %s, 32768" % (s(S_M0C), s(S_T0)))
    A("s_add_u32 %s, %s, %d" % (s(S_M0W), s(S_T0), 65536 + 32768))
    A("s_add_u32 %s, %s, %d" % (s(S_PM), s(S_T0), 32768 + 4096))
    A("s_add_u32 %s, %s, %d" % (s(S_PM + 1), s(S_T0), 65536 + 32768 + 4096))
    for g in range(2):
        A("s_add_u32 m0, %s, %d" % (s(S_T0), g * 4096))
        A("s_nop 0")
        for m in range(4):
            A(dma_c(4 * g + m))
    for g in range(2):
        A("s_add_u32 m0, %s, %d" % (s(S_T0), 65536 + g * 4096))
        A("s_nop 0")
        for m in range(4):
            A(dma_w(4 * g + m))
    A("s_mov_b32 %s, 128" % s(S_SOA))
    A("s_mov_b32 %s, %s" % (s(S_SOW), s(S_WSTEP)))
    A("s_sub_u32 %s, %s, 1" % (s(S_DREM), s(S_T)))
    A("s_mov_b32 %s, 0" % s(S_DTILE))

def prologue_dma1_items():
    it = []
    for base, f in ((S_M0C, dma_c), (S_PM, dma_c), (S_M0W, dma_w), (S_PM + 1, dma_w)):
        g = 1 if base in (S_PM, S_PM + 1) else 0
        it.append(["s_mov_b32 m0, %s" % s(base), "s_nop 0", f(4 * g)])
        for m in range(1, 4):
            it.append([f(4 * g + m)])
    return it

def insert_items(lines, items):
    out = []
    n = len(items)
    step = max(1, len(lines) // (n + 1))
    k = 0
    for idx, x in enumerate(lines):
        out.append(x)
        if (idx + 1) % step == 0 and k < n:
            out += items[k]; k += 1
    while k < n:
        out += items[k]; k += 1
    return out

def epi_offsets(kind):
    if kind == 0 or kind == 4:
        return 8 * 8192, 4 * 1024, [(n >> 2) * 8192 + (n & 3) * 1024 for n in range(32)]
    if kind == 1:
        return 4 * 16384, 8 * 1024, [(n >> 3) * 16384 + (n & 7) * 1024 for n in range(32)]
    if kind == 2:
        return 8 * 1024, 4 * 131072, [(n >> 2) * 1024 + (n & 3) * 131072 for n in range(32)]
    return 4 * 2048, 4 * 131072, [(n >> 3) * 2048 + ((n & 7) >> 1) * 131072 + (n & 1) * 1024 for n in range(32)]

def epilogue(A, kind, opts={}):
    E = V_E
    wms, wns, offs = epi_offsets(kind)
    A("s_lshr_b32 %s, %s, 1" % (s(S_T0), s(S_WAVE)))
    A("s_mul_i32 %s, %s, %d" % (s(S_T0), s(S_T0), wms))
    A("s_and_b32 %s, %s, 1" % (s(S_T1), s(S_WAVE)))
    A("s_mul_i32 %s, %s, %d" % (s(S_T1), s(S_T1), wns))
    A("s_add_u32 %s, %s, %s" % (s(S_T0), s(S_T0), s(S_T1)))
    A("s_add_u32 %s, %s, %s" % (s(S_T0), s(S_T0), s(S_EOUT)))
    if kind == 2:
        A("v_cmp_gt_u32 vcc, 768, %s" % v(V_L16))
        A("s_nop 1")
        A("v_cndmask_b32 %s, 0, -1, vcc" % v(V_T + 1))
    if kind == 3:
        A("v_and_b32 %s, 0xf0, %s" % (v(V_T), v(V_L16)))
        A("v_cmp_gt_u32 vcc, 192, %s" % v(V_T))
        A("s_nop 1")
        A("v_cndmask_b32 %s, 0, -1, vcc" % v(V_T + 1))
        A("v_cmp_eq_u32 vcc, 192, %s" % v(V_T))
        A("v_mov_b32 %s, 0x3f803f80" % v(V_T + 3))
        A("s_nop 0")
        A("v_cndmask_b32 %s, 0, %s, vcc" % (v(V_T + 2), v(V_T + 3)))
    cur = None
    for n in range(32):
        R = E + (n & 3) * 8
        P = E + 32 + (n & 3) * 4
        for r in range(8):
            A("v_accvgpr_read_b32 %s, %s" % (v(R + r), a(8 * n + r)))
        if kind in (2, 4):
            for r in range(8):
                A("v_mul_f32 %s, %s, %s" % (v(R + r), s(S_ESCALE), v(R + r)))
        for r in range(4):
            A("v_cvt_pk_bf16_f32 %s, %s, %s" % (v(P + r), v(R + 2 * r), v(R + 2 * r + 1)))
        if kind == 2:
            A("v_and_b32 %s, %s, %s" % (v(P + 2), v(V_T + 1), v(P + 2)))
            A("v_and_b32 %s, %s, %s" % (v(P + 3), v(V_T + 1), v(P + 3)))
        if kind == 3 and (n & 1):
            for r in range(4):
                A("v_and_or_b32 %s, %s, %s, %s" % (v(P + r), v(P + r), v(V_T + 1), v(V_T + 2)))
        o = offs[n]
        if cur is None or not (0 <= o - cur < 4096):
            A("s_add_u32 %s, %s, %d" % (s(S_T1), s(S_T0), o))
            cur = o
        A("buffer_store_dwordx4 %s, %s, %s, %s offen offset:%d%s" % (v(P, 4), v(V_L16), s(S_WS, 4), s(S_T1), o - cur, opts.get("stflag", "")))

def wo_transform(A):
    A("s_sub_u32 %s, s2, 176" % s(S_T0))
    A("s_lshl_b32 %s, %s, 2" % (s(S_T0), s(S_T0)))
    A("s_add_u32 %s, %s, %s" % (s(S_T0), s(S_T0), s(S_WAVE)))
    A("s_cmp_ge_u32 %s, 144" % s(S_T0))
    A("s_cbranch_scc1 L_k1_wotdone")
    A("s_cmp_ge_u32 %s, 128" % s(S_T0))
    A("s_cbranch_scc1 L_k1_wotB")
    set_srd(A, S_W, P_WO, 4096 * 448 * 2)
    A("s_mul_i32 %s, %s, %d" % (s(S_SOW), s(S_T0), 32 * 896))
    A("s_lshl_b32 %s, %s, 10" % (s(S_OUT), s(S_T0)))
    A("s_add_u32 %s, %s, %d" % (s(S_OUT), s(S_OUT), WS_WOT))
    A("s_mov_b32 %s, %d" % (s(S_T2), 131072))
    A("s_branch L_k1_wotgo")
    A.label("L_k1_wotB")
    A("s_sub_u32 %s, %s, 128" % (s(S_T0), s(S_T0)))
    set_srd(A, S_W, P_BWO, 448 * 448 * 2)
    A("s_mul_i32 %s, %s, %d" % (s(S_SOW), s(S_T0), 28 * 896))
    A("s_lshl_b32 %s, %s, 10" % (s(S_OUT), s(S_T0)))
    A("s_add_u32 %s, %s, %d" % (s(S_OUT), s(S_OUT), WS_WOBT))
    A("s_mov_b32 %s, %d" % (s(S_T2), 16384))
    A.label("L_k1_wotgo")
    A("s_mul_i32 %s, %s, 28672" % (s(S_T1), s(S_WAVE)))
    for k in range(28):
        if k % 4 == 0:
            A("s_add_u32 m0, %s, %d" % (s(S_T1), k * 1024))
            A("s_add_u32 %s, %s, %d" % (s(S_ROW), s(S_SOW), k * 1024))
        A("buffer_load_dwordx4 %s, %s, %s offen offset:%d lds" % (v(V_L16), s(S_W, 4), s(S_ROW), (k % 4) * 1024))
    T = V_T
    A("v_lshrrev_b32 %s, 4, %s" % (v(T), v(V_L16)))
    A("v_lshrrev_b32 %s, 4, %s" % (v(T + 1), v(T)))
    A("v_bfe_u32 %s, %s, 2, 2" % (v(T + 2), v(T)))
    A("v_lshl_add_u32 %s, %s, 2, %s" % (v(T + 1), v(T + 1), v(T + 2)))
    A("v_mul_u32_u24 %s, 896, %s" % (v(T + 1), v(T + 1)))
    A("v_and_b32 %s, 3, %s" % (v(T + 2), v(T)))
    A("v_lshl_add_u32 %s, %s, 3, %s" % (v(T + 1), v(T + 2), v(T + 1)))
    A("v_add_u32 %s, %s, %s" % (v(T + 1), s(S_T1), v(T + 1)))
    A("s_waitcnt vmcnt(0)")
    R = 36
    for mt in range(28):
        for t in range(2):
            A("ds_read_b64_tr_b16 %s, %s offset:%d" % (v(R + 4 * mt + 2 * t, 2), v(T + 1), t * 16 * 896 + mt * 32))
        if mt % 7 == 6:
            A("s_waitcnt lgkmcnt(0)")
    for mt in range(28):
        A("buffer_store_dwordx4 %s, %s, %s, %s offen" % (v(R + 4 * mt, 4), v(V_L16), s(S_WS, 4), s(S_OUT)))
        A("s_add_u32 %s, %s, %s" % (s(S_OUT), s(S_OUT), s(S_T2)))
    A.label("L_k1_wotdone")

def gen_k1(name, opts):
    stamps = opts.get("stamps", False)
    STAMPV[0] = 255
    A = Asm()
    A(".globl %s" % name)
    A(".p2align 8")
    A(".type %s,@function" % name)
    A.label(name)
    A("s_cmp_ge_u32 s2, 256")
    A("s_cbranch_scc1 L_k1_end")
    load_ptrs(A)
    A("v_lshrrev_b32 v1, 6, v0")
    A("s_nop 0")
    A("v_readfirstlane_b32 %s, v1" % s(S_WAVE))
    A("s_mov_b32 %s, 0x7f000000" % s(S_OOB))
    A("s_waitcnt lgkmcnt(0)")
    if stamps:
        stamp_init(A); stamp(A)
    set_srd(A, S_WS, P_WS, WS_SIZE)
    A("s_and_b32 %s, s2, 7" % s(S_T0))
    A("s_lshr_b32 %s, s2, 3" % s(S_T1))
    A("s_lshl_b32 %s, %s, 2" % (s(S_T0), s(S_T0)))
    A("s_and_b32 %s, %s, 3" % (s(S_T2), s(S_T1)))
    A("s_add_u32 %s, %s, %s" % (s(S_T0), s(S_T0), s(S_T2)))
    A("s_lshr_b32 %s, %s, 2" % (s(S_T1), s(S_T1)))
    A("s_lshl_b32 %s, %s, 8" % (s(S_ROW0), s(S_T1)))
    A("s_lshr_b32 %s, %s, 4" % (s(S_TYPE), s(S_T0)))
    A("s_and_b32 %s, %s, 15" % (s(S_T0), s(S_T0)))
    A("s_lshl_b32 %s, %s, 20" % (s(S_OUT), s(S_T0)))
    A("s_lshl_b32 %s, %s, 17" % (s(S_T1), s(S_T1)))
    A("s_add_u32 %s, %s, %s" % (s(S_OUT), s(S_OUT), s(S_T1)))
    A("s_lshl_b32 %s, %s, 24" % (s(S_T1), s(S_TYPE)))
    A("s_add_u32 %s, %s, %s" % (s(S_OUT), s(S_OUT), s(S_T1)))
    A("s_lshl_b32 %s, %s, 9" % (s(S_T0), s(S_T0)))
    set_srd(A, S_ACT, P_CKV, 2048 * 1024 * 2)
    A("s_cmp_eq_u32 %s, 0" % s(S_TYPE))
    A("s_cselect_b32 %s, %s, %s" % (s(S_T1), s(P_WUK), s(P_WUV)))
    A("s_cselect_b32 %s, %s, %s" % (s(S_T2), s(P_WUK + 1), s(P_WUV + 1)))
    A("s_add_u32 %s, %s, %s" % (s(S_W), s(S_T1), s(S_T0)))
    A("s_addc_u32 %s, %s, 0" % (s(S_W + 1), s(S_T2)))
    A("s_sub_u32 %s, %d, %s" % (s(S_W + 2), 1024 * 4096 * 2, s(S_T0)))
    A("s_mov_b32 %s, 0x20000" % s(S_W + 3))
    A("s_mov_b32 %s, 2048" % s(S_ASTR))
    A("s_mov_b32 %s, 8192" % s(S_WSTR))
    A("s_mov_b32 %s, 0" % s(S_BT))
    A("s_mov_b32 %s, 16" % s(S_T))
    A("s_mov_b32 %s, %s" % (s(S_EPI), s(S_TYPE)))
    A("s_mov_b32 %s, 0" % s(S_TILE))
    A("s_mov_b32 %s, 1.0" % s(S_SCALE))
    A("s_cmp_ge_u32 s2, 128")
    A("s_cbranch_scc1 L_k1_noflag")
    A("s_lshl_b32 %s, s2, 7" % s(S_T0))
    A("s_add_u32 %s, %s, %d" % (s(S_T0), s(S_T0), WS_FLAG))
    A("v_mov_b32 v2, 0")
    A("v_lshlrev_b32 v3, 2, v0")
    A("v_cmp_gt_u32 vcc, 32, v0")
    A("s_and_saveexec_b64 s[70:71], vcc")
    A("s_cbranch_execz L_k1_noflag2")
    A("buffer_store_dword v2, v3, %s, %s offen" % (s(S_WS, 4), s(S_T0)))
    A.label("L_k1_noflag2")
    A("s_mov_b64 exec, s[70:71]")
    A.label("L_k1_noflag")
    tile_setup(A)
    prologue_dma0(A)
    if opts.get("k1prostamp"):
        stamp(A)
    for r in range(4):
        A("s_mov_b32 %s, %s" % (s(S_ACT2 + r), s(S_ACT + r)))
        A("s_mov_b32 %s, %s" % (s(S_W2 + r), s(S_W + r)))
    A("s_mov_b32 %s, 0" % s(S_HASN))
    A("s_mov_b32 %s, 0" % s(S_TYPE2))
    A("s_mov_b32 %s, 0" % s(S_BT))
    A("s_cmp_ge_u32 s2, 176")
    A("s_cbranch_scc1 L_k1_set2done")
    A("s_mov_b32 %s, 1" % s(S_HASN))
    A("s_cmp_ge_u32 s2, 128")
    A("s_cbranch_scc1 L_k1_setB")
    A("s_and_b32 %s, s2, 7" % s(S_T0))
    A("s_lshr_b32 %s, s2, 3" % s(S_T1))
    A("s_lshl_b32 %s, %s, 1" % (s(S_T0), s(S_T0)))
    A("s_and_b32 %s, %s, 1" % (s(S_T2), s(S_T1)))
    A("s_add_u32 %s, %s, %s" % (s(S_T0), s(S_T0), s(S_T2)))
    A("s_lshr_b32 %s, %s, 1" % (s(S_T1), s(S_T1)))
    A("s_lshl_b32 %s, %s, 8" % (s(S_ROW0), s(S_T1)))
    A("s_lshl_b32 %s, %s, 20" % (s(S_OUT2), s(S_T0)))
    A("s_lshl_b32 %s, %s, 17" % (s(S_T1), s(S_T1)))
    A("s_add_u32 %s, %s, %s" % (s(S_OUT2), s(S_OUT2), s(S_T1)))
    A("s_add_u32 %s, %s, %d" % (s(S_OUT2), s(S_OUT2), WS_Q))
    A("s_lshl_b32 %s, %s, 9" % (s(S_T0), s(S_T0)))
    set_srd(A, S_ACT2, P_AX, 2048 * 448 * 2)
    set_srd(A, S_W2, P_WQ, 448 * 4096 * 2, S_T0)
    A("s_mov_b32 %s, 8192" % s(S_WSTR))
    A("s_mov_b32 %s, 4" % s(S_EPI2))
    A("s_mov_b32 %s, 0x%08x" % (s(S_SCALE2), f32bits(1.4426950408889634 / 16.0)))
    A("s_branch L_k1_setdone")
    A.label("L_k1_setB")
    A("s_sub_u32 %s, s2, 128" % s(S_T0))
    A("s_and_b32 %s, %s, 7" % (s(S_T1), s(S_T0)))
    A("s_lshr_b32 %s, %s, 3" % (s(S_T0), s(S_T0)))
    A("s_lshl_b32 %s, %s, 8" % (s(S_ROW0), s(S_T1)))
    A("s_lshr_b32 %s, %s, 2" % (s(S_TYPE2), s(S_T0)))
    A("s_lshr_b32 %s, %s, 1" % (s(S_T2), s(S_T0)))
    A("s_lshl_b32 %s, %s, 21" % (s(S_OUT2), s(S_T2)))
    A("s_and_b32 %s, %s, 1" % (s(S_T2), s(S_T0)))
    A("s_lshl_b32 %s, %s, 20" % (s(S_T2), s(S_T2)))
    A("s_add_u32 %s, %s, %s" % (s(S_OUT2), s(S_OUT2), s(S_T2)))
    A("s_lshl_b32 %s, %s, 14" % (s(S_T1), s(S_T1)))
    A("s_add_u32 %s, %s, %s" % (s(S_OUT2), s(S_OUT2), s(S_T1)))
    A("s_add_u32 %s, %s, %d" % (s(S_OUT2), s(S_OUT2), WS_BQ))
    A("s_cmp_lt_u32 %s, 2" % s(S_T0))
    A("s_cselect_b32 %s, 0x%08x, 1.0" % (s(S_SCALE2), f32bits(1.4426950408889634 / 28.0 ** 0.5)))
    A("s_mul_i32 %s, %s, 448" % (s(S_T0), s(S_T0)))
    set_srd(A, S_ACT2, P_BX, 2048 * 448 * 2)
    set_srd(A, S_W2, P_BWQKV, 448 * 1344 * 2, S_T0)
    A("s_mov_b32 %s, 2688" % s(S_WSTR))
    A("s_mov_b32 %s, 1" % s(S_BT))
    A("s_add_u32 %s, %s, 2" % (s(S_EPI2), s(S_TYPE2)))
    A.label("L_k1_setdone")
    A("s_mov_b32 %s, 896" % s(S_ASTR))
    A.label("L_k1_set2done")
    X = Asm()
    tile_setup(X, True)
    X("s_lshr_b32 %s, s2, 3" % s(S_T0))
    X("v_and_b32 %s, 63, v0" % v(V_T))
    X("s_lshl_b32 %s, %s, 6" % (s(S_T1), s(S_T0)))
    X("v_add_u32 %s, %s, %s" % (v(V_TCH), s(S_T1), v(V_T)))
    X("v_lshlrev_b32 %s, 11, %s" % (v(V_TCH), v(V_TCH)))
    X("s_lshr_b32 %s, %s, 2" % (s(S_T1), s(S_T0)))
    X("s_lshl_b32 %s, %s, 3" % (s(S_T1), s(S_T1)))
    X("v_bfe_u32 %s, %s, 2, 3" % (v(V_T + 1), v(V_T)))
    X("v_add_u32 %s, %s, %s" % (v(V_T + 1), s(S_T1), v(V_T + 1)))
    X("v_lshlrev_b32 %s, 13, %s" % (v(V_T + 1), v(V_T + 1)))
    X("v_and_b32 %s, 3, %s" % (v(V_T + 2), v(V_T)))
    X("v_lshl_add_u32 %s, %s, 7, %s" % (v(V_T + 1), v(V_T + 2), v(V_T + 1)))
    X("s_cmp_eq_u32 %s, 1" % s(S_WAVE))
    X("s_cselect_b64 vcc, -1, 0")
    X("s_nop 1")
    X("v_cndmask_b32 %s, %s, %s, vcc" % (v(V_TCH), v(V_TCH), v(V_T + 1)))
    global_touch_setup(X, opts)
    A(insert_items(X.L, prologue_dma1_items()))
    A("s_cmp_ge_u32 %s, 2" % s(S_WAVE))
    A("s_cbranch_scc1 L_k1_tchg")
    for td in (1, 2):
        A("s_cmp_eq_u32 %s, 0" % s(S_WAVE))
        A("s_cbranch_scc0 L_k1_tch1_%d" % td)
        A(touch_prep(0, opts, td)); A(touch_issue(0))
        A("s_branch L_k1_tch2_%d" % td)
        A.label("L_k1_tch1_%d" % td)
        A(touch_prep(1, opts, td)); A(touch_issue(1))
        A.label("L_k1_tch2_%d" % td)
    A("s_branch L_k1_tchd")
    A.label("L_k1_tchg")
    for r in range(2):
        A("buffer_load_dword %s, %s, %s, %s offen" % (v(V_TD), v(V_L16), s(S_ACT, 4), "0"))
    A.label("L_k1_tchd")
    if opts.get("k1prostamp"):
        stamp(A)
    A("s_waitcnt vmcnt(18)")
    if opts.get("k1prostamp"):
        stamp(A)
    A("s_barrier")
    if stamps:
        stamp(A)
    A(frag_reads(0, 0))
    A.label("L_k1_tile_go")
    A("s_mov_b32 %s, %s" % (s(S_CNT), s(S_T)))
    ncopy = 4 if opts.get("k1copies", 4) == 4 else 1
    for ktype in (1, 0):
        for wv in range(ncopy):
            if ktype == 1 and wv == 0:
                continue
            A("s_cmp_eq_u32 %s, %d" % (s(S_TYPE), 0 if ktype == 1 else 1))
            A("s_cbranch_scc0 L_k1_nx_%d_%d" % (ktype, wv))
            if ncopy == 4:
                A("s_cmp_eq_u32 %s, %d" % (s(S_WAVE), wv))
                A("s_cbranch_scc1 L_k1_go_%d_%d" % (ktype, wv))
            else:
                A("s_branch L_k1_go_%d_%d" % (ktype, wv))
            A.label("L_k1_nx_%d_%d" % (ktype, wv))
    for ktype in (1, 0):
        for wv in range(ncopy):
            A.label("L_k1_go_%d_%d" % (ktype, wv))
            b0 = body(True, ktype, opts, wv)
            b1 = body(False, ktype, opts, wv)
            A(b0)
            A(".p2align 6")
            A.label("L_k1_loop_%d_%d" % (ktype, wv))
            if opts.get("k1iterstamp"):
                stamp(A)
                A("s_mov_b32 m0, %s" % s(S_M0W))
            A(b1)
            A("s_cbranch_scc1 L_k1_loop_%d_%d" % (ktype, wv))
            if wv == 0:
                check(frag_reads(0, 0) + b0 + b1 + b1, "k1 body %d" % ktype)
            A("s_branch L_k1_done")
    A.label("L_k1_done")
    if stamps:
        stamp(A)
    A("s_mov_b32 %s, %s" % (s(S_EOUT), s(S_OUT)))
    A("s_mov_b32 %s, %s" % (s(S_EEPI), s(S_EPI)))
    A("s_mov_b32 %s, %s" % (s(S_ESCALE), s(S_SCALE)))
    A("s_cmp_eq_u32 %s, 0" % s(S_TILE))
    A("s_cselect_b32 %s, %s, 0" % (s(S_HASN), s(S_HASN)))
    A("s_cmp_eq_u32 %s, 0" % s(S_HASN))
    A("s_cbranch_scc1 L_k1_epi")
    A("s_mov_b32 m0, %s" % s(S_M0W))
    A("s_nop 0")
    A(dma_w(3))
    A("s_add_u32 m0, %s, 4096" % s(S_M0W))
    A("s_nop 0")
    for m in range(4, 8):
        A(dma_w(m))
    A.label("L_k1_epi")
    for kind in (1, 2, 3, 4):
        A("s_cmp_eq_u32 %s, %d" % (s(S_EEPI), kind))
        A("s_cbranch_scc1 L_k1_epi%d" % kind)
    for kind in range(5):
        if kind:
            A.label("L_k1_epi%d" % kind)
        E = Asm()
        epilogue(E, kind, opts)
        check(E.L, "k1 epi %d" % kind)
        A(E.L)
        if kind < 4:
            A("s_branch L_k1_epidone")
    A.label("L_k1_epidone")
    if stamps:
        stamp(A)
    A("s_cmp_eq_u32 %s, 0" % s(S_HASN))
    A("s_cbranch_scc1 L_k1_fin")
    A("s_mov_b32 %s, 1" % s(S_TILE))
    A("s_mov_b32 %s, 7" % s(S_T))
    A("s_mov_b32 %s, %s" % (s(S_TYPE), s(S_TYPE2)))
    A("s_mov_b32 %s, %s" % (s(S_OUT), s(S_OUT2)))
    A("s_mov_b32 %s, %s" % (s(S_EPI), s(S_EPI2)))
    A("s_mov_b32 %s, %s" % (s(S_SCALE), s(S_SCALE2)))
    A("s_branch L_k1_tile_go")
    A.label("L_k1_fin")
    A("s_cmp_lt_u32 s2, 176")
    A("s_cbranch_scc1 L_k1_fin2")
    A("s_waitcnt vmcnt(0) lgkmcnt(0)")
    A("s_barrier")
    X = Asm(); wo_transform(X); check(X.L, "k1 wot"); A(X.L)
    A.label("L_k1_fin2")
    if stamps:
        A("s_waitcnt vmcnt(0)")
        stamp(A)
        stamp_flush(A, S_WS, S_WAVE, 0, "L_k1_stf")
    A.label("L_k1_end")
    A("s_endpgm")
    for ktype in (1, 0):
        for wv in range(ncopy):
            for first in (1, 0):
                switch_blocks(A, "%d_%d_%d" % (ktype, wv, first))
    return A
```

```python
from common import *
import k1 as K1
import k2 as K2

LDS_BYTES = 163840
S_WS = 12; S_WAVE = 16
DW_KV = 0; DW_B1 = 16; DW_QP = 32

S_SRDX = 72; S_SRDW = 76; S_SRDB = 80; S_SRDY = 96
S_T0 = 61; S_T1 = 62; S_T2 = 63; S_T3 = 64
S_BH = 24; S_RB = 25; S_AH = 26; S_AROLE = 31; S_APAIR = 65; S_QBLK = 66; S_WB = 67; S_SO = 69
S_KVO = 71; S_XW = 84; S_SO2 = 88; S_PAR = 89; S_WOO = 90; S_WOS = 100; S_HEADKV = 101
V_L16 = 1
V_T = 28
V_XA = 176
V_WA = 4
V_XOA = 164
V_XOB = 168
V_WB = 172
V_WA2 = 48
V_XF = 56
V_WR = 96
V_ACCB = 180
V_PK = 100
V_WOA = 178
V_BQ = 244
PB_BASE = 32768
XA_BASE = 131072

class Seq:
    def __init__(self):
        self.L = []
    def __call__(self, *x):
        for e in x:
            if isinstance(e, (list, tuple)):
                self(*e)
            else:
                self.L.append((e, None))
    def vm(self, tag, ins):
        self.L.append((ins, tag))
    def wait(self, tags, extra=""):
        self.L.append(("WAIT", (tags, extra)))
    def lines(self):
        out = []; vm = []
        for ins, tag in self.L:
            if ins == "WAIT":
                tags, extra = tag
                last = -1
                for k, tg in enumerate(vm):
                    if tg in tags:
                        last = k
                n = len(vm) - 1 - last
                assert last >= 0, tags
                out.append("s_waitcnt vmcnt(%d)%s" % (min(n, 63), extra))
            else:
                out.append(ins)
                if ins.startswith("buffer_"):
                    vm.append(tag)
        return out

def lane_regs(A):
    T = V_T
    A("v_and_b32 %s, 63, v0" % v(T))
    A("v_and_b32 %s, 15, %s" % (v(T + 1), v(T)))
    A("v_lshrrev_b32 %s, 4, %s" % (v(T + 2), v(T)))
    A("v_bfe_u32 %s, %s, 2, 2" % (v(T + 3), v(T)))
    A("v_and_b32 %s, 3, %s" % (v(T + 4), v(T)))

def x_dma_offsets(A, dst, row0_sgpr):
    T = V_T
    A("s_lshl_b32 %s, %s, 5" % (s(S_T0), s(S_WAVE)))
    A("s_add_u32 %s, %s, %s" % (s(S_T0), s(S_T0), s(row0_sgpr)))
    A("v_lshrrev_b32 %s, 3, %s" % (v(T + 5), v(T)))
    A("v_add_u32 %s, %s, %s" % (v(T + 5), s(S_T0), v(T + 5)))
    A("v_mul_u32_u24 %s, 896, %s" % (v(T + 5), v(T + 5)))
    A("v_and_b32 %s, 7, %s" % (v(T + 6), v(T)))
    A("v_xor_b32 %s, %s, %s" % (v(T + 6), v(T + 6), v(T + 2)))
    for m in range(4):
        A("v_xor_b32 %s, %d, %s" % (v(T + 7), 4 * (m & 1), v(T + 6)))
        A("v_lshl_add_u32 %s, %s, 4, %s" % (v(T + 7), v(T + 7), v(T + 5)))
        A("v_add_u32 %s, %d, %s" % (v(dst + m), m * (8 * 896 - 1024), v(T + 7)))

FAKE = [0]
def setup_bc(A):
    T = V_T
    A("s_and_b32 %s, s2, 15" % s(S_BH))
    A("s_lshr_b32 %s, s2, 4" % s(S_RB))
    pc_ids(A)
    set_srd(A, S_SRDY, P_BX, 2048 * 448 * 2)
    set_srd(A, S_SRDX, P_AX, 2048 * 448 * 2)
    A("s_lshl_b32 %s, %s, 9" % (s(S_T0), s(S_AH)))
    if FAKE[0]: A("s_mov_b32 %s, 0" % s(S_T0))
    set_srd(A, S_SRDW, P_WQ, 448 * 4096 * 2, S_T0)
    A("s_lshl_b32 %s, %s, 13" % (s(S_WB), s(S_WAVE)))
    A("s_lshl_b32 %s, %s, 12" % (s(S_XW), s(S_WAVE)))
    lane_regs(A)
    A("s_lshl_b32 %s, %s, 7" % (s(S_T1), s(S_RB)))
    if FAKE[0]: A("s_mov_b32 %s, 0" % s(S_T1))
    x_dma_offsets(A, V_XOB, S_T1)
    A("s_lshl_b32 %s, %s, 7" % (s(S_T1), s(S_QBLK)))
    if FAKE[0]: A("s_mov_b32 %s, 0" % s(S_T1))
    x_dma_offsets(A, V_XOA, S_T1)
    A("v_lshrrev_b32 %s, 1, %s" % (v(T + 5), v(T + 1)))
    A("v_xor_b32 %s, %s, %s" % (v(T + 5), v(T + 5), v(T + 2)))
    A("v_lshlrev_b32 %s, 7, %s" % (v(T + 6), v(T + 1)))
    A("v_add_u32 %s, %s, %s" % (v(T + 6), s(S_XW), v(T + 6)))
    for s_ in range(2):
        A("v_xor_b32 %s, %d, %s" % (v(T + 7), 4 * s_, v(T + 5)))
        A("v_lshl_add_u32 %s, %s, 4, %s" % (v(V_XA + s_), v(T + 7), v(T + 6)))
    A("s_mul_i32 %s, %s, 56" % (s(S_T1), s(S_BH)))
    if FAKE[0]: A("s_mov_b32 %s, 0" % s(S_T1))
    A("s_and_b32 %s, %s, 8" % (s(S_PAR), s(S_T1)))
    A("s_and_b32 %s, %s, -16" % (s(S_T1), s(S_T1)))
    A("s_lshl_b32 %s, %s, 4" % (s(S_T2), s(S_WAVE)))
    for m in range(4):
        A("v_lshlrev_b32 %s, 1, %s" % (v(T + 5), v(T + 2)))
        if (m >> 1) & 1:
            A("v_xor_b32 %s, 8, %s" % (v(T + 5), v(T + 5)))
        A("v_xor_b32 %s, %s, %s" % (v(T + 5), v(T + 5), v(T + 1)))
        A("v_mul_u32_u24 %s, 52, %s" % (v(T + 6), v(T + 5)))
        A("v_lshrrev_b32 %s, 8, %s" % (v(T + 6), v(T + 6)))
        A("v_mul_u32_u24 %s, 5, %s" % (v(T + 7), v(T + 6)))
        A("v_sub_u32 %s, %s, %s" % (v(T + 7), v(T + 5), v(T + 7)))
        A("v_cmp_eq_u32 vcc, 15, %s" % v(T + 5))
        A("v_mul_u32_u24 %s, 896, %s" % (v(T + 6), v(T + 6)))
        A("v_lshl_add_u32 %s, %s, 4, %s" % (v(T + 6), v(T + 7), v(T + 6)))
        A("v_add_u32 %s, %s, %s" % (v(T + 7), s(S_T2), v(T + 2)))
        A("v_add_u32 %s, %d, %s" % (v(T + 7), 4 * m, v(T + 7)))
        A("v_mul_u32_u24 %s, 2688, %s" % (v(T + 7), v(T + 7)))
        A("v_add3_u32 %s, %s, %s, %s" % (v(T + 6), v(T + 6), v(T + 7), s(S_T1)))
        if m:
            A("v_subrev_u32 %s, %d, %s" % (v(T + 6), m * 1024, v(T + 6)))
        A("v_mov_b32 %s, 0x7f000000" % v(T + 7))
        A("v_cndmask_b32 %s, %s, %s, vcc" % (v(V_WB + m), v(T + 6), v(T + 7)))

def g_xa(Q, u):
    Q("s_add_u32 m0, %s, %d" % (s(S_XW), XA_BASE + (u % 2) * 16384), "s_mov_b32 %s, %d" % (s(S_SO2), u * 128))
    for m in range(4):
        Q.vm(("xa", u), "buffer_load_dwordx4 %s, %s, %s offen offset:%d lds" % (v(V_XOA + m), s(S_SRDX, 4), s(S_SO2), m * 1024))
def g_wq(Q, u):
    for g in range(2):
        Q("s_add_u32 m0, %s, %d" % (s(S_WB), wq_region(u) * 32768 + g * 4096), "s_mov_b32 %s, %d" % (s(S_SO), u * 64 * 8192))
        for m in range(4):
            mm = 4 * g + m
            Q.vm(("wq", u), "buffer_load_dwordx4 %s, %s, %s offen offset:%d lds" % (v(K1.V_VW + mm), s(S_SRDW, 4), s(S_SO), m * 1024))
def pb_region(u):
    return (u % 4) * 32768
def wq_region(u):
    return (u + 3) % 4
def g_pb(Q, u):
    st = pb_region(u)
    Q("s_add_u32 m0, %s, %d" % (s(S_XW), st), "s_mov_b32 %s, %d" % (s(S_SO2), u * 128))
    for m in range(4):
        Q.vm(("pb", u), "buffer_load_dwordx4 %s, %s, %s offen offset:%d lds" % (v(V_XOB + m), s(S_SRDY, 4), s(S_SO2), m * 1024))
    Q("s_add_u32 m0, %s, %d" % (s(S_XW), st + 16384), "s_mov_b32 %s, %d" % (s(S_SO2), u * 64 * 2688))
    for m in range(4):
        Q.vm(("pb", u), "buffer_load_dwordx4 %s, %s, %s offen offset:%d lds" % (v(V_WB + m), s(S_SRDB, 4), s(S_SO2), m * 1024))

def kv_drain(Q):
    for n in range(32):
        R = V_PK + (n & 1) * 12
        for r in range(8):
            Q("v_accvgpr_read_b32 %s, %s" % (v(R + r), a(8 * n + r)))
        for r in range(4):
            Q("v_cvt_pk_bf16_f32 %s, %s, %s" % (v(R + 8 + r), v(R + 2 * r), v(R + 2 * r + 1)))
        for r in range(4):
            Q("v_accvgpr_write_b32 %s, %s" % (a(4 * n + r), v(R + 8 + r)))

def kv_store(Q, n, flag):
    ok = (n >> 2) * 8192 + (n & 3) * 1024
    ov = (n >> 3) * 16384 + (n & 7) * 1024
    if ok == ov:
        Q("s_add_u32 %s, %s, %d" % (s(S_T3), s(S_KVO), ok))
    else:
        Q("s_mul_i32 %s, s60, %d" % (s(S_T3), ov - ok), "s_add_u32 %s, %s, %d" % (s(S_T3), s(S_T3), ok) if ok else "s_nop 0",
          "s_add_u32 %s, %s, %s" % (s(S_T3), s(S_T3), s(S_KVO)))
    if flag == "none":
        if n == 0:
            Q.vm(("kv", 0), "buffer_store_dwordx4 %s, %s, %s, %s offen" % (a(4 * n, 4), v(V_L16), s(S_WS, 4), s(S_T3)))
        return
    Q.vm(("kv", 0), "buffer_store_dwordx4 %s, %s, %s, %s offen%s" % (a(4 * n, 4), v(V_L16), s(S_WS, 4), s(S_T3), flag))

def kv_base(A):
    A("s_lshr_b32 %s, %s, 1" % (s(S_T0), s(S_WAVE)))
    A("s_lshl_b32 %s, %s, 16" % (s(S_T0), s(S_T0)))
    A("s_and_b32 %s, %s, 1" % (s(S_T1), s(S_WAVE)))
    A("s_cmp_eq_u32 s60, 0")
    A("s_cselect_b32 %s, 12, 13" % s(S_T2))
    A("s_lshl_b32 %s, %s, %s" % (s(S_T1), s(S_T1), s(S_T2)))
    A("s_add_u32 %s, %s, %s" % (s(S_KVO), s(S_T0), s(S_T1)))
    A("s_add_u32 %s, %s, %s" % (s(S_KVO), s(S_KVO), s(K1.S_EOUT)))

def accb(e, qt):
    return V_ACCB + (e * 2 + qt) * 4

def pb_addr(A):
    T = V_T
    lane_regs(A)
    A("v_lshl_add_u32 %s, %s, 3, %s" % (v(T + 5), v(T + 2), v(T + 3)))
    A("v_lshlrev_b32 %s, 8, %s" % (v(T + 5), v(T + 5)))
    A("v_and_b32 %s, 1, %s" % (v(T + 6), v(T + 2)))
    A("v_lshl_add_u32 %s, %s, 2, %s" % (v(T + 6), v(T + 6), v(T + 3)))
    A("v_lshlrev_b32 %s, 5, %s" % (v(T + 6), v(T + 6)))
    A("v_lshlrev_b32 %s, 3, %s" % (v(T + 4), v(T + 4)))
    A("v_add_u32 %s, %s, %s" % (v(T + 4), s(S_PAR), v(T + 4)))
    for e in range(6):
        A("v_add_u32 %s, %d, %s" % (v(T + 7), (e >> 1) * 80 + (e & 1) * 32, v(T + 4)))
        A("v_xor_b32 %s, %s, %s" % (v(T + 7), v(T + 7), v(T + 6)))
        A("v_add_u32 %s, %s, %s" % (v(V_WA + e), v(T + 7), v(T + 5)))

def pb_compute(Q, stores, flag):
    for u in range(7):
        st = pb_region(u)
        Q.wait([("pb", u)])
        Q("s_barrier")
        if u >= 1 and u + 3 <= 6:
            g_pb(Q, u + 3)
        if u >= 4:
            g_wq(Q, u - 4)
        L = []
        hi = st >= 65536
        xo = st; wo = st + 16384
        def lds(reg, off):
            return reg, off
        if u == 0:
            cur = 0
        rds = []
        for s_ in range(2):
            for qt in range(2):
                rds.append(("x", s_, qt))
            for e in range(6):
                rds.append(("w", s_, e))
        delta = st - pb_compute.base
        if delta:
            for r in list(range(V_XA, V_XA + 2)) + list(range(V_WA, V_WA + 6)):
                L.append("v_add_u32 %s, %d, %s" % (v(r), delta & 0xffffffff, v(r)))
            pb_compute.base = st
        for s_ in range(2):
            for qt in range(2):
                L.append("ds_read_b128 %s, %s offset:%d" % (v(V_XF + (s_ * 2 + qt) * 4, 4), v(V_XA + s_), qt * 2048))
            for e in range(6):
                b = V_WR + (s_ * 6 + e) * 4
                for t in range(2):
                    L.append("ds_read_b64_tr_b16 %s, %s offset:%d" % (v(b + 2 * t, 2), v(V_WA + e), 16384 + s_ * 8192 + t * 1024))
        for s_ in range(2):
            for e in range(6):
                wf = v(V_WR + (s_ * 6 + e) * 4, 4)
                for qt in range(2):
                    acc = v(accb(e, qt), 4)
                    xf = v(V_XF + (s_ * 2 + qt) * 4, 4)
                    C = "0" if (u == 0 and s_ == 0) else acc
                    L.append(mf16(acc, wf, xf, C) if e < 4 else mf16(acc, xf, wf, C))
        L, _ = auto_lgkm(L)
        Q(L)
        for _ in range(3):
            if stores:
                kv_store(Q, stores.pop(0), flag)

def pb_out(Q):
    T = V_T
    P = V_PK
    Q("s_nop 7")
    Q("v_cmp_gt_u32 vcc, 768, %s" % v(V_L16))
    Q("s_mov_b32 %s, 0x%08x" % (s(S_T0), f32bits(1.4426950408889634 / 28.0 ** 0.5)))
    Q("v_mov_b32 %s, %s" % (v(T), s(S_T0)))
    Q("v_cndmask_b32 %s, 0, %s, vcc" % (v(T + 1), v(T)))
    for qt in range(2):
        for dt in range(2):
            for r in range(4):
                Q("v_mul_f32 %s, %s, %s" % (v(P + dt * 4 + r), v(accb(dt, qt) + r), v(T + dt)))
        for h in range(4):
            Q("v_cvt_pk_bf16_f32 %s, %s, %s" % (v(V_BQ + qt * 4 + h), v(P + 2 * h), v(P + 2 * h + 1)))
    Q("s_lshl_b32 %s, %s, 17" % (s(S_T0), s(S_BH)))
    Q("s_lshl_b32 %s, %s, 2" % (s(S_T1), s(S_RB)))
    Q("s_add_u32 %s, %s, %s" % (s(S_T1), s(S_T1), s(S_WAVE)))
    Q("s_lshl_b32 %s, %s, 11" % (s(S_T1), s(S_T1)))
    Q("s_add_u32 %s, %s, %s" % (s(S_T0), s(S_T0), s(S_T1)))
    Q("s_add_u32 %s, %s, %d" % (s(S_T1), s(S_T0), WS_BK))
    Q("s_add_u32 %s, %s, %d" % (s(S_T2), s(S_T0), WS_BV))
    R = P + 8
    for qt in range(2):
        for h in range(4):
            src = accb(2 + (h >> 1), qt) + 2 * (h & 1)
            Q("v_cvt_pk_bf16_f32 %s, %s, %s" % (v(R + qt * 4 + h), v(src), v(src + 1)))
        Q.vm(("bst", 0), "buffer_store_dwordx4 %s, %s, %s, %s offen offset:%d sc1" % (v(R + qt * 4, 4), v(V_L16), s(S_WS, 4), s(S_T1), qt * 1024))
    for dt in range(2):
        for h in range(4):
            src = accb(4 + dt, h >> 1) + 2 * (h & 1)
            Q("v_cvt_pk_bf16_f32 %s, %s, %s" % (v(R + 8 + dt * 4 + h), v(src), v(src + 1)))
        Q.vm(("bst", 0), "buffer_store_dwordx4 %s, %s, %s, %s offen offset:%d sc1" % (v(R + 8 + dt * 4, 4), v(V_L16), s(S_WS, 4), s(S_T2), dt * 1024))

def pc_ids(A):
    A("s_and_b32 %s, s2, 7" % s(S_T0))
    A("s_lshr_b32 %s, s2, 3" % s(S_T1))
    A("s_lshl_b32 %s, %s, 1" % (s(S_AH), s(S_T0)))
    A("s_and_b32 %s, %s, 1" % (s(S_T2), s(S_T1)))
    A("s_add_u32 %s, %s, %s" % (s(S_AH), s(S_AH), s(S_T2)))
    A("s_lshr_b32 %s, %s, 1" % (s(S_T1), s(S_T1)))
    A("s_and_b32 %s, %s, 1" % (s(S_AROLE), s(S_T1)))
    A("s_lshr_b32 %s, %s, 1" % (s(S_APAIR), s(S_T1)))
    A("s_sub_u32 %s, 15, %s" % (s(S_T0), s(S_APAIR)))
    A("s_cmp_eq_u32 %s, 0" % s(S_AROLE))
    A("s_cselect_b32 %s, %s, %s" % (s(S_QBLK), s(S_T0), s(S_APAIR)))

def pc_addr(A):
    T = V_T
    lane_regs(A)
    A("v_lshl_add_u32 %s, %s, 3, %s" % (v(T + 5), v(T + 2), v(T + 3)))
    A("v_lshlrev_b32 %s, 9, %s" % (v(T + 5), v(T + 5)))
    A("v_lshl_add_u32 %s, %s, 3, %s" % (v(T + 5), v(T + 4), v(T + 5)))
    A("v_and_b32 %s, 1, %s" % (v(T + 6), v(T + 2)))
    A("v_lshl_add_u32 %s, %s, 2, %s" % (v(T + 6), v(T + 6), v(T + 3)))
    for j in range(8):
        A("v_xor_b32 %s, %d, %s" % (v(T + 7), j, v(T + 6)))
        A("v_lshl_add_u32 %s, %s, 5, %s" % (v(V_WA + j), v(T + 7), v(T + 5)))
        A("v_add_u32 %s, 0x10000, %s" % (v(V_WA2 + j), v(V_WA + j)))
    for s_ in range(2):
        A("v_add_u32 %s, %d, %s" % (v(V_XA + s_), (XA_BASE - pb_compute.base) & 0xffffffff, v(V_XA + s_)))

def accq(dt, qt):
    return 128 + ((dt >> 1) * 2 + qt) * 8 + (dt & 1) * 4

def pc_compute(Q, stores, flag, hooks):
    RING = 16; D = 10; LATE = 3
    NF = 7 * 32
    def rd(n):
        u, r_ = divmod(n, 32); s_, dt = divmod(r_, 16)
        b = V_WR + (n % RING) * 4
        reg = wq_region(u)
        areg = (V_WA2 if reg >= 2 else V_WA) + (dt & 7)
        off = (reg % 2) * 32768 + s_ * 16384 + (dt >> 3) * 256
        return ["ds_read_b64_tr_b16 %s, %s offset:%d" % (v(b + 2 * t, 2), v(areg), off + t * 2048) for t in range(2)]
    def xrd(u):
        return ["ds_read_b128 %s, %s offset:%d" % (v(V_XF + ((u & 1) * 4 + s_ * 2 + qt) * 4, 4), v(V_XA + s_), (u % 2) * 16384 + qt * 2048)
                for s_ in range(2) for qt in range(2)]
    Q.wait([("wq", 0), ("xa", 0)])
    Q("s_barrier")
    if 0 in hooks: hooks[0](Q)
    Q(xrd(0))
    nread = 0
    for n in range(D):
        Q(rd(n)); nread += 1
    pend = []
    opened = 0
    for n in range(NF):
        u, r_ = divmod(n, 32); s_, dt = divmod(r_, 16)
        wf = v(V_WR + (n % RING) * 4, 4)
        m = []
        for qt in range(2):
            acc = a(accq(dt, qt), 4)
            xf = v(V_XF + ((u & 1) * 4 + s_ * 2 + qt) * 4, 4)
            m.append(mf16(acc, wf, xf, "0" if (u == 0 and s_ == 0) else acc))
        un = opened + 1
        if un <= 6 and n == 32 * un - D + LATE:
            if ("pre", un) in hooks: hooks[("pre", un)](Q)
            Q.wait([("wq", un), ("xa", un)], " lgkmcnt(0)")
            Q("s_barrier")
            opened = un
            if un in hooks: hooks[un](Q)
            Q(xrd(un))
            if un + 3 <= 6:
                P = Seq(); g_wq(P, un + 3); pend += P.L
        if r_ == 2 and u + 2 <= 6:
            P = Seq(); g_xa(P, u + 2); pend += P.L
            for _ in range(4):
                if stores:
                    P = Seq(); kv_store(P, stores.pop(0), flag); pend += P.L
        if ("at", n) in hooks: hooks[("at", n)](Q)
        nx = []
        lim = min(NF, 32 * (opened + 1), n + D + 1)
        k = 0
        while nread < lim and k < 2:
            nx += rd(nread); nread += 1; k += 1
        half = (len(nx) + 1) // 2
        Q(m[0]); Q(nx[:half])
        if pend and (n % 2 == 0):
            take = 1
            while take < len(pend) and pend[take - 1][1] is None:
                take += 1
            Q.L += pend[:take]; pend = pend[take:]
        Q(m[1]); Q(nx[half:])
    assert not pend, pend
    assert nread == NF

B2_LDS = 114688
def b2_dma(Q):
    T0 = S_T0; T1 = S_T1; T2 = S_T2; T3 = S_T3
    Q("s_lshl_b32 %s, %s, 3" % (s(T0), s(S_RB)), "s_mul_i32 %s, %s, 6" % (s(T1), s(S_WAVE)),
      "s_add_i32 %s, %s, %s" % (s(T0), s(T0), s(T1)), "s_sub_i32 %s, %s, 16" % (s(T0), s(T0)),
      "s_lshl_b32 %s, %s, 17" % (s(T2), s(S_BH)), "s_mul_i32 %s, %s, 6144" % (s(S_SO), s(S_WAVE)))
    for k in range(6):
        Q("s_add_i32 %s, %s, %d" % (s(T1), s(T0), k), "s_max_i32 %s, %s, 0" % (s(T3), s(T1)),
          "s_lshl_b32 %s, %s, 10" % (s(T3), s(T3)), "s_add_u32 %s, %s, %s" % (s(T3), s(T3), s(T2)),
          "s_cmp_ge_i32 %s, 0" % s(T1), "s_cselect_b32 %s, %s, %s" % (s(T3), s(T3), s(K1.S_OOB)),
          "s_add_u32 m0, %s, %d" % (s(S_SO), B2_LDS + k * 1024), "s_add_u32 %s, %s, %d" % (s(T1), s(T3), WS_BK))
        Q.vm(("b2", 0), "buffer_load_dwordx4 %s, %s, %s offen sc1 lds" % (v(V_L16), s(S_WS, 4), s(T1)))
        Q("s_add_u32 m0, %s, %d" % (s(S_SO), B2_LDS + 24576 + k * 1024), "s_add_u32 %s, %s, %d" % (s(T1), s(T3), WS_BV))
        Q.vm(("b2", 0), "buffer_load_dwordx4 %s, %s, %s offen sc1 lds" % (v(V_L16), s(S_WS, 4), s(T1)))

def seq_finalize(Q):
    lines = [x[1:] if x.startswith("Xbuffer_") else x for x in Q.lines()]
    lines, _ = auto_lgkm(lines)
    return lines

def pc_out(Q):
    P = V_PK
    Q("s_nop 7")
    Q("s_mov_b32 %s, 0x%08x" % (s(S_T3), f32bits(1.4426950408889634 / 16.0)))
    Q("s_lshl_b32 %s, %s, 3" % (s(S_T0), s(S_QBLK)))
    Q("s_lshl_b32 %s, %s, 1" % (s(S_T1), s(S_WAVE)))
    Q("s_add_u32 %s, %s, %s" % (s(S_T0), s(S_T0), s(S_T1)))
    Q("s_lshl_b32 %s, %s, 13" % (s(S_T0), s(S_T0)))
    Q("s_lshl_b32 %s, %s, 20" % (s(S_T1), s(S_AH)))
    Q("s_add_u32 %s, %s, %s" % (s(S_T0), s(S_T0), s(S_T1)))
    Q("s_add_u32 %s, %s, %d" % (s(S_T0), s(S_T0), WS_Q))
    Q("s_cmp_eq_u32 %s, 0" % s(S_AROLE))
    Q("s_cselect_b32 %s, %s, 0x7f000000" % (s(S_T0), s(S_T0)))
    k = 0
    for qt in range(2):
        for f in range(8):
            R = P + (k & 1) * 12
            for r in range(8):
                Q("v_accvgpr_read_b32 %s, %s" % (v(R + r), a(128 + (f * 2 + qt) * 8 + r)))
            for r in range(8):
                Q("v_mul_f32 %s, %s, %s" % (v(R + r), s(S_T3), v(R + r)))
            for h in range(4):
                Q("v_cvt_pk_bf16_f32 %s, %s, %s" % (v(R + 8 + h), v(R + 2 * h), v(R + 2 * h + 1)))
            for h in range(4):
                Q("v_accvgpr_write_b32 %s, %s" % (a((qt * 8 + f) * 4 + h), v(R + 8 + h)))
            if f % 4 == 0:
                Q("s_add_u32 %s, %s, %d" % (s(S_T1), s(S_T0), qt * 8192 + f * 1024))
            Q.vm(("qst", 0), "buffer_store_dwordx4 %s, %s, %s, %s offen offset:%d sc1" % (v(R + 8, 4), v(V_L16), s(S_WS, 4), s(S_T1), (f % 4) * 1024))
            k += 1

def dbg_atomic(A, op, word_sgpr_or_imm, data_sgpr_or_imm, lbl, vt=28):
    A("s_cmp_lg_u32 %s, 0" % s(S_WAVE))
    A("s_cbranch_scc1 %s" % lbl)
    A("v_mov_b32 %s, %s" % (v(vt), word_sgpr_or_imm))
    A("v_mov_b32 %s, %s" % (v(vt + 1), data_sgpr_or_imm))
    A("s_mov_b64 exec, 1")
    A("global_atomic_%s %s, %s, %s sc1" % (op, v(vt), v(vt + 1), s(P_DBG, 2)))
    A("s_mov_b64 exec, -1")
    A.label(lbl)

WO_LDS = 131072
def wo_issue(A):
    T = V_T
    SRD = S_SRDB
    A("s_cmp_ge_u32 s2, 128")
    A("s_cselect_b32 %s, %s, %s" % (s(SRD), s(P_BWO), s(P_WO)))
    A("s_cselect_b32 %s, %s, %s" % (s(SRD + 1), s(P_BWO + 1), s(P_WO + 1)))
    A("s_mov_b32 %s, %d" % (s(S_T1), 448 * 448 * 2))
    A("s_cselect_b32 %s, %s, %d" % (s(SRD + 2), s(S_T1), 4096 * 448 * 2))
    A("s_mov_b32 %s, 0x20000" % s(SRD + 3))
    A("s_sub_u32 %s, s2, 128" % s(S_T0))
    A("s_cselect_b32 %s, %s, %s" % (s(S_T0), s(S_T0), s(S_T0)))
    A("s_cmp_ge_u32 s2, 128")
    A("s_cselect_b32 %s, %s, s2" % (s(S_T0), s(S_T0)))
    A("s_cselect_b32 %s, %d, %d" % (s(S_T1), 28, 32))
    A("s_mul_i32 %s, %s, %s" % (s(S_T1), s(S_T1), s(S_T0)))
    A("s_mul_i32 %s, %s, 896" % (s(S_T1), s(S_T1)))
    A("s_lshl_b32 %s, %s, 10" % (s(S_WOO), s(S_T0)))
    A("s_cmp_ge_u32 s2, 128")
    A("s_mov_b32 %s, %d" % (s(S_T2), WS_WOBT))
    A("s_cselect_b32 %s, %s, %d" % (s(S_T2), s(S_T2), WS_WOT))
    A("s_add_u32 %s, %s, %s" % (s(S_WOO), s(S_WOO), s(S_T2)))
    A("s_cmp_ge_u32 s2, 128")
    A("s_mov_b32 %s, 16384" % s(S_T2))
    A("s_cselect_b32 %s, %s, 131072" % (s(S_WOS), s(S_T2)))
    A("s_cmp_ge_u32 s2, 144")
    A("s_cselect_b32 %s, %s, %s" % (s(S_T1), s(K1.S_OOB), s(S_T1)))
    A("s_cselect_b32 %s, %s, %s" % (s(S_WOO), s(K1.S_OOB), s(S_WOO)))
    A("s_cselect_b32 %s, 0, %s" % (s(S_WOS), s(S_WOS)))
    A("s_mul_i32 %s, %s, 7168" % (s(S_T2), s(S_WAVE)))
    A("s_add_u32 %s, %s, %s" % (s(S_T1), s(S_T1), s(S_T2)))
    A("s_add_u32 %s, %s, %d" % (s(S_T2), s(S_T2), WO_LDS))
    for k in range(7):
        A("s_add_u32 m0, %s, %d" % (s(S_T2), k * 1024))
        A("s_add_u32 %s, %s, %d" % (s(S_T0), s(S_T1), k * 1024))
        A("buffer_load_dwordx4 %s, %s, %s offen lds" % (v(V_L16), s(SRD, 4), s(S_T0)))
    lane_regs(A)
    A("v_lshl_add_u32 %s, %s, 2, %s" % (v(T + 5), v(T + 2), v(T + 3)))
    A("v_mul_u32_u24 %s, 896, %s" % (v(T + 5), v(T + 5)))
    A("v_lshl_add_u32 %s, %s, 3, %s" % (v(T + 5), v(T + 4), v(T + 5)))
    A("s_mul_i32 %s, %s, %d" % (s(S_T1), s(S_WAVE), 7 * 32))
    A("s_add_u32 %s, %s, %d" % (s(S_T1), s(S_T1), WO_LDS))
    A("v_add_u32 %s, %s, %s" % (v(V_WOA), s(S_T1), v(T + 5)))

def wo_reads():
    R = 36
    return ["ds_read_b64_tr_b16 %s, %s offset:%d" % (v(R + 4 * mt + 2 * t, 2), v(V_WOA), t * 16 * 896 + mt * 32) for mt in range(7) for t in range(2)]
def wo_stores(Q):
    R = 36
    Q("s_mul_i32 %s, %s, 7" % (s(S_T1), s(S_WAVE)), "s_mul_i32 %s, %s, %s" % (s(S_T1), s(S_T1), s(S_WOS)),
      "s_add_u32 %s, %s, %s" % (s(S_T0), s(S_WOO), s(S_T1)))
    for mt in range(7):
        Q.vm(("wo", 0), "buffer_store_dwordx4 %s, %s, %s, %s offen sc1" % (v(R + 4 * mt, 4), v(V_L16), s(S_WS, 4), s(S_T0)))
        Q("s_add_u32 %s, %s, %s" % (s(S_T0), s(S_T0), s(S_WOS)))

def gen_k12(name, opts):
    opts = dict(opts); opts["fused"] = 1
    FAKE[0] = opts.get("fake", 0)
    stamps = opts.get("stamps", False)
    STAMPV[0] = 255
    A = Asm()
    k = K1
    A(".globl %s" % name); A(".p2align 8"); A(".type %s,@function" % name); A.label(name)
    A("s_cmp_ge_u32 s2, 256")
    A("s_cbranch_scc1 L_f_end")
    load_ptrs(A)
    A("v_lshrrev_b32 v1, 6, v0")
    A("s_nop 0")
    A("v_readfirstlane_b32 %s, v1" % s(S_WAVE))
    A("s_mov_b32 %s, 0x7f000000" % s(k.S_OOB))
    A("s_waitcnt lgkmcnt(0)")
    if stamps:
        stamp_init(A); stamp(A)
    set_srd(A, S_WS, P_WS, WS_SIZE)
    S = k
    A("s_and_b32 %s, s2, 7" % s(S.S_T0))
    A("s_lshr_b32 %s, s2, 3" % s(S.S_T1))
    A("s_lshl_b32 %s, %s, 2" % (s(S.S_T0), s(S.S_T0)))
    A("s_and_b32 %s, %s, 3" % (s(S.S_T2), s(S.S_T1)))
    A("s_add_u32 %s, %s, %s" % (s(S.S_T0), s(S.S_T0), s(S.S_T2)))
    A("s_lshr_b32 %s, %s, 2" % (s(S.S_T1), s(S.S_T1)))
    A("s_lshl_b32 %s, %s, 8" % (s(S.S_ROW0), s(S.S_T1)))
    A("s_lshr_b32 %s, %s, 4" % (s(S.S_TYPE), s(S.S_T0)))
    A("s_and_b32 %s, %s, 15" % (s(S.S_T0), s(S.S_T0)))
    A("s_mov_b32 %s, %s" % (s(S_HEADKV), s(S.S_T0)))
    A("s_lshl_b32 %s, %s, 20" % (s(S.S_EOUT), s(S.S_T0)))
    A("s_lshl_b32 %s, %s, 17" % (s(S.S_T1), s(S.S_T1)))
    A("s_add_u32 %s, %s, %s" % (s(S.S_EOUT), s(S.S_EOUT), s(S.S_T1)))
    A("s_lshl_b32 %s, %s, 24" % (s(S.S_T1), s(S.S_TYPE)))
    A("s_add_u32 %s, %s, %s" % (s(S.S_EOUT), s(S.S_EOUT), s(S.S_T1)))
    A("s_lshl_b32 %s, %s, 9" % (s(S.S_T0), s(S.S_T0)))
    set_srd(A, S.S_ACT, P_CKV, 2048 * 1024 * 2)
    A("s_cmp_eq_u32 %s, 0" % s(S.S_TYPE))
    A("s_cselect_b32 %s, %s, %s" % (s(S.S_T1), s(P_WUK), s(P_WUV)))
    A("s_cselect_b32 %s, %s, %s" % (s(S.S_T2), s(P_WUK + 1), s(P_WUV + 1)))
    A("s_add_u32 %s, %s, %s" % (s(S.S_W), s(S.S_T1), s(S.S_T0)))
    A("s_addc_u32 %s, %s, 0" % (s(S.S_W + 1), s(S.S_T2)))
    A("s_sub_u32 %s, %d, %s" % (s(S.S_W + 2), 1024 * 4096 * 2, s(S.S_T0)))
    A("s_mov_b32 %s, 0x20000" % s(S.S_W + 3))
    A("s_mov_b32 %s, 2048" % s(S.S_ASTR))
    A("s_mov_b32 %s, 8192" % s(S.S_WSTR))
    A("s_mov_b32 %s, 0" % s(S.S_BT))
    A("s_mov_b32 %s, 16" % s(S.S_T))
    k.tile_setup(A)
    k.prologue_dma0(A)
    A("s_mov_b32 s27, 128")
    A("s_mov_b32 s28, %s" % s(S.S_WSTEP))
    X = Asm()
    X("s_lshr_b32 %s, s2, 3" % s(S.S_T0))
    X("v_and_b32 %s, 63, v0" % v(k.V_T))
    X("s_lshl_b32 %s, %s, 6" % (s(S.S_T1), s(S.S_T0)))
    X("v_add_u32 %s, %s, %s" % (v(k.V_TCH), s(S.S_T1), v(k.V_T)))
    X("v_lshlrev_b32 %s, 11, %s" % (v(k.V_TCH), v(k.V_TCH)))
    X("s_lshr_b32 %s, %s, 2" % (s(S.S_T1), s(S.S_T0)))
    X("s_lshl_b32 %s, %s, 3" % (s(S.S_T1), s(S.S_T1)))
    X("v_bfe_u32 %s, %s, 2, 3" % (v(k.V_T + 1), v(k.V_T)))
    X("v_add_u32 %s, %s, %s" % (v(k.V_T + 1), s(S.S_T1), v(k.V_T + 1)))
    X("v_lshlrev_b32 %s, 13, %s" % (v(k.V_T + 1), v(k.V_T + 1)))
    X("v_and_b32 %s, 3, %s" % (v(k.V_T + 2), v(k.V_T)))
    X("v_lshl_add_u32 %s, %s, 7, %s" % (v(k.V_T + 1), v(k.V_T + 2), v(k.V_T + 1)))
    X("s_cmp_eq_u32 %s, 1" % s(S_WAVE))
    X("s_cselect_b64 vcc, -1, 0")
    X("s_nop 1")
    X("v_cndmask_b32 %s, %s, %s, vcc" % (v(k.V_TCH), v(k.V_TCH), v(k.V_T + 1)))
    k.global_touch_setup(X, opts)
    A(k.insert_items(X.L, k.prologue_dma1_items()))
    E0 = Asm(); wo_issue(E0); set_srd(E0, S_SRDB, P_BWQKV, 448 * 1344 * 2)
    E1 = Asm(); setup_bc(E1)
    check(E0.L + E1.L, "deferred setup")
    extras = (bundles(E0.L), bundles(E1.L))
    A("s_cmp_ge_u32 %s, 2" % s(S_WAVE))
    A("s_cbranch_scc1 L_f_tchg")
    for td in (1, 2):
        A("s_cmp_eq_u32 %s, 0" % s(S_WAVE))
        A("s_cbranch_scc0 L_f_tch1_%d" % td)
        A(k.touch_prep(0, opts, td)); A(k.touch_issue(0))
        A("s_branch L_f_tch2_%d" % td)
        A.label("L_f_tch1_%d" % td)
        A(k.touch_prep(1, opts, td)); A(k.touch_issue(1))
        A.label("L_f_tch2_%d" % td)
    A("s_branch L_f_tchd")
    A.label("L_f_tchg")
    for r in range(2):
        A("buffer_load_dword %s, %s, %s, 0 offen" % (v(k.V_TD), v(V_L16), s(S.S_ACT, 4)))
    A.label("L_f_tchd")
    A("s_cmp_lg_u32 %s, 0" % s(S_WAVE))
    A("s_cbranch_scc1 L_f_tok0")
    A("s_memrealtime s[62:63]")
    A("s_waitcnt lgkmcnt(0)")
    A("s_or_b32 s62, s62, 1")
    A("v_mov_b32 v252, s62")
    A("v_mov_b32 v253, 0")
    A("v_mov_b32 v254, 0")
    A("s_mov_b64 exec, 1")
    A("global_atomic_cmpswap v251, v254, v[252:253], %s sc0 sc1" % s(P_DBG, 2))
    A("s_mov_b64 exec, -1")
    A.label("L_f_tok0")
    A("s_waitcnt vmcnt(18)")
    A("s_barrier")
    if stamps: stamp(A)
    A(k.frag_reads(0, 0))
    A("s_mov_b32 %s, %s" % (s(S.S_CNT), s(S.S_T)))
    for ktype in (1, 0):
        for wv in range(4):
            if ktype == 1 and wv == 0:
                continue
            A("s_cmp_eq_u32 %s, %d" % (s(S.S_TYPE), 0 if ktype == 1 else 1))
            A("s_cbranch_scc0 L_f_nx_%d_%d" % (ktype, wv))
            A("s_cmp_eq_u32 %s, %d" % (s(S_WAVE), wv))
            A("s_cbranch_scc1 L_f_go_%d_%d" % (ktype, wv))
            A.label("L_f_nx_%d_%d" % (ktype, wv))
    for ktype in (1, 0):
        for wv in range(4):
            A.label("L_f_go_%d_%d" % (ktype, wv))
            b0 = k.body(True, ktype, opts, wv, extras); b1 = k.body(False, ktype, opts, wv)
            A(b0)
            A(".p2align 6")
            A.label("L_f_loop_%d_%d" % (ktype, wv))
            A(b1)
            A("s_cbranch_scc1 L_f_loop_%d_%d" % (ktype, wv))
            A("s_branch L_f_kvdone")
    A.label("L_f_kvdone")
    if stamps: stamp(A)
    A("s_waitcnt vmcnt(0) lgkmcnt(0)")
    A("s_cmp_lg_u32 %s, 0" % s(S_WAVE))
    A("s_cbranch_scc1 L_f_tok1")
    A("v_cmp_eq_u32 vcc, 0, v251")
    A("v_mov_b32 v254, %d" % (LDS_BYTES - 4))
    A("s_nop 0")
    A("v_cndmask_b32 v251, v251, v252, vcc")
    A("s_mov_b64 exec, 1")
    A("ds_write_b32 v254, v251")
    A("s_mov_b64 exec, -1")
    A("s_waitcnt lgkmcnt(0)")
    A.label("L_f_tok1")
    A("s_barrier")
    A("v_mov_b32 v254, %d" % (LDS_BYTES - 4))
    A("ds_read_b32 v251, v254")
    A("s_waitcnt lgkmcnt(0)")
    A("v_readfirstlane_b32 %s, v251" % s(S_TOKEN))
    flag = opts.get("kvst", " sc1")
    X = Asm(); kv_base(X); A(X.L)
    Q = Seq()
    Q(wo_reads())
    Q("s_waitcnt lgkmcnt(0)")
    Q("s_barrier")
    D = Seq()
    for u in range(4):
        g_pb(D, u)
    g_xa(D, 0); g_xa(D, 1)
    wo_stores(D)
    R_ = Seq(); kv_drain(R_)
    items = []; cur = []
    for e in D.L:
        cur.append(e)
        if e[1] is not None:
            items.append(cur); cur = []
    step = len(R_.L) // (len(items) + 1)
    for kx, it in enumerate(items):
        Q.L += R_.L[kx * step:(kx + 1) * step] + it
    Q.L += R_.L[len(items) * step:]
    if stamps:
        T_ = Asm(); stamp(T_); Q(T_.L)
    X = Asm(); pb_addr(X); Q(X.L)
    pb_compute.base = 0
    stores = list(range(32))
    pb_compute(Q, stores, flag)
    pb_out(Q)
    if stamps:
        T_ = Asm(); stamp(T_); Q(T_.L)
    Q("s_barrier")
    g_wq(Q, 3)
    X = Asm(); pc_addr(X); Q(X.L)
    def mark(L):
        return [("X" + x) if x.startswith("buffer_") else x for x in L]
    def pre_b1(Q):
        Q.wait([("bst", 0)])
    def sig_b1(Q):
        X = Asm()
        X("s_lshl_b32 %s, %s, 4" % (s(S_T0), s(S_BH)))
        X("s_add_u32 %s, %s, %s" % (s(S_T0), s(S_T0), s(S_RB)))
        X("s_lshl_b32 %s, %s, 7" % (s(S_T0), s(S_T0)))
        X("s_add_u32 %s, %s, %d" % (s(S_T0), s(S_T0), FL_B1))
        flag_set(X, S_T0, S_WAVE, S_WS, "L_f_sig2", V_T)
        X("s_lshl_b32 %s, s2, 7" % s(S_T0))
        X("s_add_u32 %s, %s, %d" % (s(S_T0), s(S_T0), FL_WO))
        flag_set(X, S_T0, S_WAVE, S_WS, "L_f_sig3", V_T)
        Q(mark(X.L))
    def pre_kv(Q):
        Q.wait([("kv", 0)])
    def sig_kv(Q):
        X = Asm()
        X("s_lshl_b32 %s, %s, 4" % (s(S_T0), s(S_HEADKV)))
        X("s_lshl_b32 %s, s60, 3" % s(S_T1))
        X("s_add_u32 %s, %s, %s" % (s(S_T0), s(S_T0), s(S_T1)))
        X("s_lshr_b32 %s, s2, 5" % s(S_T1))
        X("s_add_u32 %s, %s, %s" % (s(S_T0), s(S_T0), s(S_T1)))
        X("s_lshl_b32 %s, %s, 7" % (s(S_T0), s(S_T0)))
        X("s_add_u32 %s, %s, %d" % (s(S_T0), s(S_T0), FL_KV))
        flag_set(X, S_T0, S_WAVE, S_WS, "L_f_sig1", V_T)
        Q(mark(X.L))
        Q("v_and_b32 %s, 3, v0" % v(V_T + 2), "v_min_u32 %s, 2, %s" % (v(V_T + 2), v(V_T + 2)),
          "s_sub_i32 %s, %s, 2" % (s(S_T0), s(S_RB)), "v_add_u32 %s, %s, %s" % (v(V_T + 2), s(S_T0), v(V_T + 2)),
          "v_max_i32 %s, 0, %s" % (v(V_T + 2), v(V_T + 2)), "v_lshlrev_b32 %s, 7, %s" % (v(V_T + 2), v(V_T + 2)),
          "s_lshl_b32 %s, %s, 11" % (s(S_KVO), s(S_BH)), "s_add_u32 %s, %s, %d" % (s(S_KVO), s(S_KVO), FL_B1))
        Q.vm(("b1f", 0), "buffer_load_dword %s, %s, %s, %s offen sc1" % (v(V_T + 3), v(V_T + 2), s(S_WS, 4), s(S_KVO)))
    def chk_b1(Q):
        Q.wait([("b1f", 0)])
        Q("v_cmp_ne_u32 vcc, %s, %s" % (s(S_TOKEN), v(V_T + 3)), "s_nop 4", "s_cbranch_vccz L_f_b1ok")
        X = Asm(); flag_poll(X, V_T + 2, S_KVO, S_WS, "b1", V_T + 3, S_T0); Q(mark(X.L))
        Q("L_f_b1ok:")
    def b2_issue(Q):
        Q("s_waitcnt lgkmcnt(0)", "s_barrier")
        b2_dma(Q)
    hooks = {("pre", 1): pre_b1, 1: sig_b1, ("pre", 5): pre_kv, 5: sig_kv, 6: chk_b1, ("at", 32 * 6 - 10 + 3 + 2): b2_issue}
    pc_compute(Q, stores, flag, hooks)
    assert not stores, stores
    if stamps and opts.get("fine"):
        T_ = Asm(); stamp(T_); Q(T_.L)
    Q("v_and_b32 %s, 15, v0" % v(252), "v_lshlrev_b32 %s, 7, %s" % (v(252), v(252)),
      "s_lshl_b32 %s, %s, 11" % (s(S_KVO), s(S_AH)), "s_add_u32 %s, %s, %d" % (s(S_KVO), s(S_KVO), FL_KV))
    Q.vm(("kvf", 0), "buffer_load_dword %s, %s, %s, %s offen sc1" % (v(253), v(252), s(S_WS, 4), s(S_KVO)))
    pc_out(Q)
    Q.wait([("kvf", 0)])
    Q("v_cmp_ne_u32 vcc, %s, %s" % (s(S_TOKEN), v(253)), "s_nop 4", "s_cbranch_vccz L_f_kvok")
    X = Asm(); flag_poll(X, 252, S_KVO, S_WS, "kv", 253, S_T0); Q(mark(X.L))
    Q("L_f_kvok:")
    lines = seq_finalize(Q)
    check(lines, "phase B/C")
    A(lines)
    if stamps: stamp(A)
    if stamps:
        A("v_mov_b32 v127, v255")
        STAMPV[0] = 127
    K2.k2_main(A, opts, True)
    A.label("L_f_end")
    A("s_endpgm")
    K2.k2_outofline(A, opts)
    return A
```

```python
from common import *

LDS_BYTES = 163840
B2_LDS = 114688
S_K = 4; S_V = 8; S_WS = 12
S_WAVE = 16; S_HEAD = 17; S_ROLE = 18; S_PAIR = 19
S_SRC = [20, 21]
S_E1 = 22; S_S2 = 23; S_E2 = 24
S_DM0 = [25, 26]
S_TABS = 27
S_DIAG = 28
S_TEND = 29
S_QB = 30; S_SEG = 31
S_T0 = 56; S_T1 = 57; S_T2 = 58; S_T3 = 59
S_QB2 = 60; S_N2 = 61; S_OOB = 62; S_D = 63; S_PART = 64; S_ENDACT = 65; S_QROW = 66; S_SPIN = 67
S_RET = 68
S_PUBF = 88; S_PREF = 89; S_TLAST = 90; S_QBASE = 96; S_FLAG = 97; S_PBIT = 98; S_QBIT = 99

V_L16 = 1
V_KA = [2, 3]; V_VA = 4; V_B = 5; V_DMA = 6; V_U = [7, 8]
V_T = 9
V_S = [16, 32]
V_P = 48
V_CI = 56
V_L = 64
V_ONE = 72
V_X = 76
V_O = 128
A_Q = [0, 64]
A_R = 128

def Sreg(p, kt, qt, r=None):
    b = V_S[p] + (kt * 2 + qt) * 4
    return v(b, 4) if r is None else v(b + r)
def Oreg(dt, qt):
    return V_O + (dt * 2 + qt) * 4
def Qf(qt, f, qset=0):
    return a(A_Q[qset] + (qt * 8 + f) * 4, 4)
def ring(n):
    return a(A_R + (n % 16) * 4, 4)

def kread(n, areg):
    f, kt = n >> 1, n & 1
    return "ds_read_b128 %s, %s offset:%d" % (ring(n), v(areg), (kt * 8 + f) * 1024)
def vread(n, areg):
    return "ds_read_b128 %s, %s offset:%d" % (ring(n), v(areg), n * 1024)

KVF = " sc1"
OUTF = [""]
def dma_k(p, m):
    return "buffer_load_dwordx4 %s, %s, %s offen offset:%d%s lds" % (v(V_DMA), s(S_K, 4), s(S_SRC[p]), m * 1024, KVF)
def dma_v(p, m):
    return "buffer_load_dwordx4 %s, %s, %s offen offset:%d%s lds" % (v(V_DMA), s(S_V, 4), s(S_SRC[p]), m * 1024, KVF)

def next_src(dst, src):
    return ["s_add_u32 %s, %s, 16384" % (s(dst), s(src)),
            "s_sub_u32 %s, %s, 1" % (s(S_E1), s(S_E1)),
            "s_cmp_eq_u32 %s, 0" % s(S_E1),
            "s_cselect_b32 %s, %s, %s" % (s(dst), s(S_S2), s(dst)),
            "s_cselect_b32 %s, %s, %s" % (s(S_E1), s(S_E2), s(S_E1)),
            "s_cselect_b32 %s, %s, %s" % (s(S_S2), s(S_OOB), s(S_S2))]

def qk_mfmas(p, first):
    out = []
    for n in range(16):
        f, kt = n >> 1, n & 1
        for qt in range(2):
            C = ("0" if first else v(V_CI + qt * 4, 4)) if f == 0 else Sreg(p, kt, qt)
            out.append(mf16(Sreg(p, kt, qt), ring(n), Qf(qt, f), C))
    return out

def exp_list(p):
    ex = []; cv = []
    for qt in range(2):
        for kt in range(2):
            for r in range(4):
                ex.append("v_exp_f32 %s, %s" % (Sreg(p, kt, qt, r), Sreg(p, kt, qt, r)))
            for h in range(2):
                cv.append("v_cvt_pk_bf16_f32 %s, %s, %s" % (v(V_P + qt * 4 + kt * 2 + h), Sreg(p, kt, qt, 2 * h), Sreg(p, kt, qt, 2 * h + 1)))
    return ex, cv

def max_tree(p):
    x = [Sreg(p, kt, qt, r) for qt in range(2) for kt in range(2) for r in range(4)]
    T = V_T
    o = ["v_max3_f32 %s, %s, %s, %s" % (v(T), x[0], x[1], x[2]),
         "v_max3_f32 %s, %s, %s, %s" % (v(T + 1), x[3], x[4], x[5]),
         "v_max3_f32 %s, %s, %s, %s" % (v(T + 2), x[6], x[7], x[8]),
         "v_max3_f32 %s, %s, %s, %s" % (v(T), v(T), x[9], x[10]),
         "v_max3_f32 %s, %s, %s, %s" % (v(T + 1), v(T + 1), x[11], x[12]),
         "v_max3_f32 %s, %s, %s, %s" % (v(T + 2), v(T + 2), x[13], x[14]),
         "v_max3_f32 %s, %s, %s, %s" % (v(T), v(T), v(T + 1), x[15]),
         "v_max_f32 %s, %s, %s" % (v(T), v(T), v(T + 2)),
         "v_cmp_lt_f32 vcc, 0x41c00000, %s" % v(T)]
    return o

def body(p, final, opts, wv=0):
    q = p ^ 1
    out = []
    barpos = opts.get("k2barpos", 30)
    if barpos < 0:
        out += ["s_waitcnt vmcnt(12)", "s_barrier"]
    pre = ["s_add_u32 %s, %s, 16384" % (s(S_DM0[p]), s(S_DM0[q])),
           "s_and_b32 %s, %s, 0xffff" % (s(S_DM0[p]), s(S_DM0[p])),
           "v_add_u32 %s, %s, %s" % (v(V_VA), s(S_DM0[p]), v(V_B)),
           "v_xor_b32 %s, 0x18000, %s" % (v(V_KA[p]), v(V_VA))]
    ex, cv = exp_list(p)
    def rd(n):
        if n < 16:
            return None if final else kread(n, V_KA[q])
        if n < 32:
            return vread(n - 16, V_VA)
        return None if final else kread(n - 32, V_KA[p])
    m0k = "s_mov_b32 m0, %s" % s(S_DM0[p])
    m0v = "s_add_u32 m0, %s, 0x10000" % s(S_DM0[q])
    ns = next_src(S_SRC[q], S_SRC[p])
    if not final:
        mA = qk_mfmas(q, False)
        gA = [[] for _ in range(32)]
        out += pre[0:2]
        gA[0] += [pre[2]]
        for n in range(16):
            gA[2 * n].append(rd(n + 12))
        gA[1] += [pre[3]]
        for k in range(16):
            gA[2 * k + 1].append(ex[k])
        for k in range(7):
            gA[4 * k + 4].append(cv[k])
        shift = opts.get("k2shift", 0)
        kpos = [6, 14, 22, 30]; vpos = [9, 15, 21, 27]
        if shift and wv >= 2:
            kpos = [2, 10, 18, 26]
            out.append(m0k)
        else:
            gA[2] += [m0k]
        for m, g in enumerate(kpos):
            gA[g].append(dma_k(p, m))
        for m in range(32):
            if m % 8 == 0:
                out.append("s_waitcnt lgkmcnt(8)")
            out.append(mA[m]); out += gA[m]
    else:
        out += ["s_waitcnt lgkmcnt(0)"]
        out += pre[0:3]
        out += [m0k]
        for n in range(4, 16):
            out.append(rd(n + 12))
        for k in range(16):
            out.append(ex[k])
            if k % 4 == 0:
                out.append(dma_k(p, k // 4))
            if (k & 1) and k >= 3:
                out.append(cv[(k >> 1) - 1])
        out.append("s_nop 0")
    mB = []
    fr = []
    for dt in range(16):
        for qt in range(2):
            mB.append(mf16(v(Oreg(dt, qt), 4), ring(dt), v(V_P + qt * 4, 4), v(Oreg(dt, qt), 4))); fr.append((dt, qt))
            if dt == 0:
                mB.append(mf16(v(V_L + qt * 4, 4), v(V_ONE, 4), v(V_P + qt * 4, 4), v(V_L + qt * 4, 4))); fr.append(None)
    nB = len(mB)
    gB = [[] for _ in range(nB)]
    gB[0] += [cv[7]]
    first_of = {}
    for m, x in enumerate(fr):
        if x is not None and x[1] == 0:
            first_of[x[0]] = m
    for dt in range(16):
        x = rd(16 + dt + 12)
        if x is not None:
            gB[first_of[dt]].append(x)
    if not final:
        mt = max_tree(q)
        gB[3] += ["s_cmp_ge_u32 %s, %s" % (s(S_TABS), s(S_DIAG))]
        gB[5] += ["s_cbranch_scc1 L_k2_mask%d_%d" % (p, wv), "L_k2_maskret%d_%d:" % (p, wv)]
        pos = [7, 7, 11, 11, 13, 13, 17, 17, 19]
        for x, g in zip(mt, pos):
            gB[g].append(x)
    gB[6] += [m0v]
    vpos = [9, 15, 21, 27]
    if opts.get("k2shift", 0) and wv >= 2:
        vpos = [7, 13, 19, 25] if False else [11, 17, 23, 27]
        vpos = [8 + 1, 15, 21, 27]
        vpos = [12, 18, 24, 27] if opts.get("k2shift") == 2 else vpos
    for m, g in enumerate(vpos):
        gB[g].append(dma_v(q, m))
    gB[23] += ["s_add_u32 %s, %s, 1" % (s(S_TABS), s(S_TABS))]
    if barpos < 0:
        gB[29] += ns[0:2]
        gB[31] += ns[2:4]
        gB[33] += ns[4:5]
    else:
        gB[28] += ns[0:1]
        gB[29] += ns[1:3]
        gB[31] += ns[3:5]
        gB[33] += ns[5:6]
        assert barpos > 27
        gB[barpos] += ["s_waitcnt vmcnt(12)", "s_barrier"]
        dl = opts.get("k2delay", 2) * wv
        while dl > 0:
            gB[barpos] += ["s_nop %d" % (min(dl, 16) - 1)]
            dl -= 16
    for m in range(nB):
        if fr[m] is not None and fr[m][1] == 0 and fr[m][0] % 4 == 0:
            k = {0: 8, 4: 8, 8: 4, 12: 0}[fr[m][0]] if final else 8
            out.append("s_waitcnt lgkmcnt(%d)" % k)
        out.append(mB[m]); out += gB[m]
    if not final:
        out += ["s_cbranch_vccnz L_k2_resc%d_%d" % (p, wv), "L_k2_rescret%d_%d:" % (p, wv)]
        def drop(pred):
            return [x for x in out if not pred(x)]
        if opts.get("k2noexp"): out = drop(lambda x: x.startswith("v_exp"))
        if opts.get("k2nocvt"): out = drop(lambda x: x.startswith("v_cvt"))
        if opts.get("k2nodma"): out = drop(lambda x: " lds" in x)
        if opts.get("k2nobar"): out = drop(lambda x: x.startswith("s_barrier"))
        if opts.get("k2noreads"): out = drop(lambda x: x.startswith("ds_read") or "lgkmcnt" in x)
        if opts.get("k2nomax"): out = drop(lambda x: x.startswith("v_max") or x.startswith("v_cmp") or x.startswith("s_cbranch_vccnz"))
    return out

def mask_block(p_s, ret, lbl):
    o = [lbl + ":"]
    o += ["s_lshl_b32 %s, %s, 5" % (s(S_D), s(S_TABS)),
          "s_sub_u32 %s, %s, %s" % (s(S_D), s(S_QROW), s(S_D)),
          "v_add_u32 %s, %s, %s" % (v(V_X), s(S_D), v(V_U[0])),
          "v_add_u32 %s, %s, %s" % (v(V_X + 1), s(S_D), v(V_U[1])),
          "v_mov_b32 %s, 0xff800000" % v(V_X + 2),
          "s_nop 4"]
    for qt in range(2):
        for kt in range(2):
            for r in range(4):
                o += ["v_cmp_gt_i32 vcc, %d, %s" % (16 * kt + r, v(V_X + qt)),
                      "s_nop 1",
                      "v_cndmask_b32 %s, %s, %s, vcc" % (Sreg(p_s, kt, qt, r), Sreg(p_s, kt, qt, r), v(V_X + 2))]
    o += ["s_nop 0", "s_branch %s" % ret]
    return o

def rowmax(qt, p_s, dst, tmp):
    x = [Sreg(p_s, kt, qt, r) for kt in range(2) for r in range(4)]
    return ["v_max3_f32 %s, %s, %s, %s" % (v(dst), x[0], x[1], x[2]),
            "v_max3_f32 %s, %s, %s, %s" % (v(tmp), x[3], x[4], x[5]),
            "v_max3_f32 %s, %s, %s, %s" % (v(dst), v(dst), x[6], x[7]),
            "v_max_f32 %s, %s, %s" % (v(dst), v(dst), v(tmp)),
            "v_mov_b32 %s, %s" % (v(tmp), v(dst)),
            "s_nop 1",
            "v_permlane32_swap_b32 %s, %s" % (v(dst), v(tmp)),
            "s_nop 1",
            "v_max_f32 %s, %s, %s" % (v(dst), v(dst), v(tmp)),
            "v_mov_b32 %s, %s" % (v(tmp), v(dst)),
            "s_nop 1",
            "v_permlane16_swap_b32 %s, %s" % (v(dst), v(tmp)),
            "s_nop 1",
            "v_max_f32 %s, %s, %s" % (v(dst), v(dst), v(tmp))]

def resc_block(p_s, ret, lbl):
    o = [lbl + ":", "s_nop 7", "s_nop 1"]
    X = V_X
    for qt in range(2):
        o += rowmax(qt, p_s, X, X + 1)
        o += ["v_max_f32 %s, 0, %s" % (v(X), v(X)),
              "v_exp_f32 %s, -%s" % (v(X + 2), v(X))]
        for kt in range(2):
            for r in range(4):
                o += ["v_sub_f32 %s, %s, %s" % (Sreg(p_s, kt, qt, r), Sreg(p_s, kt, qt, r), v(X))]
        for r in range(4):
            o += ["v_sub_f32 %s, %s, %s" % (v(V_CI + qt * 4 + r), v(V_CI + qt * 4 + r), v(X))]
        for r in range(4):
            o += ["v_mul_f32 %s, %s, %s" % (v(V_L + qt * 4 + r), v(V_L + qt * 4 + r), v(X + 2))]
        for dt in range(16):
            for r in range(4):
                o += ["v_mul_f32 %s, %s, %s" % (v(Oreg(dt, qt) + r), v(Oreg(dt, qt) + r), v(X + 2))]
    o += ["s_nop 1", "s_branch %s" % ret]
    return o

def seg_prologue(A):
    for n in range(16):
        A(kread(n, V_KA[0]))
    for r in range(128):
        A("v_mov_b32 %s, 0" % v(V_O + r))
    for r in range(8):
        A("v_mov_b32 %s, 0" % v(V_L + r))
    A("s_waitcnt lgkmcnt(0)")
    A(qk_mfmas(0, True))
    for n in range(12):
        A(kread(n, V_KA[1]))
    A("s_nop 7")
    A("s_cmp_ge_u32 %s, %s" % (s(S_TABS), s(S_DIAG)))
    A("s_cbranch_scc1 L_k2_maskP")
    A.label("L_k2_maskPret")
    X = V_X
    for qt in range(2):
        A(rowmax(qt, 0, X, X + 1))
        for kt in range(2):
            for r in range(4):
                A("v_sub_f32 %s, %s, %s" % (Sreg(0, kt, qt, r), Sreg(0, kt, qt, r), v(X)))
        for r in range(4):
            A("v_sub_f32 %s, 0, %s" % (v(V_CI + qt * 4 + r), v(X)))
    A("s_add_u32 %s, %s, 1" % (s(S_TABS), s(S_TABS)))
    pub_flag(A)
    A("s_waitcnt vmcnt(12)")
    A("s_barrier")

def q_base(A, dst, qb_sgpr):
    A("s_lshl_b32 %s, %s, 3" % (s(dst), s(qb_sgpr)))
    A("s_lshl_b32 %s, %s, 1" % (s(S_T0), s(S_WAVE)))
    A("s_add_u32 %s, %s, %s" % (s(dst), s(dst), s(S_T0)))
    A("s_lshl_b32 %s, %s, 13" % (s(dst), s(dst)))
    A("s_lshl_b32 %s, %s, 20" % (s(S_T0), s(S_HEAD)))
    A("s_add_u32 %s, %s, %s" % (s(dst), s(dst), s(S_T0)))
    A("s_add_u32 %s, %s, %d" % (s(dst), s(dst), WS_Q))

def load_q(A, qset, qb_sgpr, fl=""):
    A("s_lshl_b32 %s, %s, 3" % (s(S_T0), s(qb_sgpr)))
    A("s_lshl_b32 %s, %s, 1" % (s(S_T1), s(S_WAVE)))
    A("s_add_u32 %s, %s, %s" % (s(S_T0), s(S_T0), s(S_T1)))
    A("s_lshl_b32 %s, %s, 13" % (s(S_T0), s(S_T0)))
    A("s_lshl_b32 %s, %s, 20" % (s(S_T1), s(S_HEAD)))
    A("s_add_u32 %s, %s, %s" % (s(S_T0), s(S_T0), s(S_T1)))
    A("s_add_u32 %s, %s, %d" % (s(S_T0), s(S_T0), WS_Q))
    for k in range(16):
        if k % 4 == 0 and k:
            A("s_add_u32 %s, %s, 4096" % (s(S_T0), s(S_T0)))
        A("buffer_load_dwordx4 %s, %s, %s, %s offen offset:%d%s" % (a(A_Q[qset] + 4 * k, 4), v(V_L16), s(S_WS, 4), s(S_T0), (k % 4) * 1024, fl))

def ctx_base(A, dst):
    A("s_lshl_b32 %s, %s, 3" % (s(dst), s(S_QB)))
    A("s_lshl_b32 %s, %s, 1" % (s(S_T1), s(S_WAVE)))
    A("s_add_u32 %s, %s, %s" % (s(dst), s(dst), s(S_T1)))
    A("s_lshl_b32 %s, %s, 4" % (s(dst), s(dst)))
    A("s_add_u32 %s, %s, %s" % (s(dst), s(dst), s(S_HEAD)))
    A("s_lshl_b32 %s, %s, 13" % (s(dst), s(dst)))
    A("s_add_u32 %s, %s, %d" % (s(dst), s(dst), WS_CTX))

def epi_final(A, merge):
    X = V_X
    AP = [64, 192]
    def areg(unit, r):
        return a((64 + unit * 4 + r) if unit < 16 else (192 + (unit - 16) * 4 + r))
    ctx_base(A, S_T0)
    sc = [X + 4, X + 5]; sc2 = [X + 6, X + 7]
    for qt in range(2):
        if not merge:
            A("v_rcp_f32 %s, %s" % (v(sc[qt]), v(V_L + qt * 4)))
        else:
            m2 = X + 8 + qt; l2 = X + 10 + qt
            A("v_sub_f32 %s, 0, %s" % (v(X), v(V_CI + qt * 4)))
            A("v_max_f32 %s, %s, %s" % (v(X + 1), v(X), v(m2)))
            A("v_sub_f32 %s, %s, %s" % (v(X), v(X), v(X + 1)))
            A("v_sub_f32 %s, %s, %s" % (v(X + 2), v(m2), v(X + 1)))
            A("v_exp_f32 %s, %s" % (v(X), v(X)))
            A("v_exp_f32 %s, %s" % (v(X + 2), v(X + 2)))
            A("s_nop 0")
            A("v_mul_f32 %s, %s, %s" % (v(X + 1), v(X), v(V_L + qt * 4)))
            A("v_fmac_f32 %s, %s, %s" % (v(X + 1), v(X + 2), v(l2)))
            A("v_rcp_f32 %s, %s" % (v(X + 1), v(X + 1)))
            A("s_nop 0")
            A("v_mul_f32 %s, %s, %s" % (v(sc[qt]), v(X), v(X + 1)))
            A("v_mul_f32 %s, %s, %s" % (v(sc2[qt]), v(X + 2), v(X + 1)))
    A("s_nop 0")
    R = X + 12
    k = 0
    for qt in range(2):
        for f in range(8):
            t = R + (k & 1) * 12
            for h in range(2):
                dt = 2 * f + h
                for r in range(4):
                    o = Oreg(dt, qt) + r
                    if not merge:
                        A("v_mul_f32 %s, %s, %s" % (v(t + h * 4 + r), v(o), v(sc[qt])))
                    else:
                        A("v_accvgpr_read_b32 %s, %s" % (v(t + h * 4 + r), areg(dt * 2 + qt, r)))
                        A("v_mul_f32 %s, %s, %s" % (v(o), v(o), v(sc[qt])))
                        A("v_fma_f32 %s, %s, %s, %s" % (v(t + h * 4 + r), v(t + h * 4 + r), v(sc2[qt]), v(o)))
            for r in range(4):
                A("v_cvt_pk_bf16_f32 %s, %s, %s" % (v(t + 8 + r), v(t + 2 * r), v(t + 2 * r + 1)))
            if f % 4 == 0:
                A("s_add_u32 %s, %s, %d" % (s(S_T1), s(S_T0), qt * 131072 + f * 1024))
            A("buffer_store_dwordx4 %s, %s, %s, %s offen offset:%d%s" % (v(t + 8, 4), v(V_L16), s(S_WS, 4), s(S_T1), (f % 4) * 1024, OUTF[0]))
            k += 1

def part_base(A, dst):
    A("s_lshl_b32 %s, %s, 3" % (s(dst), s(S_HEAD)))
    A("s_add_u32 %s, %s, %s" % (s(dst), s(dst), s(S_PAIR)))
    A("s_mul_i32 %s, %s, %d" % (s(dst), s(dst), 135168))
    A("s_mul_i32 %s, %s, %d" % (s(S_T1), s(S_WAVE), 33792))
    A("s_add_u32 %s, %s, %s" % (s(dst), s(dst), s(S_T1)))
    A("s_add_u32 %s, %s, %d" % (s(dst), s(dst), WS_PART))

def epi_publish(A):
    X = V_X
    part_base(A, S_T0)
    for qt in range(2):
        A("v_sub_f32 %s, 0, %s" % (v(X + qt), v(V_CI + qt * 4)))
        A("v_mov_b32 %s, %s" % (v(X + 2 + qt), v(V_L + qt * 4)))
    for u in range(32):
        if u % 4 == 0:
            A("s_add_u32 %s, %s, %d" % (s(S_T1), s(S_T0), u * 1024))
        A("buffer_store_dwordx4 %s, %s, %s, %s offen offset:%d sc1" % (v(V_O + 4 * u, 4), v(V_L16), s(S_WS, 4), s(S_T1), (u % 4) * 1024))
    A("s_add_u32 %s, %s, %d" % (s(S_T1), s(S_T0), 32768))
    A("buffer_store_dwordx4 %s, %s, %s, %s offen sc1" % (v(X, 4), v(V_L16), s(S_WS, 4), s(S_T1)))
    A("s_mov_b32 %s, 1" % s(S_PUBF))

def pub_flag(A):
    X = V_X
    A("s_cmp_eq_u32 %s, 0" % s(S_PUBF))
    A("s_cbranch_scc1 L_k2_nopub")
    A("s_waitcnt vmcnt(0)")
    A("s_barrier")
    A("s_mov_b32 %s, 0" % s(S_PUBF))
    flag_set(A, S_FLAG, S_WAVE, S_WS, "L_k2_nopub2", X)
    A.label("L_k2_nopub")

def partial_loads(A):
    X = V_X
    part_base(A, S_T0)
    A("s_add_u32 %s, %s, %d" % (s(S_T1), s(S_T0), 32768))
    A("buffer_load_dwordx4 %s, %s, %s, %s offen sc1" % (v(X + 8, 4), v(V_L16), s(S_WS, 4), s(S_T1)))
    for u in range(32):
        if u % 4 == 0:
            A("s_add_u32 %s, %s, %d" % (s(S_T1), s(S_T0), u * 1024))
        dst = (64 + u * 4) if u < 16 else (192 + (u - 16) * 4)
        A("buffer_load_dwordx4 %s, %s, %s, %s offen offset:%d sc1" % (a(dst, 4), v(V_L16), s(S_WS, 4), s(S_T1), (u % 4) * 1024))

V_FL = 113
def flag_load():
    return "buffer_load_dword %s, %s, %s, %s offen sc1" % (v(V_FL), v(V_FL + 1), s(S_WS, 4), s(S_FLAG))

def epi_merge_load(A):
    A("s_cmp_eq_u32 %s, 1" % s(S_PREF))
    A("s_cbranch_scc1 L_k2_polled")
    A("s_mov_b32 %s, 0" % s(S_SPIN))
    A.label("L_k2_poll")
    A(flag_load())
    A("s_waitcnt vmcnt(0)")
    A("v_readfirstlane_b32 %s, %s" % (s(S_T1), v(V_FL)))
    A("s_add_u32 %s, %s, 1" % (s(S_SPIN), s(S_SPIN)))
    A("s_cmp_eq_u32 %s, %s" % (s(S_T1), s(S_TOKEN)))
    A("s_cbranch_scc1 L_k2_pollok")
    A("s_sleep 2")
    A("s_cmp_lt_u32 %s, 200000" % s(S_SPIN))
    A("s_cbranch_scc1 L_k2_poll")
    A.label("L_k2_pollok")
    partial_loads(A)
    A.label("L_k2_polled")
    A("s_waitcnt vmcnt(0)")

def early_check_block(lbl, ret):
    A = Asm()
    A.label(lbl)
    A("s_waitcnt vmcnt(8)")
    A("v_readfirstlane_b32 %s, %s" % (s(S_T1), v(V_FL)))
    A("s_cmp_eq_u32 %s, %s" % (s(S_T1), s(S_TOKEN)))
    A("s_cbranch_scc0 %s" % ret)
    partial_loads(A)
    A("s_mov_b32 %s, 1" % s(S_PREF))
    A("s_branch %s" % ret)
    return A.L

S_BH = 69; S_BTQ = 70; S_BTB = 71; S_BM = 72
BQ = 200; BK = 128; BV = 128

def b2_ids(A):
    A("s_and_b32 %s, s2, 15" % s(S_BH))
    A("s_lshr_b32 %s, s2, 4" % s(S_BTQ))
    A("s_lshl_b32 %s, %s, 2" % (s(S_BTQ), s(S_BTQ)))
    A("s_add_u32 %s, %s, %s" % (s(S_BTQ), s(S_BTQ), s(S_WAVE)))
    A("s_lshl_b32 %s, %s, 17" % (s(S_BTB), s(S_BH)))
    A("s_lshl_b32 %s, %s, 11" % (s(S_T0), s(S_BTQ)))
    A("s_add_u32 %s, %s, %s" % (s(S_BTB), s(S_BTB), s(S_T0)))

def b2_loads(A):
    TC = S_T3
    A("s_lshr_b32 %s, s2, 4" % s(S_T0))
    A("s_lshl_b32 %s, %s, 3" % (s(S_T0), s(S_T0)))
    A("s_mul_i32 %s, %s, 6" % (s(S_T1), s(S_WAVE)))
    A("s_add_i32 %s, %s, %s" % (s(S_T0), s(S_T0), s(S_T1)))
    A("s_sub_i32 %s, %s, 16" % (s(S_T0), s(S_T0)))
    A("s_lshl_b32 %s, %s, 17" % (s(S_T2), s(S_BH)))
    A("s_mul_i32 %s, %s, 6144" % (s(S_D), s(S_WAVE)))
    for k in range(6):
        A("s_add_i32 %s, %s, %d" % (s(S_T1), s(S_T0), k))
        A("s_cmp_ge_i32 %s, 0" % s(S_T1))
        A("s_cselect_b32 %s, %s, 0" % (s(TC), s(S_T1)))
        A("s_lshl_b32 %s, %s, 10" % (s(TC), s(TC)))
        A("s_add_u32 %s, %s, %s" % (s(TC), s(TC), s(S_T2)))
        A("s_cmp_ge_i32 %s, 0" % s(S_T1))
        A("s_cselect_b32 %s, %s, %s" % (s(TC), s(TC), s(S_OOB)))
        A("s_add_u32 m0, %s, %d" % (s(S_D), B2_LDS + k * 1024))
        A("s_add_u32 %s, %s, %d" % (s(S_T1), s(TC), WS_BK))
        A("buffer_load_dwordx4 %s, %s, %s offen sc1 lds" % (v(V_L16), s(S_WS, 4), s(S_T1)))
        A("s_add_u32 m0, %s, %d" % (s(S_D), B2_LDS + 24576 + k * 1024))
        A("s_add_u32 %s, %s, %d" % (s(S_T1), s(TC), WS_BV))
        A("buffer_load_dwordx4 %s, %s, %s offen sc1 lds" % (v(V_L16), s(S_WS, 4), s(S_T1)))

def b2_reads(A, which):
    T = V_T + 5
    A("s_lshl_b32 %s, %s, 11" % (s(S_T0), s(S_WAVE)))
    A("s_add_u32 %s, %s, %d" % (s(S_T0), s(S_T0), B2_LDS + (0 if which == "k" else 24576)))
    A("v_add_u32 %s, %s, %s" % (v(T), s(S_T0), v(V_L16)))
    for tt in range(9):
        for k in range(2):
            A("ds_read_b128 %s, %s offset:%d" % (a((BK if which == "k" else BV) + (tt * 2 + k) * 4, 4), v(T), tt * 2048 + k * 1024))

def b2_S(tt, kt, qt, r=None):
    idx = (tt * 4 + kt * 2 + qt) * 4
    b = 128 + idx if idx < 128 else 84 + (idx - 128)
    return v(b, 4) if r is None else v(b + r)

B2_C8 = 16; B2_C0 = 32
def B2_CM(tt):
    return 48 + 4 * (tt - 1) if tt < 7 else 100

def b2_cinit(A):
    X = V_X
    A("v_mov_b32 %s, 0xff800000" % v(X))
    A("v_mov_b32 %s, 0" % v(X + 1))
    for tt in range(8):
        A("s_cmp_ge_u32 %s, %d" % (s(S_BTQ), 8 - tt))
        A("s_cselect_b32 %s, 0, 0xff800000" % s(S_BM + tt))
    k = 0
    pend = []
    for kt in range(2):
        for qt in range(2):
            for r in range(4):
                sp = S_BM + 8 + 2 * (k % 4)
                A("v_cmp_gt_i32 %s, %d, %s" % (s(sp, 2), 16 * kt + r, v(V_U[qt])))
                pend.append((sp, kt, qt, r))
                if len(pend) == 4:
                    A("s_nop 0")
                    for (sp2, kt2, qt2, r2) in pend:
                        o = (kt2 * 2 + qt2) * 4 + r2
                        A("v_cndmask_b32 %s, %s, %s, %s" % (v(B2_C8 + o), v(X + 1), v(X), s(sp2, 2)))
                        A("v_cndmask_b32 %s, %s, %s, %s" % (v(B2_C0 + o), v(X), v(X + 1), s(sp2, 2)))
                    pend = []
                k += 1
    for o in range(16):
        A("v_add_f32 %s, %s, %s" % (v(B2_C0 + o), s(S_BM), v(B2_C0 + o)))
    for tt in range(1, 8):
        for r in range(4):
            A("v_mov_b32 %s, %s" % (v(B2_CM(tt) + r), s(S_BM + tt)))

def b2_qk(A):
    for tt in range(9):
        for kt in range(2):
            for qt in range(2):
                if tt == 8: C = v(B2_C8 + (kt * 2 + qt) * 4, 4)
                elif tt == 0: C = v(B2_C0 + (kt * 2 + qt) * 4, 4)
                else: C = v(B2_CM(tt), 4)
                A(mf16(b2_S(tt, kt, qt), a(BK + (tt * 2 + kt) * 4, 4), a(BQ + 4 * qt, 4), C))

def b2_max(A):
    X = V_X
    M = [X + 2, X + 6]
    chains = []
    for qt in range(2):
        xs = [b2_S(tt, kt, qt, r) for tt in range(9) for kt in range(2) for r in range(4)]
        t0, t1 = V_T + 2 * qt, V_T + 2 * qt + 1
        c = ["v_max3_f32 %s, %s, %s, %s" % (v(t0), xs[0], xs[1], xs[2]), "v_max3_f32 %s, %s, %s, %s" % (v(t1), xs[3], xs[4], xs[5])]
        k = 6; alt = 0
        while k + 1 < len(xs):
            c.append("v_max3_f32 %s, %s, %s, %s" % (v((t0, t1)[alt]), v((t0, t1)[alt]), xs[k], xs[k + 1]))
            k += 2; alt ^= 1
        c.append("v_max_f32 %s, %s, %s" % (v(t0), v(t0), v(t1)))
        chains.append(c)
    for x, y in zip(*chains):
        A(x); A(y)
    for sw in ("v_permlane32_swap_b32", "v_permlane16_swap_b32"):
        for qt in range(2):
            A("v_mov_b32 %s, %s" % (v(V_T + 2 * qt + 1), v(V_T + 2 * qt)))
        A("s_nop 0")
        for qt in range(2):
            A("%s %s, %s" % (sw, v(V_T + 2 * qt), v(V_T + 2 * qt + 1)))
        A("s_nop 0")
        for qt in range(2):
            A("v_max_f32 %s, %s, %s" % (v(V_T + 2 * qt), v(V_T + 2 * qt), v(V_T + 2 * qt + 1)))
    for qt in range(2):
        A("v_mov_b32 %s, %s" % (v(M[qt]), v(V_T + 2 * qt)))
        A("v_mov_b32 %s, %s" % (v(M[qt] + 1), v(V_T + 2 * qt)))

def b2_pv(A):
    X = V_X
    M = [X + 2, X + 6]
    P = [48, 56]; O = 16; L = 32
    def soft(tt):
        o = []
        pb = P[tt & 1]
        for qt in range(2):
            for kt in range(2):
                b = int(b2_S(tt, kt, qt)[2:].split(":")[0])
                for h in range(2):
                    o.append("v_pk_add_f32 %s, %s, %s neg_lo:[0,1] neg_hi:[0,1]" % (v(b + 2 * h, 2), v(b + 2 * h, 2), v(M[qt], 2)))
        for qt in range(2):
            for kt in range(2):
                for r in range(4):
                    o.append("v_exp_f32 %s, %s" % (b2_S(tt, kt, qt, r), b2_S(tt, kt, qt, r)))
        for qt in range(2):
            for kt in range(2):
                for h in range(2):
                    o.append("v_cvt_pk_bf16_f32 %s, %s, %s" % (v(pb + qt * 4 + kt * 2 + h), b2_S(tt, kt, qt, 2 * h), b2_S(tt, kt, qt, 2 * h + 1)))
        return o
    def mm(tt):
        o = []
        pb = P[tt & 1]
        for qt in range(2):
            for dt in range(2):
                oo = v(O + (dt * 2 + qt) * 4, 4)
                o.append(mf16(oo, a(BV + (tt * 2 + dt) * 4, 4), v(pb + qt * 4, 4), "0" if tt == 0 else oo))
            l = v(L + qt * 4, 4)
            o.append(mf16(l, v(V_ONE, 4), v(pb + qt * 4, 4), "0" if tt == 0 else l))
        return o
    A(soft(0))
    for tt in range(9):
        m = mm(tt)
        if tt < 8:
            sf = soft(tt + 1)
            out = []
            step = len(sf) // 6
            for k in range(6):
                out += sf[k * step:k * step + 2]; out.append(m[k]); out += sf[k * step + 2:(k + 1) * step]
            out += sf[6 * step:]
            A(out)
        else:
            A("s_nop 1"); A(m)

def b2_out(A):
    X = V_X; P = 48; O = 16; L = 32; TC = S_T3
    A("s_nop 7")
    A("v_cmp_gt_u32 vcc, 768, %s" % v(V_L16))
    A("s_lshl_b32 %s, %s, 5" % (s(TC), s(S_BTQ)))
    A("s_add_u32 %s, %s, %s" % (s(TC), s(TC), s(S_BH)))
    A("s_lshl_b32 %s, %s, 10" % (s(TC), s(TC)))
    A("s_add_u32 %s, %s, %d" % (s(TC), s(TC), WS_CTXB))
    for qt in range(2):
        A("v_rcp_f32 %s, %s" % (v(X + 4), v(L + qt * 4)))
        A("s_nop 0")
        A("v_cndmask_b32 %s, 0, %s, vcc" % (v(X + 5), v(X + 4)))
        for dt in range(2):
            for r in range(4):
                A("v_mul_f32 %s, %s, %s" % (v(100 + dt * 4 + r), v(O + (dt * 2 + qt) * 4 + r), v(X + 4 + dt)))
        for h in range(4):
            A("v_cvt_pk_bf16_f32 %s, %s, %s" % (v(P + qt * 4 + h), v(100 + 2 * h), v(100 + 2 * h + 1)))
        A("s_add_u32 %s, %s, %d" % (s(S_D), s(TC), qt * 16384))
        A("buffer_store_dwordx4 %s, %s, %s, %s offen%s" % (v(P + qt * 4, 4), v(V_L16), s(S_WS, 4), s(S_D), OUTF[0]))

def k2_main(A, opts, fused):
    stamps = opts.get("stamps", False)
    one = opts.get("one", 0)
    OUTF[0] = " sc1" if one else ""
    split = opts.get("split", 34)
    A("s_mov_b32 %s, 0x7f000000" % s(S_OOB))
    for r in range(8):
        A("v_accvgpr_write_b32 %s, %s" % (a(BQ + r), v(244 + r)))
    set_srd(A, S_K, P_WS, 16 * MB)
    A("s_add_u32 %s, %s, %d" % (s(S_V), s(P_WS), WS_V))
    A("s_addc_u32 %s, %s, 0" % (s(S_V + 1), s(P_WS + 1)))
    A("s_mov_b32 %s, %d" % (s(S_V + 2), 16 * MB))
    A("s_mov_b32 %s, 0x20000" % s(S_V + 3))
    A("s_and_b32 %s, s2, 7" % s(S_T0))
    A("s_lshr_b32 %s, s2, 3" % s(S_T1))
    A("s_lshl_b32 %s, %s, 1" % (s(S_HEAD), s(S_T0)))
    A("s_and_b32 %s, %s, 1" % (s(S_T2), s(S_T1)))
    A("s_add_u32 %s, %s, %s" % (s(S_HEAD), s(S_HEAD), s(S_T2)))
    A("s_lshr_b32 %s, %s, 1" % (s(S_T1), s(S_T1)))
    A("s_and_b32 %s, %s, 1" % (s(S_ROLE), s(S_T1)))
    A("s_lshr_b32 %s, %s, 1" % (s(S_PAIR), s(S_T1)))
    A("v_and_b32 %s, 63, v0" % v(V_T))
    A("v_lshlrev_b32 %s, 4, %s" % (v(V_L16), v(V_T)))
    A("s_lshl_b32 %s, %s, 12" % (s(S_T0), s(S_WAVE)))
    A("v_add_u32 %s, %s, %s" % (v(V_DMA), s(S_T0), v(V_L16)))
    A("v_subrev_u32 %s, %s, %s" % (v(V_B), s(S_T0), v(V_L16)))
    A("v_add_u32 %s, 0x10000, %s" % (v(V_B), v(V_B)))
    A("v_and_b32 %s, 15, %s" % (v(V_T + 1), v(V_T)))
    A("v_lshrrev_b32 %s, 4, %s" % (v(V_T + 2), v(V_T)))
    A("v_lshlrev_b32 %s, 2, %s" % (v(V_T + 2), v(V_T + 2)))
    A("v_sub_u32 %s, %s, %s" % (v(V_U[0]), v(V_T + 1), v(V_T + 2)))
    A("v_add_u32 %s, 16, %s" % (v(V_U[1]), v(V_U[0])))
    for r in range(4):
        A("v_mov_b32 %s, 0x3f803f80" % v(V_ONE + r))
    A("s_sub_u32 %s, 15, %s" % (s(S_QB), s(S_PAIR)))
    A("s_add_u32 %s, %s, 1" % (s(S_T1), s(S_QB)))
    A("s_lshl_b32 %s, %s, 2" % (s(S_T1), s(S_T1)))
    A("s_sub_u32 %s, %s, %d" % (s(S_T3), s(S_T1), split))
    A("s_lshl_b32 %s, %s, 20" % (s(S_T2), s(S_HEAD)))
    A("s_cmp_eq_u32 %s, 0" % s(S_ROLE))
    A("s_cbranch_scc0 L_k2_roleS")
    A("s_mov_b32 %s, %s" % (s(S_TABS), s(S_T3)))
    A("s_mov_b32 %s, %s" % (s(S_TEND), s(S_T1)))
    A("s_lshl_b32 %s, %s, 14" % (s(S_SRC[0]), s(S_T3)))
    A("s_add_u32 %s, %s, %s" % (s(S_SRC[0]), s(S_SRC[0]), s(S_T2)))
    A("s_mov_b32 %s, %d" % (s(S_E1), split))
    A("s_mov_b32 %s, %s" % (s(S_S2), s(S_OOB)))
    A("s_mov_b32 %s, 1000" % s(S_E2))
    A("s_mov_b32 %s, 2" % s(S_ENDACT))
    A("s_branch L_k2_roledone")
    A.label("L_k2_roleS")
    A("s_mov_b32 %s, 0" % s(S_TABS))
    A("s_mov_b32 %s, %s" % (s(S_TEND), s(S_T3)))
    A("s_mov_b32 %s, %s" % (s(S_SRC[0]), s(S_T2)))
    A("s_mov_b32 %s, %s" % (s(S_E1), s(S_T3)))
    A("s_mov_b32 %s, %s" % (s(S_S2), s(S_T2)))
    A("s_add_u32 %s, %s, 1" % (s(S_N2), s(S_PAIR)))
    A("s_lshl_b32 %s, %s, 2" % (s(S_N2), s(S_N2)))
    A("s_mov_b32 %s, %s" % (s(S_E2), s(S_N2)))
    A("s_mov_b32 %s, 1" % s(S_ENDACT))
    A.label("L_k2_roledone")
    A("s_mov_b32 %s, 0" % s(S_PUBF))
    A("s_mov_b32 %s, 0" % s(S_PREF))
    A("s_sub_u32 %s, %s, 1" % (s(S_TLAST), s(S_TEND)))
    A("s_cmp_eq_u32 %s, 2" % s(S_ENDACT))
    A("s_cselect_b32 %s, %s, -1" % (s(S_TLAST), s(S_TLAST)))
    A("s_lshl_b32 %s, %s, 3" % (s(S_PBIT), s(S_HEAD)))
    A("s_add_u32 %s, %s, %s" % (s(S_PBIT), s(S_PBIT), s(S_PAIR)))
    A("s_lshl_b32 %s, %s, 7" % (s(S_PBIT), s(S_PBIT)))
    A("s_add_u32 %s, %s, %d" % (s(S_FLAG), s(S_PBIT), FL_P))
    A("s_add_u32 %s, %s, %d" % (s(S_QBIT), s(S_PBIT), FL_Q))
    A("v_mov_b32 %s, 0" % v(V_FL + 1))
    A("s_cmp_eq_u32 %s, 0" % s(S_ROLE))
    A("s_cbranch_scc1 L_k2_nocopy")
    for r in range(64):
        A("v_accvgpr_mov_b32 %s, %s" % (a(A_Q[1] + r), a(A_Q[0] + r)))
    A.label("L_k2_nocopy")
    A("s_mov_b32 %s, 0" % s(S_SEG))
    A("s_lshl_b32 %s, %s, 12" % (s(S_RET), s(S_WAVE)))
    def issue(srd, soff, slot, isv):
        A("s_add_u32 m0, %s, %d" % (s(S_RET), slot * 16384 + (65536 if isv else 0)))
        A("s_nop 0")
        for m in range(4):
            A("buffer_load_dwordx4 %s, %s, %s offen offset:%d lds" % (v(V_DMA), s(srd, 4), s(soff), m * 1024))
    b2_ids(A)
    X = Asm(); b2_cinit(X); check(X.L, "b2 cinit"); A(X.L)
    A("s_mov_b32 %s, %s" % (s(S_BM), s(S_SRC[0])))
    A(next_src(S_T1, S_SRC[0])); A(next_src(S_T2, S_T1)); A(next_src(S_T3, S_T2))
    A("s_mov_b32 %s, %s" % (s(S_SRC[1]), s(S_T3)))
    A("s_mov_b32 %s, %s" % (s(S_BM + 1), s(S_T1)))
    A("s_mov_b32 %s, %s" % (s(S_BM + 2), s(S_T2)))
    A(next_src(S_SRC[0], S_SRC[1]))
    q_base(A, S_QBASE, S_QB)
    if opts.get("b2stamp"): stamp(A)
    A("s_waitcnt vmcnt(0)")
    if opts.get("b2stamp"): stamp(A)
    A("s_barrier")
    A("s_cmp_eq_u32 %s, 0" % s(S_ROLE))
    A("s_cbranch_scc0 L_k2_noqsig")
    flag_set(A, S_QBIT, S_WAVE, S_WS, "L_k2_qsig", 115)
    A.label("L_k2_noqsig")
    def issue_l(srd, soff, slot, isv):
        o = ["s_add_u32 m0, %s, %d" % (s(S_RET), slot * 16384 + (65536 if isv else 0))]
        o2 = []
        for m in range(4):
            o2.append("buffer_load_dwordx4 %s, %s, %s offen offset:%d%s lds" % (v(V_DMA), s(srd, 4), s(soff), m * 1024, KVF))
        return [o] + [[x] for x in o2]
    def weave_items(L, items):
        step = max(1, len(L) // (len(items) + 1))
        out = []
        for k, d in enumerate(items):
            out += L[k * step:(k + 1) * step] + d
        out += L[len(items) * step:]
        return out
    X = Asm(); b2_reads(X, "k"); X("s_waitcnt lgkmcnt(0)")
    A(X.L)
    X = Asm(); b2_qk(X); b2_reads(X, "v"); X("s_nop 7"); b2_max(X); X("s_waitcnt lgkmcnt(0)")
    items = issue_l(S_K, S_BM, 0, False)
    L = weave_items(X.L, items)
    check(L, "b2 qk/max")
    A(L)
    if opts.get("b2stamp"): stamp(A)
    dm = []
    dm += issue_l(S_K, S_BM + 1, 1, False) + issue_l(S_V, S_BM, 0, True)
    late = issue_l(S_K, S_BM + 2, 2, False) + issue_l(S_V, S_BM + 1, 1, True) + issue_l(S_K, S_SRC[1], 3, False) + issue_l(S_V, S_BM + 2, 2, True)
    X = Asm(); b2_pv(X)
    L = X.L
    step = len(L) // (len(dm) + 1)
    out = []
    for k, d in enumerate(dm):
        out += L[k * step:(k + 1) * step] + d
    out += L[len(dm) * step:]
    X = Asm(); X(out); b2_out(X); check(X.L, "b2 pv"); A(X.L)
    if opts.get("b2stamp"): stamp(A)
    for it in late:
        A(it)
        if it[0].startswith("s_add_u32 m0"):
            A("s_nop 0")
    A("s_mov_b32 %s, %s" % (s(S_T0), s(S_RET)))
    A("s_add_u32 %s, %s, %d" % (s(S_DM0[1]), s(S_T0), 3 * 16384))
    A("v_mov_b32 %s, %s" % (v(V_KA[0]), v(V_L16)))
    A("v_add_u32 %s, 16384, %s" % (v(V_KA[1]), v(V_L16)))
    A("s_cmp_eq_u32 %s, 0" % s(S_ROLE))
    A("s_cbranch_scc1 L_k2_noq2")
    A("v_mov_b32 %s, 0" % v(115))
    flag_poll(A, 115, S_QBIT, S_WS, "q", 116, S_SPIN)
    load_q(A, 0, S_QB, " sc1")
    A("s_waitcnt vmcnt(0)")
    A.label("L_k2_noq2")
    A("s_waitcnt vmcnt(16)" if one else "s_waitcnt vmcnt(22)")
    A("s_barrier")
    if one:
        A("s_lshr_b32 %s, s2, 4" % s(S_T0))
        A("s_lshl_b32 %s, %s, 4" % (s(S_T0), s(S_T0)))
        A("s_add_u32 %s, %s, %s" % (s(S_T0), s(S_T0), s(S_BH)))
        A("s_lshl_b32 %s, %s, 7" % (s(S_T0), s(S_T0)))
        A("s_add_u32 %s, %s, %d" % (s(S_T0), s(S_T0), FL_CB))
        flag_set(A, S_T0, S_WAVE, S_WS, "L_k2_cbsig", 115)
    if stamps:
        stamp(A)
    A.label("L_k2_seg")
    A("s_lshl_b32 %s, %s, 2" % (s(S_DIAG), s(S_QB)))
    A("s_add_u32 %s, %s, %s" % (s(S_DIAG), s(S_DIAG), s(S_WAVE)))
    A("s_lshl_b32 %s, %s, 5" % (s(S_QROW), s(S_DIAG)))
    P = Asm(); seg_prologue(P); check(P.L, "k2 segpro"); A(P.L)
    ncopy = 4 if opts.get("k2copies", 4) == 4 else 1
    if ncopy == 4:
        for wv in range(1, 4):
            A("s_cmp_eq_u32 %s, %d" % (s(S_WAVE), wv))
            A("s_cbranch_scc1 L_k2_loop_%d" % wv)
    for wv in range(ncopy):
        b0 = body(0, False, opts, wv); b1 = body(1, False, opts, wv); bf = body(1, True, opts, wv)
        if not any(k.startswith("k2no") for k in opts):
            check(P.L[-60:] + b0 + b1 + b0 + bf, "k2 bodies")
        A(".p2align 6")
        A.label("L_k2_loop_%d" % wv)
        A("s_cmp_eq_u32 %s, %s" % (s(S_TABS), s(S_TLAST)))
        A("s_cbranch_scc1 L_k2_fl_%d" % wv)
        A.label("L_k2_flret_%d" % wv)
        if opts.get("k2bodystamp"):
            stamp(A)
        A(b0)
        A("s_cmp_eq_u32 %s, %s" % (s(S_TABS), s(S_TEND)))
        A("s_cbranch_scc1 L_k2_final_%d" % wv)
        A(b1)
        A("s_branch L_k2_loop_%d" % wv)
        A.label("L_k2_final_%d" % wv)
        A("s_cmp_eq_u32 %s, 2" % s(S_ENDACT))
        A("s_cbranch_scc1 L_k2_ec_%d" % wv)
        A.label("L_k2_ecret_%d" % wv)
        A(bf)
        if wv < ncopy - 1:
            A("s_branch L_k2_segend")
    A.label("L_k2_segend")
    if stamps:
        stamp(A)
    A("s_nop 7")
    A("s_nop 1")
    A("s_cmp_eq_u32 %s, 1" % s(S_ENDACT))
    A("s_cbranch_scc1 L_k2_pub")
    A("s_cmp_eq_u32 %s, 2" % s(S_ENDACT))
    A("s_cbranch_scc0 L_k2_fin0")
    M = Asm(); epi_merge_load(M); epi_final(M, True); check(M.L, "k2 merge"); A(M.L)
    A("s_branch L_k2_done")
    A.label("L_k2_fin0")
    M = Asm(); epi_final(M, False); check(M.L, "k2 fin"); A(M.L)
    A("s_branch L_k2_done")
    A.label("L_k2_pub")
    M = Asm(); epi_publish(M); check(M.L, "k2 pub"); A(M.L)
    if stamps:
        stamp(A)
    A("s_mov_b32 %s, %s" % (s(S_QB), s(S_PAIR)))
    A("s_mov_b32 %s, 0" % s(S_TABS))
    A("s_mov_b32 %s, %s" % (s(S_TEND), s(S_N2)))
    A("s_mov_b32 %s, 0" % s(S_ENDACT))
    for r in range(64):
        A("v_accvgpr_mov_b32 %s, %s" % (a(A_Q[0] + r), a(A_Q[1] + r)))
    A("s_add_u32 %s, %s, 16384" % (s(S_T0), s(S_DM0[1])))
    A("s_and_b32 %s, %s, 0xffff" % (s(S_T0), s(S_T0)))
    A("v_add_u32 %s, %s, %s" % (v(V_KA[0]), s(S_T0), v(V_B)))
    A("v_subrev_u32 %s, 0x10000, %s" % (v(V_KA[0]), v(V_KA[0])))
    A("s_add_u32 %s, %s, 16384" % (s(S_T0), s(S_T0)))
    A("s_and_b32 %s, %s, 0xffff" % (s(S_T0), s(S_T0)))
    A("v_add_u32 %s, %s, %s" % (v(V_KA[1]), s(S_T0), v(V_B)))
    A("v_subrev_u32 %s, 0x10000, %s" % (v(V_KA[1]), v(V_KA[1])))
    A("s_branch L_k2_seg")
    A.label("L_k2_done")
    if one:
        A("s_waitcnt vmcnt(0)")
        A("s_barrier")
        A("s_lshl_b32 %s, %s, 4" % (s(S_T0), s(S_QB)))
        A("s_add_u32 %s, %s, %s" % (s(S_T0), s(S_T0), s(S_HEAD)))
        A("s_lshl_b32 %s, %s, 7" % (s(S_T0), s(S_T0)))
        A("s_add_u32 %s, %s, %d" % (s(S_T0), s(S_T0), FL_CTX))
        flag_set(A, S_T0, S_WAVE, S_WS, "L_k2_ctxsig", 115)
        if stamps:
            stamp(A)
            A("v_mov_b32 v15, v127")
            STAMPV[0] = 15
        import k3 as K3
        K3.k3_fused(A, opts)
    if stamps:
        A("s_waitcnt vmcnt(0)")
        stamp(A)
        stamp_flush(A, S_WS, S_WAVE, 0, "L_k2_stf")

def k2_outofline(A, opts):
    ncopy = 4 if opts.get("k2copies", 4) == 4 else 1

    for wv in range(ncopy):
        for p in range(2):
            mb = mask_block(p ^ 1, "L_k2_maskret%d_%d" % (p, wv), "L_k2_mask%d_%d" % (p, wv)); check(mb, "mask"); A(mb)
            rb = resc_block(p ^ 1, "L_k2_rescret%d_%d" % (p, wv), "L_k2_resc%d_%d" % (p, wv)); check(rb, "resc"); A(rb)
    for wv in range(ncopy):
        A.label("L_k2_fl_%d" % wv)
        A(flag_load())
        A("s_branch L_k2_flret_%d" % wv)
        A(early_check_block("L_k2_ec_%d" % wv, "L_k2_ecret_%d" % wv))
    mb = mask_block(0, "L_k2_maskPret", "L_k2_maskP"); A(mb)
```

```python
from common import *

LDS_BYTES = 65536
S_WS = 12; S_OUT = 8
LDF = [""]
S_WAVE = 16; S_AO = 17; S_BO = 18; S_T0 = 19; S_T1 = 20; S_T2 = 21; S_MT = 22; S_QT = 23; S_CNT = 24
V_L16 = 1
V_T = 2
V_ACC = 16
V_F = 128

DEPTH = 7

def fbuf(slot, k):
    return a((slot * 8 + k) * 4, 4)

def a_loads(slot):
    o = []
    for mt in range(4):
        o.append("buffer_load_dwordx4 %s, %s, %s, %s offen%s" % (fbuf(slot, mt), v(V_T + mt), s(S_WS, 4), s(S_AO), LDF[0]))
    for qt in range(4):
        o.append("buffer_load_dwordx4 %s, %s, %s, %s offen%s" % (fbuf(slot, 4 + qt), v(V_T + qt), s(S_WS, 4), s(S_BO), LDF[0]))
    return o

def gen_A(A, fused=False):
    A("s_and_b32 %s, s2, 7" % s(S_T0))
    A("s_lshr_b32 %s, s2, 3" % s(S_T1))
    A("s_lshl_b32 %s, %s, 2" % (s(S_QT), s(S_T0)))
    A("s_and_b32 %s, %s, 3" % (s(S_T2), s(S_T1)))
    A("s_add_u32 %s, %s, %s" % (s(S_QT), s(S_QT), s(S_T2)))
    A("s_lshr_b32 %s, %s, 2" % (s(S_MT), s(S_T1)))
    for t in range(4):
        A("v_add_u32 %s, %d, %s" % (v(V_T + t), t * 131072, v(V_L16)))
    A("s_lshl_b32 %s, %s, 19" % (s(S_AO), s(S_MT)))
    A("s_lshl_b32 %s, %s, 15" % (s(S_T0), s(S_WAVE)))
    A("s_add_u32 %s, %s, %s" % (s(S_AO), s(S_AO), s(S_T0)))
    A("s_add_u32 %s, %s, %d" % (s(S_AO), s(S_AO), WS_WOT))
    A("s_lshl_b32 %s, %s, 19" % (s(S_BO), s(S_QT)))
    A("s_add_u32 %s, %s, %s" % (s(S_BO), s(S_BO), s(S_T0)))
    A("s_add_u32 %s, %s, %d" % (s(S_BO), s(S_BO), WS_CTX))
    adv = ["s_add_u32 %s, %s, 1024" % (s(S_AO), s(S_AO)), "s_add_u32 %s, %s, 1024" % (s(S_BO), s(S_BO))]
    if fused:
        A("v_and_b32 %s, 31, v0" % v(12))
        A("v_lshlrev_b32 %s, 7, %s" % (v(12), v(12)))
        A("s_lshl_b32 %s, %s, 12" % (s(S_T0), s(S_WAVE)))
        A("s_add_u32 %s, %s, %d" % (s(S_T0), s(S_T0), FL_WO))
        flag_poll(A, 12, S_T0, S_WS, "wo", 13, S_CNT)
        A("v_and_b32 %s, 15, v0" % v(12))
        A("v_lshlrev_b32 %s, 7, %s" % (v(12), v(12)))
        A("s_lshr_b32 %s, %s, 1" % (s(S_T0), s(S_QT)))
        A("s_lshl_b32 %s, %s, 11" % (s(S_T0), s(S_T0)))
        A("s_add_u32 %s, %s, %d" % (s(S_T0), s(S_T0), FL_CTX))
        flag_poll(A, 12, S_T0, S_WS, "ctx", 13, S_CNT)
    for d in range(DEPTH):
        A(a_loads(d)); A(adv)
    for ks in range(32):
        slot = ks % DEPTH
        inflight_after = min(DEPTH - 1, 31 - ks)
        A("s_waitcnt vmcnt(%d)" % (8 * inflight_after))
        mfs = []
        for mt in range(4):
            for qt in range(4):
                acc = v(V_ACC + (mt * 4 + qt) * 4, 4)
                mfs.append(mf16(acc, fbuf(slot, mt), fbuf(slot, 4 + qt), "0" if ks == 0 else acc))
        A(mfs)
        if ks + DEPTH < 32:
            A(a_loads(slot)); A(adv)
    A("s_nop 7")
    A("s_lshl_b32 %s, %s, 14" % (s(S_T0), s(S_WAVE)))
    A("v_add_u32 %s, %s, %s" % (v(V_T + 4), s(S_T0), v(V_L16)))
    for k in range(16):
        A("ds_write_b128 %s, %s offset:%d" % (v(V_T + 4), v(V_ACC + 4 * k, 4), k * 1024))
    A("s_waitcnt lgkmcnt(0)")
    A("s_barrier")
    A("s_lshl_b32 %s, %s, 10" % (s(S_T0), s(S_WAVE)))
    A("v_add_u32 %s, %s, %s" % (v(V_T + 4), s(S_T0), v(V_L16)))
    R = 128
    for mt in range(4):
        for w in range(4):
            A("ds_read_b128 %s, %s offset:%d" % (v(R + (mt * 4 + w) * 4, 4), v(V_T + 4), w * 16384 + mt * 4096))
    A("v_lshrrev_b32 %s, 4, %s" % (v(V_T + 5), v(V_L16)))
    A("v_and_b32 %s, 15, %s" % (v(V_T + 6), v(V_T + 5)))
    A("v_lshrrev_b32 %s, 4, %s" % (v(V_T + 5), v(V_T + 5)))
    A("s_lshl_b32 %s, %s, 6" % (s(S_T0), s(S_QT)))
    A("s_lshl_b32 %s, %s, 4" % (s(S_T1), s(S_WAVE)))
    A("s_add_u32 %s, %s, %s" % (s(S_T0), s(S_T0), s(S_T1)))
    A("v_add_u32 %s, %s, %s" % (v(V_T + 6), s(S_T0), v(V_T + 6)))
    A("v_mul_u32_u24 %s, 1792, %s" % (v(V_T + 6), v(V_T + 6)))
    A("v_lshl_add_u32 %s, %s, 3, %s" % (v(V_T + 6), v(V_T + 5), v(V_T + 6)))
    A("s_lshl_b32 %s, %s, 7" % (s(S_T0), s(S_MT)))
    A("s_waitcnt lgkmcnt(0)")
    for mt in range(4):
        b = R + mt * 16
        for r in range(4):
            A("v_add_f32 %s, %s, %s" % (v(b + r), v(b + r), v(b + 4 + r)))
            A("v_add_f32 %s, %s, %s" % (v(b + 8 + r), v(b + 8 + r), v(b + 12 + r)))
        for r in range(4):
            A("v_add_f32 %s, %s, %s" % (v(b + r), v(b + r), v(b + 8 + r)))
        A("v_cvt_pk_bf16_f32 %s, %s, %s" % (v(b + 4), v(b), v(b + 1)))
        A("v_cvt_pk_bf16_f32 %s, %s, %s" % (v(b + 5), v(b + 2), v(b + 3)))
        A("buffer_store_dwordx2 %s, %s, %s, %s offen offset:%d" % (v(b + 4, 2), v(V_T + 6), s(S_OUT, 4), s(S_T0), mt * 32))

def gen_B(A, fused=False):
    A("s_sub_u32 %s, s2, 224" % s(S_QT))
    A("s_mul_i32 %s, %s, %d" % (s(S_AO), s(S_WAVE), 7 * 16384))
    A("s_add_u32 %s, %s, %d" % (s(S_AO), s(S_AO), WS_WOBT))
    A("s_lshl_b32 %s, %s, 16" % (s(S_BO), s(S_QT)))
    A("s_add_u32 %s, %s, %d" % (s(S_BO), s(S_BO), WS_CTXB))
    for t in range(7):
        A("v_add_u32 %s, %d, %s" % (v(V_T + t), t * 16384, v(V_L16)))
    D = 5
    def buf(slot, k):
        return a((slot * 11 + k) * 4, 4)
    def loads(slot):
        o = []
        for mt in range(7):
            o.append("buffer_load_dwordx4 %s, %s, %s, %s offen%s" % (buf(slot, mt), v(V_T + mt), s(S_WS, 4), s(S_AO), LDF[0]))
        for qt in range(4):
            o.append("buffer_load_dwordx4 %s, %s, %s, %s offen%s" % (buf(slot, 7 + qt), v(V_T + qt), s(S_WS, 4), s(S_BO), LDF[0]))
        o += ["s_add_u32 %s, %s, 1024" % (s(S_AO), s(S_AO)), "s_add_u32 %s, %s, 1024" % (s(S_BO), s(S_BO))]
        return o
    if fused:
        A("v_and_b32 %s, 15, v0" % v(12))
        A("v_lshlrev_b32 %s, 7, %s" % (v(12), v(12)))
        A("s_mov_b32 %s, %d" % (s(S_T0), FL_WO + 128 * 128))
        flag_poll(A, 12, S_T0, S_WS, "wob", 13, S_CNT)
        A("s_lshr_b32 %s, %s, 1" % (s(S_T0), s(S_QT)))
        A("s_lshl_b32 %s, %s, 11" % (s(S_T0), s(S_T0)))
        A("s_add_u32 %s, %s, %d" % (s(S_T0), s(S_T0), FL_CB))
        flag_poll(A, 12, S_T0, S_WS, "cb", 13, S_CNT)
    for d in range(D):
        A(loads(d))
    for ks in range(16):
        slot = ks % D
        A("s_waitcnt vmcnt(%d)" % (11 * min(D - 1, 15 - ks)))
        for mt in range(7):
            for qt in range(4):
                acc = v(V_ACC + (mt * 4 + qt) * 4, 4)
                A(mf16(acc, buf(slot, mt), buf(slot, 7 + qt), "0" if ks == 0 else acc))
        if ks + D < 16:
            A(loads(slot))
    A("s_nop 7")
    A("v_lshrrev_b32 %s, 4, %s" % (v(V_T + 8), v(V_L16)))
    A("v_and_b32 %s, 15, %s" % (v(V_T + 9), v(V_T + 8)))
    A("v_lshrrev_b32 %s, 4, %s" % (v(V_T + 8), v(V_T + 8)))
    A("s_lshl_b32 %s, %s, 6" % (s(S_T0), s(S_QT)))
    A("v_add_u32 %s, %s, %s" % (v(V_T + 9), s(S_T0), v(V_T + 9)))
    A("v_mul_u32_u24 %s, 1792, %s" % (v(V_T + 9), v(V_T + 9)))
    A("v_lshl_add_u32 %s, %s, 3, %s" % (v(V_T + 9), v(V_T + 8), v(V_T + 9)))
    A("s_mul_i32 %s, %s, %d" % (s(S_T0), s(S_WAVE), 7 * 32))
    A("s_add_u32 %s, %s, 896" % (s(S_T0), s(S_T0)))
    k = 0
    for qt in range(4):
        A("s_add_u32 %s, %s, %d" % (s(S_T1), s(S_T0), qt * 16 * 1792))
        for mt in range(7):
            b = V_ACC + (mt * 4 + qt) * 4
            P = 128 + (k % 8) * 2
            A("v_cvt_pk_bf16_f32 %s, %s, %s" % (v(P), v(b), v(b + 1)))
            A("v_cvt_pk_bf16_f32 %s, %s, %s" % (v(P + 1), v(b + 2), v(b + 3)))
            A("buffer_store_dwordx2 %s, %s, %s, %s offen offset:%d" % (v(P, 2), v(V_T + 9), s(S_OUT, 4), s(S_T1), mt * 32))
            k += 1

def gen_k3(name, opts):
    stamps = opts.get("stamps", False)
    STAMPV[0] = 15
    A = Asm()
    A(".globl %s" % name); A(".p2align 8"); A(".type %s,@function" % name); A.label(name)
    A("s_cmp_ge_u32 s2, 256")
    A("s_cbranch_scc1 L_k3_end")
    load_ptrs(A)
    A("v_lshrrev_b32 v1, 6, v0")
    A("s_nop 0")
    A("v_readfirstlane_b32 %s, v1" % s(S_WAVE))
    A("v_and_b32 v1, 63, v0")
    A("v_lshlrev_b32 v1, 4, v1")
    A("s_waitcnt lgkmcnt(0)")
    if stamps:
        stamp_init(A); stamp(A)
    LDF[0] = ""
    set_srd(A, S_WS, P_WS, WS_SIZE)
    set_srd(A, S_OUT, P_OUT, 2048 * 896 * 2)
    A("s_cmp_ge_u32 s2, 224")
    A("s_cbranch_scc1 L_k3_B")
    X = Asm(); gen_A(X); check(X.L, "k3 A"); A(X.L)
    A("s_branch L_k3_done")
    A.label("L_k3_B")
    X = Asm(); gen_B(X); check(X.L, "k3 B"); A(X.L)
    A.label("L_k3_done")
    if stamps:
        A("s_waitcnt vmcnt(0)")
        stamp(A)
        stamp_flush(A, S_WS, S_WAVE, 2, "L_k3_stf")
    A.label("L_k3_end")
    A("s_endpgm")
    return A


def k3_fused(A, opts):
    LDF[0] = " sc1"
    A("v_and_b32 v1, 63, v0")
    A("v_lshlrev_b32 v1, 4, v1")
    set_srd(A, S_OUT, P_OUT, 2048 * 896 * 2)
    A("s_cmp_ge_u32 s2, 224")
    A("s_cbranch_scc1 L_k3_B")
    X = Asm(); gen_A(X, True); check(X.L, "k3 A"); A(X.L)
    A("s_branch L_k3_done")
    A.label("L_k3_B")
    X = Asm(); gen_B(X, True); check(X.L, "k3 B"); A(X.L)
    A.label("L_k3_done")
```

```python
import sys, os
sys.path.insert(0, os.path.dirname(os.path.abspath(__file__)))
from asmgen import *
import k1 as K1
from common import descriptor

NAME = "concat_heads__compressed_kv_cla__sliding_block__prompt"
HEADER = """; Kernarg layout for this problem (96 bytes, ptrs only, base s[0:1]):
"""

def build(opts):
    stamps = opts.get("stamps", False)
    launches = []
    bodies = []
    descs = []
    which = opts.get("kernels", ["k1"])
    if "k1" in which:
        launches.append("; @launch kernel=proj_kernel grid=(256,1,1) block=(256,1,1) lds=%d" % K1.LDS_BYTES)
        bodies.append(K1.gen_k1("proj_kernel", opts).text())
        descs.append(descriptor("proj_kernel"))
    if "one" in which:
        import k12 as K12
        o2 = dict(opts); o2["one"] = 1
        launches.append("; @launch grid=(256,1,1) block=(256,1,1) lds=%d" % K12.LDS_BYTES)
        bodies.append(K12.gen_k12(NAME + "_kernel", o2).text())
        descs.append(descriptor(NAME + "_kernel"))
    if "onel" in which:
        import k12 as K12
        o2 = dict(opts); o2["one"] = 1
        launches.append("; @launch kernel=main_kernel grid=(256,1,1) block=(256,1,1) lds=%d" % K12.LDS_BYTES)
        bodies.append(K12.gen_k12("main_kernel", o2).text())
        descs.append(descriptor("main_kernel"))
    if "k12" in which:
        import k12 as K12
        launches.append("; @launch kernel=main_kernel grid=(256,1,1) block=(256,1,1) lds=%d" % K12.LDS_BYTES)
        bodies.append(K12.gen_k12("main_kernel", opts).text())
        descs.append(descriptor("main_kernel"))
    if "k2" in which:
        import k2 as K2
        launches.append("; @launch kernel=attn_kernel grid=(256,1,1) block=(256,1,1) lds=%d" % K2.LDS_BYTES)
        bodies.append(K2.gen_k2("attn_kernel", opts).text())
        descs.append(descriptor("attn_kernel"))
    if "k3" in which:
        import k3 as K3
        launches.append("; @launch kernel=oproj_kernel grid=(256,1,1) block=(256,1,1) lds=%d" % K3.LDS_BYTES)
        bodies.append(K3.gen_k3("oproj_kernel", opts).text())
        descs.append(descriptor("oproj_kernel"))
    txt = HEADER + "\n".join(launches) + "\n"
    txt += '.amdgcn_target "amdgcn-amd-amdhsa--gfx950"\n.text\n'
    txt += "\n".join(bodies)
    txt += "\n".join(descs)
    return txt

if __name__ == "__main__":
    out = sys.argv[1]
    opts = {}
    for x in sys.argv[2:]:
        k, _, val = x.partition("=")
        if k == "kernels":
            opts[k] = val.split(",")
        else:
            opts[k] = int(val) if val.lstrip("-").isdigit() else (val or True)
    open(out, "w").write(build(opts))
    print("wrote", out)
```
